```python
import torch

def _softmax(x, axis=-1):
    return torch.softmax(x, dim=axis)

def _gelu(x):
    return torch.nn.functional.gelu(x, approximate='tanh')

def _silu(x):
    return torch.nn.functional.silu(x)

def _sigmoid(x):
    return torch.sigmoid(x)

def _layernorm(x, axis=-1, eps=1e-05):
    m = x.mean(dim=axis, keepdim=True)
    v = x.var(dim=axis, keepdim=True, unbiased=False)
    return (x - m) / torch.sqrt(v + eps)

def _scatter_add(tgt, idx, src, axis=0):
    return tgt.clone().index_add_(axis, idx, src)

def _segment_sum(src, seg, n):
    out = torch.zeros((n,) + src.shape[1:], dtype=src.dtype)
    return out.index_add_(0, seg, src)

def _pad(x, pw):
    flat = tuple((v for pair in reversed(pw) for v in pair))
    return torch.nn.functional.pad(x, flat)
kernel_name = 'standalone__conformer_family_e_branchformer__speech'

def setup_inputs():

    _w = lambda a: (lambda t: t.to(torch.bfloat16) if t.is_floating_point() else t)(torch.as_tensor(a))
    B, T, D, K = (2, 4000, 512, 31)
    return {'x': _w((lambda *s: torch.randn(*s, dtype=torch.bfloat16) * 0.05)(B, T, D)), 'w_qkv': _w((lambda *s: torch.randn(*s, dtype=torch.bfloat16) * 0.05)(D, 3 * D)), 'w_att_out': _w((lambda *s: torch.randn(*s, dtype=torch.bfloat16) * 0.05)(D, D)), 'w_mlp_in': _w((lambda *s: torch.randn(*s, dtype=torch.bfloat16) * 0.05)(D, 2 * D)), 'dw_csgu': _w((lambda *s: torch.randn(*s, dtype=torch.bfloat16) * 0.05)(K, D)), 'w_mlp_out': _w((lambda *s: torch.randn(*s, dtype=torch.bfloat16) * 0.05)(D, D)), 'dw_merge': _w((lambda *s: torch.randn(*s, dtype=torch.bfloat16) * 0.05)(K, 2 * D)), 'w_merge': _w((lambda *s: torch.randn(*s, dtype=torch.bfloat16) * 0.05)(2 * D, D))}

def reference(x, w_qkv, w_att_out, w_mlp_in, dw_csgu, w_mlp_out, dw_merge, w_merge):
    B, T, D = x.shape
    K = dw_csgu.shape[0]
    pad = K // 2
    xa = _layernorm(x, axis=-1)
    qkv = torch.einsum('btd,de->bte', xa, w_qkv)
    q, k, v = (qkv[..., :D].clone(), qkv[..., D:2 * D].clone(), qkv[..., 2 * D:].clone())
    scores = torch.einsum('btd,bsd->bts', q, k) * D ** (-0.5)
    p = _softmax(scores, axis=-1)
    attn = torch.einsum('bts,bsd->btd', p, v)
    glob = torch.einsum('btd,de->bte', attn, w_att_out)
    xc = _layernorm(x, axis=-1)
    h = _gelu(torch.einsum('btd,de->bte', xc, w_mlp_in))
    u, g = (h[..., :D].clone(), h[..., D:].clone())
    g = _layernorm(g, axis=-1)
    gp = _pad(g, ((0, 0), (pad, pad), (0, 0)))
    gc = torch.zeros_like(g)
    for i in range(K):
        gc = gc + gp[:, i:i + T, :] * dw_csgu[i][None, None, :]
    loc = torch.einsum('btd,de->bte', u * gc, w_mlp_out)
    m = torch.concatenate([glob, loc], axis=-1)
    mp = _pad(m, ((0, 0), (pad, pad), (0, 0)))
    mc = torch.zeros_like(m)
    for i in range(K):
        mc = mc + mp[:, i:i + T, :] * dw_merge[i][None, None, :]
    m = m + mc
    return x + torch.einsum('btc,cd->btd', m, w_merge)
```

```python
import re

TRANS = ("v_exp_f32", "v_log_f32", "v_rcp_f32", "v_rsq_f32", "v_sqrt_f32", "v_sin_f32", "v_cos_f32")

_reg_re = re.compile(r"^(-|abs\(|\|)?([vas])(\d+)\)?\|?$")
_rng_re = re.compile(r"^(-|abs\(|\|)?([vas])\[(\d+):(\d+)\]\)?\|?$")


def regs_of(op):
    op = op.strip()
    m = _reg_re.match(op)
    if m:
        return [(m.group(2), int(m.group(3)))]
    m = _rng_re.match(op)
    if m:
        return [(m.group(2), i) for i in range(int(m.group(3)), int(m.group(4)) + 1)]
    if op == "vcc":
        return [("s", "vcc")]
    if op == "exec":
        return [("s", "exec")]
    if op == "m0":
        return [("s", "m0")]
    return []


def split_ops(s):
    out, cur, depth = [], "", 0
    for ch in s:
        if ch == "[":
            depth += 1
        if ch == "]":
            depth -= 1
        if ch == "," and depth == 0:
            out.append(cur.strip())
            cur = ""
        else:
            cur += ch
    if cur.strip():
        out.append(cur.strip())
    return out


class Ins:
    __slots__ = ("text", "mn", "cls", "w", "r", "ws", "passes", "srcc", "dst", "ab", "data", "lds", "dpp")

    def __init__(self, text):
        self.text = text
        t = text.split(";")[0].strip()
        self.w, self.r = set(), set()
        self.ws = 1
        self.passes = 0
        self.srcc, self.dst, self.ab, self.data = [], [], [], []
        self.lds = False
        self.dpp = False
        if not t or t.endswith(":") or t.startswith("."):
            self.mn, self.cls, self.ws = "", "label", 0
            return
        parts = t.split(None, 1)
        mn = parts[0]
        self.mn = mn
        rest = parts[1] if len(parts) > 1 else ""
        ops = split_ops(rest)
        mods = ""
        if ops:
            sp = ops[-1].split(None, 1)
            if len(sp) > 1 and not ops[-1].startswith("abs("):
                ops[-1], mods = sp[0], sp[1]
        R = [regs_of(o) for o in ops]
        if mn == "s_nop":
            self.cls, self.ws = "nop", int(ops[0], 0) + 1
        elif mn.startswith("v_mfma"):
            self.cls = "mfma"
            self.passes = 8 if "32x32" in mn else 4
            self.dst, self.ab, self.srcc = R[0], R[1] + R[2], R[3]
            self.w |= set(R[0])
            self.r |= set(R[1] + R[2] + R[3])
        elif mn.startswith("v_"):
            self.cls = "trans" if mn.replace("_e32", "").replace("_e64", "") in TRANS else "valu"
            if "dpp" in mn or "row_" in mods or "quad_perm" in mods:
                self.dpp = True
            if mn.startswith("v_cmp"):
                self.w |= set(R[0])
                for x in R[1:]:
                    self.r |= set(x)
            elif mn.startswith("v_permlane") and "swap" in mn:
                self.w |= set(R[0] + R[1])
                self.r |= set(R[0] + R[1])
            elif mn.startswith(("v_add_co", "v_sub_co", "v_addc_co", "v_subb_co")):
                self.w |= set(R[0] + R[1])
                for x in R[2:]:
                    self.r |= set(x)
            else:
                self.w |= set(R[0])
                for x in R[1:]:
                    self.r |= set(x)
                if mn.startswith(("v_fmac", "v_dot2c", "v_pk_fmac", "v_writelane")) or self.dpp:
                    self.r |= set(R[0])
                if mn.startswith("v_cndmask") and len(ops) == 3:
                    self.r.add(("s", "vcc"))
        elif mn.startswith("ds_"):
            self.cls = "ds"
            if mn.startswith(("ds_read", "ds_bpermute", "ds_permute", "ds_swizzle")):
                self.w |= set(R[0])
                for x in R[1:]:
                    self.r |= set(x)
            else:
                for x in R:
                    self.r |= set(x)
        elif mn.startswith(("buffer_", "global_")):
            self.cls = "vmem"
            if " lds" in (" " + mods) :
                self.lds = True
                for x in R:
                    self.r |= set(x)
                self.r.add(("s", "m0"))
            elif "load" in mn:
                self.w |= set(R[0])
                for x in R[1:]:
                    self.r |= set(x)
                if "d16" in mn:
                    self.r |= set(R[0])
            else:
                for x in R:
                    self.r |= set(x)
                d = R[0] if mn.startswith("buffer_") else R[1]
                if mn.endswith(("x3", "x4")):
                    self.data = d
        elif mn.startswith("s_"):
            self.cls = "salu"
            if mn.startswith(("s_cmp", "s_cbranch", "s_branch", "s_waitcnt", "s_barrier", "s_endpgm", "s_setprio", "s_sleep")):
                for x in R:
                    self.r |= set(x)
            else:
                if R:
                    self.w |= set(R[0])
                for x in R[1:]:
                    self.r |= set(x)
                if "saveexec" in mn:
                    self.w.add(("s", "exec"))
        else:
            raise ValueError("unknown instr " + text)


def need(p, c):
    n = 0
    pv = p.cls in ("valu", "trans")
    cv = c.cls in ("valu", "trans")
    if pv:
        wv = {x for x in p.w if x[0] != "s"}
        wsg = {x for x in p.w if x[0] == "s"}
        if c.cls == "mfma" and wv & c.r:
            n = max(n, 2)
        if wsg & c.r:
            if c.cls == "vmem":
                n = max(n, 5)
            if cv:
                n = max(n, 4 if c.mn.startswith(("v_readlane", "v_writelane")) else 2)
        if cv and wv & c.r:
            if c.mn.startswith(("v_readfirstlane", "v_readlane")):
                n = max(n, 1)
            if c.mn.startswith("v_permlane") or c.dpp:
                n = max(n, 2)
            if p.cls == "trans" and c.cls != "trans":
                n = max(n, 1)
    if p.cls == "mfma":
        big = p.passes == 8
        if c.cls == "mfma":
            if p.w & set(c.ab):
                n = max(n, 12 if big else 8)
            if p.w & set(c.srcc):
                if not (p.dst == c.srcc and p.passes == c.passes):
                    n = max(n, 10 if big else 6)
        elif c.cls in ("valu", "trans", "ds", "vmem"):
            if p.w & (c.r | c.w):
                n = max(n, 12 if big else 8)
            if cv and set(p.srcc) & c.w:
                n = max(n, 7 if big else 3)
    if p.cls == "salu" and ("s", "m0") in p.w and c.lds:
        n = max(n, 1)
    if p.cls == "vmem" and p.data and set(p.data) & c.w:
        n = max(n, 2 if cv else 1)
    return n


class Asm:
    def __init__(self):
        self.lines = []
        self.auto = True
        self.nlabel = 0
        self.inserted = 0

    def __call__(self, text):
        for ln in text.split("\n"):
            ln = ln.strip()
            if not ln:
                continue
            ins = Ins(ln)
            if self.auto and ins.cls not in ("label", "nop"):
                d = 0
                req = 0
                for p in reversed(self.lines):
                    if d >= 20:
                        break
                    if p.cls not in ("label", "nop"):
                        req = max(req, need(p, ins) - d)
                    d += p.ws
                if req > 0:
                    self.lines.append(Ins(f"s_nop {req - 1}"))
                    self.inserted += 1
            self.lines.append(ins)

    def label(self, prefix="L"):
        self.nlabel += 1
        return f"{prefix}_{self.nlabel}"

    def check_branches(self):
        pos = {}
        for i, x in enumerate(self.lines):
            t = x.text.split(";")[0].strip()
            if x.cls == "label" and t.endswith(":"):
                pos[t[:-1]] = i
        bad = 0
        for i, x in enumerate(self.lines):
            if x.mn.startswith(("s_cbranch", "s_branch")):
                tgt = x.text.split(";")[0].split()[1]
                if tgt not in pos:
                    continue
                j = pos[tgt]
                dc = 0
                for c in self.lines[j:j + 40]:
                    if dc >= 20:
                        break
                    if c.cls not in ("label", "nop"):
                        d = dc
                        for p in reversed(self.lines[max(0, i - 40):i + 1]):
                            if d >= 20:
                                break
                            if p.cls not in ("label", "nop") and need(p, c) > d:
                                print(f"HAZARD across branch {x.text}: '{p.text}' -> '{c.text}' need {need(p,c)} have {d}")
                                bad += 1
                            d += p.ws
                    dc += c.ws
                    if c.mn in ("s_branch", "s_endpgm"):
                        break
        return bad

    def text(self):
        out = []
        for x in self.lines:
            out.append(x.text if x.cls == "label" else "  " + x.text)
        return "\n".join(out)


def v(a, n=1):
    return f"v{a}" if n == 1 else f"v[{a}:{a+n-1}]"


def a_(a, n=1):
    return f"a{a}" if n == 1 else f"a[{a}:{a+n-1}]"


def s(a, n=1):
    return f"s{a}" if n == 1 else f"s[{a}:{a+n-1}]"


def f2u(x):
    import struct
    return struct.unpack("<I", struct.pack("<f", x))[0]


def kdesc(name, vgpr, agpr, sgpr=102):
    acc = (vgpr + 3) // 4 * 4
    tot = acc + agpr if agpr else vgpr
    return f""".section .rodata,"a"
.p2align 6
.amdhsa_kernel {name}
  .amdhsa_next_free_vgpr {tot}
  .amdhsa_next_free_sgpr {sgpr}
  .amdhsa_accum_offset {acc}
  .amdhsa_group_segment_fixed_size 0
  .amdhsa_kernarg_size 88
  .amdhsa_user_sgpr_count 2
  .amdhsa_user_sgpr_kernarg_segment_ptr 1
  .amdhsa_system_sgpr_workgroup_id_x 1
  .amdhsa_float_denorm_mode_32 3
.end_amdhsa_kernel
.text"""
```

```python
from asmlib import *
import layout as L
from k0 import srd

LANE, L16, DV0, DV1, KA0, KA1, VA, LS0, LS1 = 0, 1, 2, 3, 4, 5, 6, 7, 8
BS0, BS1 = 9, 10
T0 = 12
NEGM = 20
PP = 28
SS = 36
RING = 68
XT = 100
QQ = 128
NR = 8
DIST = 7
THRESH = 2.0 ** 30

def Sreg(p, ka, qa): return SS + p * 16 + (ka * 2 + qa) * 4
def Q(qa, j): return QQ + (qa * 16 + j) * 4
def O(dt, qa): return (dt * 2 + qa) * 4
def ring(n): return RING + (n % NR) * 4
MF = "v_mfma_f32_16x16x32_bf16"

def kread(n, odd, slot_reg=None):
    j, ka = n >> 1, n & 1
    base = KA1 if (j >> 2) & 1 else KA0
    return [f"ds_read_b128 {v(ring(n),4)}, {v(base)} offset:{odd*32768 + ka*16384 + j*1024}"]

def vread(dt, odd):
    j3, j10, gp = dt >> 4, (dt >> 2) & 3, dt & 3
    off = odd * 32768 + (8 * j3 + j10) * 1024 + gp * 256
    r = ring(dt)
    return [f"ds_read_b64_tr_b16 {v(r,2)}, {v(VA)} offset:{off}",
            f"ds_read_b64_tr_b16 {v(r+2,2)}, {v(VA)} offset:{off+16384}"]

def softmax_ops(p):
    out = []
    t = 0
    for qa in range(2):
        bs = BS0 + qa
        for ka in range(2):
            sr = Sreg(p, ka, qa)
            tt = T0 + 4 * (t & 1); t += 1
            for r in range(4):
                out.append(f"v_exp_f32 {v(tt+r)}, {v(sr+r)}")
            if ka == 0:
                out.append(f"v_add_f32 {v(bs)}, {v(tt)}, {v(tt+1)}")
            else:
                out.append(f"v_add_f32 {v(bs)}, {v(bs)}, {v(tt)}")
                out.append(f"v_add_f32 {v(bs)}, {v(bs)}, {v(tt+1)}")
            out.append(f"v_cvt_pk_bf16_f32 {v(PP+qa*4+ka*2)}, {v(tt)}, {v(tt+1)}")
            out.append(f"v_add_f32 {v(bs)}, {v(bs)}, {v(tt+2)}")
            out.append(f"v_add_f32 {v(bs)}, {v(bs)}, {v(tt+3)}")
            out.append(f"v_cvt_pk_bf16_f32 {v(PP+qa*4+ka*2+1)}, {v(tt+2)}, {v(tt+3)}")
    return out

def check_ops():
    return [f"v_max_f32 {v(11)}, {v(BS0)}, {v(BS1)}",
            f"v_cmp_lt_f32 vcc, s45, {v(11)}"]

def dma_ops():
    out = ["s_mov_b32 m0, s47"]
    for i in range(4):
        out.append(f"buffer_load_dwordx4 {v(DV0)}, s[20:23], s46 offen offset:{i*1024} lds")
    out.append("s_add_u32 m0, s47, 16384")
    for i in range(4):
        out.append(f"buffer_load_dwordx4 {v(DV1)}, s[20:23], s46 offen offset:{i*1024} lds")
    out.append("s_add_u32 s46, s46, 32768")
    out.append("s_add_u32 s47, s47, 32768")
    out.append("s_and_b32 s47, s47, 0x1ffff")
    return out

def xmax(A, x, t):
    for lv in (16, 32):
        A(f"v_mov_b32 {v(t)}, {v(x)}")
        A(f"v_permlane{lv}_swap_b32 {v(x)}, {v(t)}")
        A(f"v_max_f32 {v(x)}, {v(x)}, {v(t)}")

def rowmax(A, p, qa, dst, t):
    a, b = Sreg(p, 0, qa), Sreg(p, 1, qa)
    A(f"v_max3_f32 {v(dst)}, {v(a)}, {v(a+1)}, {v(a+2)}")
    A(f"v_max3_f32 {v(dst)}, {v(dst)}, {v(a+3)}, {v(b)}")
    A(f"v_max3_f32 {v(dst)}, {v(dst)}, {v(b+1)}, {v(b+2)}")
    A(f"v_max_f32 {v(dst)}, {v(dst)}, {v(b+3)}")
    xmax(A, dst, t)

class Sched:
    def __init__(self, A):
        self.A = A
        self.q = []
    def issue(self, fid, instrs):
        for x in instrs:
            self.A(x); self.q.append(fid)
    def wait(self, fid):
        if fid not in self.q:
            return
        last = max(i for i, f in enumerate(self.q) if f == fid)
        n = len(self.q) - 1 - last
        self.A(f"s_waitcnt lgkmcnt({n})")
        self.q = self.q[last + 1:]

def spread(fill, nslots, start=0, end=None):
    end = nslots if end is None else end
    d = {}
    n = end - start
    for i, x in enumerate(fill):
        d.setdefault(start + i * n // len(fill), []).append(x)
    return d

def half(A, sc, p, tail, tag):
    if not tail:
        fill = spread(softmax_ops(p) + check_ops(), 64, 1, 56)
        for n in range(32):
            j, ka = n >> 1, n & 1
            if n % 2 == 0:
                sc.wait(("K", n + 1))
            for qa in range(2):
                sr = Sreg(p ^ 1, ka, qa)
                c = v(NEGM + 4 * qa, 4) if j == 0 else v(sr, 4)
                A(f"{MF} {v(sr,4)}, {v(ring(n),4)}, {v(Q(qa,j),4)}, {c}")
                if qa == 1:
                    m = n + DIST
                    if m < 32:
                        sc.issue(("K", m), kread(m, p ^ 1))
                    else:
                        if m == 32 and p == 0:
                            A(f"v_xor_b32 {v(VA)}, 0x10000, {v(VA)}")
                        sc.issue(("V", m - 32), vread(m - 32, p))
                for x in fill.get(2 * n + qa, []):
                    A(x)
    else:
        A("s_waitcnt lgkmcnt(0)")
        sc.q = []
        if p == 0:
            A(f"v_xor_b32 {v(VA)}, 0x10000, {v(VA)}")
        for m in range(DIST):
            sc.issue(("V", m), vread(m, p))
        for x in softmax_ops(p) + check_ops():
            A(x)
    A(f"s_cbranch_vccnz RARE{p}")
    A(f"RET{tag}:")
    fill = [f"v_add_f32 {v(LS0)}, {v(LS0)}, {v(BS0)}", f"v_add_f32 {v(LS1)}, {v(LS1)}, {v(BS1)}"]
    if not tail:
        A("s_waitcnt vmcnt(0)")
        A("s_barrier")
        fill = dma_ops() + fill
    fill = spread(fill, 64, 1, 40)
    for dt in range(32):
        if dt % 2 == 0:
            sc.wait(("V", dt + 1))
        for qa in range(2):
            A(f"{MF} {a_(O(dt,qa),4)}, {v(ring(dt),4)}, {v(PP+4*qa,4)}, {a_(O(dt,qa),4)}")
            if qa == 1:
                m = dt + DIST
                if m < 32:
                    sc.issue(("V", m), vread(m, p))
                elif not tail:
                    if m == 32 and p == 0:
                        A(f"v_xor_b32 {v(KA0)}, 0x10000, {v(KA0)}")
                        A(f"v_xor_b32 {v(KA1)}, 0x10000, {v(KA1)}")
                    sc.issue(("K", m - 32), kread(m - 32, p))
            for x in fill.get(2 * dt + qa, []):
                A(x)

def rare(A, p):
    A(f"RARE{p}:")
    A("s_nop 15")
    D0, AL = XT, XT + 2
    for qa in range(2):
        rowmax(A, p, qa, D0 + qa, XT + 4)
        A(f"v_max_f32 {v(D0+qa)}, 0, {v(D0+qa)}")
        A(f"v_sub_f32 {v(AL+qa)}, 0, {v(D0+qa)}")
        A(f"v_exp_f32 {v(AL+qa)}, {v(AL+qa)}")
        for pp in range(2):
            for ka in range(2):
                for r in range(4):
                    x = Sreg(pp, ka, qa) + r
                    A(f"v_sub_f32 {v(x)}, {v(x)}, {v(D0+qa)}")
        for r in range(4):
            A(f"v_sub_f32 {v(NEGM+4*qa+r)}, {v(NEGM+4*qa+r)}, {v(D0+qa)}")
        A(f"v_mul_f32 {v(LS0+qa)}, {v(LS0+qa)}, {v(AL+qa)}")
    for dt in range(32):
        for qa in range(2):
            t = XT + 8 + 4 * qa
            for r in range(4):
                A(f"v_accvgpr_read_b32 {v(t+r)}, {a_(O(dt,qa)+r)}")
            for r in range(4):
                A(f"v_mul_f32 {v(t+r)}, {v(t+r)}, {v(AL+qa)}")
            for r in range(4):
                A(f"v_accvgpr_write_b32 {a_(O(dt,qa)+r)}, {v(t+r)}")
    for x in softmax_ops(p):
        A(x)
    A("s_nop 3")
    A("s_cmp_eq_u32 s44, 1")
    A(f"s_cbranch_scc1 RETT{p}")
    A(f"s_branch RETL{p}")

def gen_k2():
    A = Asm()
    name = "k2_attn_kernel"
    A(f".globl {name}\n.p2align 8\n.type {name},@function\n{name}:")
    A("s_cmp_ge_u32 s2, 256")
    A("s_cbranch_scc1 K2_END")
    A("s_load_dwordx2 s[16:17], s[0:1], 80")
    A("v_lshrrev_b32 v1, 6, v0")
    A("v_and_b32 v0, 63, v0")
    A("v_readfirstlane_b32 s3, v1")
    A(f"v_lshlrev_b32 {v(L16)}, 4, v0")
    A("s_and_b32 s28, s2, 7")
    A("s_lshr_b32 s29, s2, 3")
    A("s_and_b32 s30, s29, 3")
    A("s_lshr_b32 s29, s29, 2")
    A("s_lshl_b32 s31, s28, 3")
    A("s_add_u32 s31, s31, s29")
    A("s_lshl_b32 s31, s31, 2")
    A("s_add_u32 s31, s31, s3")
    A("s_lshr_b32 s32, s28, 2")
    A("s_mul_i32 s33, s30, 31")
    A("s_cmp_lg_u32 s30, 0")
    A("s_addc_u32 s33, s33, 0")
    A("s_cmp_eq_u32 s30, 0")
    A("s_addc_u32 s44, 31, 0")
    A("s_lshl_b32 s34, s32, 7")
    A("s_add_u32 s33, s33, s34")
    A("s_lshl_b32 s46, s33, 15")
    if L.XA:
        A(f"s_add_u32 s46, s46, {L.XA}")
    A("s_lshl_b32 s47, s3, 12")
    A(f"s_mov_b32 s45, {hex(f2u(THRESH))}")
    A("s_and_b32 s35, s3, 1")
    A("s_lshl_b32 s35, s35, 7")
    A(f"v_xor_b32 {v(DV0)}, s35, {v(L16)}")
    A(f"v_add_u32 {v(DV0)}, s47, {v(DV0)}")
    A(f"v_add_u32 {v(DV1)}, 16384, {v(DV0)}")
    A("s_lshl_b32 s36, s31, 15")
    A(f"s_add_u32 s36, s36, {L.QP}")
    A("s_waitcnt lgkmcnt(0)")
    srd(A, 20, 16, L.WS_BYTES)
    for x in dma_ops():
        A(x)
    A("s_add_u32 s37, s36, 16384")
    for j in range(16):
        for qa in range(2):
            A(f"buffer_load_dwordx4 {v(Q(qa,j),4)}, {v(L16)}, s[20:23], s{36+qa} offen offset:{(j&3)*1024}")
        if j % 4 == 3:
            A("s_add_u32 s36, s36, 4096\ns_add_u32 s37, s37, 4096")
    for _ in range(2):
        for x in dma_ops():
            A(x)
    A(f"v_mov_b32 {v(KA0)}, {v(L16)}")
    A(f"v_xor_b32 {v(KA1)}, 128, {v(L16)}")
    A(f"v_lshrrev_b32 {v(T0)}, 2, v0")
    A(f"v_bfe_u32 {v(T0+1)}, v0, 1, 1")
    A(f"v_lshlrev_b32 {v(T0+2)}, 3, {v(T0+1)}")
    A(f"v_xor_b32 {v(T0)}, {v(T0)}, {v(T0+2)}")
    A(f"v_lshlrev_b32 {v(T0)}, 4, {v(T0)}")
    A(f"v_lshl_add_u32 {v(T0)}, {v(T0+1)}, 12, {v(T0)}")
    A(f"v_and_b32 {v(T0+1)}, 1, v0")
    A(f"v_lshl_add_u32 {v(VA)}, {v(T0+1)}, 3, {v(T0)}")
    A(f"v_xor_b32 {v(VA)}, 0x10000, {v(VA)}")
    A(f"v_mov_b32 {v(LS0)}, 0\nv_mov_b32 {v(LS1)}, 0")
    for i in range(256):
        A(f"v_accvgpr_write_b32 a{i}, 0")
    A("s_waitcnt vmcnt(48)")
    A("s_barrier")
    sc = Sched(A)
    for m in range(DIST):
        sc.issue(("K", m), kread(m, 0))
    for n in range(32):
        j, ka = n >> 1, n & 1
        if ka == 0:
            A(f"s_waitcnt vmcnt({16 + 2*(15-j)})")
            sc.wait(("K", n + 1))
        for qa in range(2):
            sr = Sreg(0, ka, qa)
            c = "0" if j == 0 else v(sr, 4)
            A(f"{MF} {v(sr,4)}, {v(ring(n),4)}, {v(Q(qa,j),4)}, {c}")
        if n + DIST < 32:
            sc.issue(("K", n + DIST), kread(n + DIST, 0))
    A("s_waitcnt vmcnt(8)")
    A("s_barrier")
    for m in range(DIST):
        sc.issue(("K", m), kread(m, 1))
    for qa in range(2):
        rowmax(A, 0, qa, T0 + qa, T0 + 2)
        for ka in range(2):
            for r in range(4):
                x = Sreg(0, ka, qa) + r
                A(f"v_sub_f32 {v(x)}, {v(x)}, {v(T0+qa)}")
        for r in range(4):
            A(f"v_sub_f32 {v(NEGM+4*qa+r)}, 0, {v(T0+qa)}")
    q0 = list(sc.q)
    A(".p2align 6")
    A("LOOP:")
    half(A, sc, 0, False, "L0")
    assert sc.q == q0
    A("s_sub_u32 s44, s44, 1")
    A("s_cmp_eq_u32 s44, 1")
    A("s_cbranch_scc1 TAIL1")
    half(A, sc, 1, False, "L1")
    assert sc.q == q0
    A("s_sub_u32 s44, s44, 1")
    A("s_cmp_lg_u32 s44, 1")
    A("s_cbranch_scc1 LOOP")
    half(A, sc, 0, True, "T0")
    A("s_branch EPI")
    A("TAIL1:")
    half(A, sc, 1, True, "T1")
    A("EPI:")
    for qa in range(2):
        x = LS0 + qa
        for lv in (16, 32):
            A(f"v_mov_b32 {v(T0)}, {v(x)}")
            A(f"v_permlane{lv}_swap_b32 {v(x)}, {v(T0)}")
            A(f"v_add_f32 {v(x)}, {v(x)}, {v(T0)}")
    A(f"v_and_b32 {v(T0)}, 16, v0")
    A(f"v_cmp_eq_u32 vcc, 0, {v(T0)}")
    A(f"v_cndmask_b32 {v(T0+1)}, {v(NEGM+4)}, {v(NEGM)}, vcc")
    A(f"v_cndmask_b32 {v(T0+2)}, {v(LS1)}, {v(LS0)}, vcc")
    A(f"v_sub_f32 {v(T0+1)}, 0, {v(T0+1)}")
    A(f"v_cmp_gt_u32 vcc, 32, v0")
    A(f"v_cndmask_b32 {v(T0+1)}, {v(T0+2)}, {v(T0+1)}, vcc")
    A(f"v_lshlrev_b32 {v(T0+3)}, 2, v0")
    A("s_lshl_b32 s36, s30, 8\ns_add_u32 s36, s36, s31\ns_lshl_b32 s36, s36, 8")
    A(f"s_add_u32 s36, s36, {L.PML}")
    A(f"buffer_store_dword {v(T0+1)}, {v(T0+3)}, s[20:23], s36 offen")
    A("s_lshl_b32 s36, s30, 23\ns_lshl_b32 s37, s31, 15\ns_add_u32 s36, s36, s37")
    A(f"s_add_u32 s36, s36, {L.PO}")
    A("s_add_u32 s37, s36, 16384")
    k = 0
    for f in range(16):
        for qa in range(2):
            t = QQ + (k % 8) * 12; k += 1
            for u in range(2):
                for r in range(4):
                    A(f"v_accvgpr_read_b32 {v(t+4+4*u+r)}, {a_(O(2*f+u,qa)+r)}")
            for i in range(4):
                A(f"v_cvt_pk_bf16_f32 {v(t+i)}, {v(t+4+2*i)}, {v(t+5+2*i)}")
            A(f"buffer_store_dwordx4 {v(t,4)}, {v(L16)}, s[20:23], s{36+qa} offen offset:{(f&3)*1024}")
        if f % 4 == 3:
            A("s_add_u32 s36, s36, 4096\ns_add_u32 s37, s37, 4096")
    A("K2_END:")
    A("s_endpgm")
    rare(A, 0)
    rare(A, 1)
    assert A.check_branches() == 0
    return name, A.text() + "\n" + kdesc(name, 256, 256, 64), f"; @launch kernel={name} grid=(256,1,1) block=(256,1,1) lds=131072"
```

```python
from asmlib import *
import layout as L
from k0 import srd
import math

def gelu_consts():
    c0 = -2.0 * math.sqrt(2.0 / math.pi) * math.log2(math.e)
    return c0, c0 * 0.044715

class Gemm:
    def __init__(self, name, NB, NT, KS, NW, wb, wn, kps, NS):
        self.__dict__.update(locals())
        self.A = Asm()
        self.P = (NB + NT) * kps
        assert self.P % NW == 0
        self.ppw = self.P // NW
        self.slot = self.P * 1024
        self.lds = self.slot * NS
        assert (NB // wb) * (NT // wn) == NW

    def prologue(self, nwg):
        A = self.A
        name = self.name
        A(f".globl {name}\n.p2align 8\n.type {name},@function\n{name}:")
        A(f"s_cmp_ge_u32 s2, {nwg}")
        A(f"s_cbranch_scc1 {name}_END")
        A("s_load_dwordx2 s[16:17], s[0:1], 80")
        A("s_load_dwordx2 s[4:5], s[0:1], 0")
        A("s_load_dwordx2 s[6:7], s[0:1], 64")
        A("v_lshrrev_b32 v1, 6, v0")
        A("v_and_b32 v0, 63, v0")
        A("v_readfirstlane_b32 s3, v1")
        A("v_lshlrev_b32 v1, 4, v0")
        A("v_mov_b32 v2, v1")
        A("s_and_b32 s28, s2, 7")
        A("s_lshr_b32 s29, s2, 3")
        A("s_and_b32 s30, s29, 3")
        A("s_lshr_b32 s29, s29, 2")
        A("s_lshl_b32 s28, s28, 3")
        A("s_add_u32 s28, s28, s29")
        A("s_waitcnt lgkmcnt(0)")
        srd(A, 20, 16, L.WS_BYTES)

    def main(self, piece_base, acc0, frag0):
        A = self.A
        NB, NT, KS, NW, wb, wn, kps, NS, ppw = self.NB, self.NT, self.KS, self.NW, self.wb, self.wn, self.kps, self.NS, self.ppw
        nst = KS // kps
        nfr = (wb + wn) * kps
        nwin = (self.lds + 65535) // 65536
        RA, RW = 3, 3 + nwin
        ngr = NB // wb
        A(f"s_and_b32 s32, s3, {ngr-1}")
        A(f"s_lshr_b32 s33, s3, {int(math.log2(ngr))}")
        A(f"s_mul_i32 s34, s32, {wb*kps*1024}")
        A(f"s_mul_i32 s35, s33, {wn*kps*1024}")
        A(f"s_add_u32 s35, s35, {NB*kps*1024}")
        for w in range(nwin):
            A(f"v_add_u32 {v(RA+w)}, s34, v1")
            A(f"v_add_u32 {v(RW+w)}, s35, v1")
            if w + 1 < nwin:
                A("s_add_u32 s34, s34, 65536\ns_add_u32 s35, s35, 65536")
        A(f"s_mul_i32 s36, s3, {ppw*1024}")
        def dma(stage):
            sl = stage % NS
            out = []
            for i in range(ppw):
                out.append(f"s_add_u32 m0, s36, {sl*self.slot + i*1024}\nbuffer_load_dwordx4 v2, s[20:23], s{40+i} offen lds")
            out.append(f"v_add_u32 v2, {kps*1024}, v2")
            return out
        def reads(stage):
            sl = stage % NS
            st = frag0 + (stage & 1) * nfr * 4
            out = []
            for k in range(kps):
                for i in range(max(wb, wn)):
                    for (cnt, R, o) in ((wb, RA, 0), (wn, RW, wb)):
                        if i < cnt:
                            off = sl * self.slot + (i * kps + k) * 1024
                            w = off // 65536
                            r = st + ((k * (wb + wn)) + o + i) * 4
                            out.append(f"ds_read_b128 {v(r,4)}, {v(R+w)} offset:{off - w*65536}")
            return out
        def mfmas(stage):
            st = frag0 + (stage & 1) * nfr * 4
            out = []
            for k in range(kps):
                for n in range(wn):
                    for b in range(wb):
                        acc = acc0 + (b * wn + n) * 4
                        ra = st + (k * (wb + wn) + wb + n) * 4
                        rb = st + (k * (wb + wn) + b) * 4
                        c = "0" if (stage == 0 and k == 0) else v(acc, 4)
                        out.append(f"v_mfma_f32_16x16x32_bf16 {v(acc,4)}, {v(ra,4)}, {v(rb,4)}, {c}")
            return out
        for st in range(min(NS, nst)):
            for x in dma(st):
                A(x)
        self.extra_vm = getattr(self, "extra_vm", 0)
        if hasattr(self, "after_dma"):
            self.after_dma()
        ev = self.extra_vm
        def outstanding_after(stage_needed, issued_upto):
            return (issued_upto - stage_needed) * ppw
        issued = min(NS, nst) - 1
        A(f"s_waitcnt vmcnt({min(63, outstanding_after(0, issued) + ev)})")
        A("s_barrier")
        for x in reads(0):
            A(x)
        for st in range(nst):
            if st + 1 < nst:
                n = outstanding_after(st + 1, issued)
                if st + 1 <= min(NS, nst) - 1:
                    n += ev
                A(f"s_waitcnt vmcnt({min(63, n)}) lgkmcnt(0)")
                A("s_barrier")
            else:
                A("s_waitcnt lgkmcnt(0)")
            fill = []
            if st + NS < nst:
                fill += dma(st + NS)
                issued = st + NS
            if st + 1 < nst:
                fill = reads(st + 1) + fill
            mm = mfmas(st)
            per = len(fill) / len(mm)
            accu = 0.0
            fi = 0
            for x in mm:
                A(x)
                accu += per * 1.5
                while fi < len(fill) and fi < accu:
                    A(fill[fi]); fi += 1
            while fi < len(fill):
                A(fill[fi]); fi += 1

    def finish(self, nwg, nvgpr):
        A = self.A
        A(f"{self.name}_END:")
        A("s_endpgm")
        assert A.check_branches() == 0
        return self.name, A.text() + "\n" + kdesc(self.name, nvgpr, 0, 64), \
            f"; @launch kernel={self.name} grid=({nwg},1,1) block=({64*self.NW},1,1) lds={self.lds}"


def emit_gelu(A, regs, tmp, sc0, sc1):
    n = len(regs)
    for i in range(n):
        A(f"v_mul_f32 {v(tmp[i])}, {v(regs[i])}, {v(regs[i])}")
    for i in range(n):
        A(f"v_fma_f32 {v(tmp[i])}, {v(tmp[i])}, s{sc1}, {v(sc0)}")
    for i in range(n):
        A(f"v_mul_f32 {v(tmp[i])}, {v(tmp[i])}, {v(regs[i])}")
    for i in range(n):
        A(f"v_exp_f32 {v(tmp[i])}, {v(tmp[i])}")
    for i in range(n):
        A(f"v_add_f32 {v(tmp[i])}, 1.0, {v(tmp[i])}")
    for i in range(n):
        A(f"v_rcp_f32 {v(tmp[i])}, {v(tmp[i])}")
    for i in range(n):
        A(f"v_mul_f32 {v(regs[i])}, {v(regs[i])}, {v(tmp[i])}")


def gen_k1():
    g = Gemm("k1_gemm_kernel", NB=8, NT=24, KS=16, NW=8, wb=4, wn=6, kps=1, NS=4)
    A = g.A
    g.prologue(256)
    for i in range(4):
        d = 40 + i
        A(f"s_lshl_b32 s37, s3, 2\ns_add_u32 s37, s37, {i}")
        A(f"s_lshl_b32 s38, s28, 3\ns_add_u32 s38, s38, s37\ns_lshl_b32 s38, s38, 14")
        if L.XA:
            A(f"s_add_u32 s38, s38, {L.XA}")
        A("s_sub_u32 s39, s37, 8")
        A("s_mul_i32 s50, s39, 43\ns_lshr_b32 s50, s50, 8")
        A("s_mul_i32 s51, s50, 6\ns_sub_u32 s51, s39, s51")
        A("s_lshr_b32 s52, s51, 1\ns_lshl_b32 s52, s52, 5")
        A("s_and_b32 s51, s51, 1\ns_add_u32 s52, s52, s51")
        A("s_lshl_b32 s51, s30, 2\ns_add_u32 s51, s51, s50\ns_lshl_b32 s51, s51, 1\ns_add_u32 s52, s52, s51")
        A(f"s_lshl_b32 s52, s52, 14\ns_add_u32 s52, s52, {L.W1}")
        A("s_cmp_lt_u32 s37, 8")
        A(f"s_cselect_b32 s{d}, s38, s52")
    acc0, frag0 = 8, 104
    g.main(None, acc0, frag0)
    A("s_lshl_b32 s37, s28, 3\ns_lshl_b32 s38, s32, 2\ns_add_u32 s37, s37, s38\ns_lshl_b32 s37, s37, 14")
    A("s_lshl_b32 s38, s30, 2\ns_add_u32 s38, s38, s33")
    A("s_lshl_b32 s39, s38, 10\ns_add_u32 s37, s37, s39")
    A(f"s_add_u32 s40, s37, {L.QP}\ns_add_u32 s41, s37, {L.U}\ns_add_u32 s42, s37, {L.G}")
    c0, c1 = gelu_consts()
    tmp = list(range(frag0, frag0 + 16))
    pk = frag0 + 16
    st = frag0 + 64
    A(f"v_mov_b32 v3, {hex(f2u(c0))}\ns_mov_b32 s43, {hex(f2u(c1))}")
    for b in range(4):
        q = acc0 + (b * 6) * 4
        p = pk + 12 * b
        for i in range(4):
            A(f"v_cvt_pk_bf16_f32 {v(p+i)}, {v(q+2*i)}, {v(q+2*i+1)}")
        A(f"buffer_store_dwordx4 {v(p,4)}, v1, s[20:23], s40 offen")
        A("s_add_u32 s40, s40, 16384")
    for b in range(4):
        u = acc0 + (b * 6 + 2) * 4
        gq = u + 8
        p = pk + 12 * b
        emit_gelu(A, list(range(u, u + 16)), tmp, 3, 43)
        for i in range(4):
            A(f"v_cvt_pk_bf16_f32 {v(p+4+i)}, {v(u+2*i)}, {v(u+2*i+1)}")
        A(f"buffer_store_dwordx4 {v(p+4,4)}, v1, s[20:23], s41 offen")
        for i in range(4):
            A(f"v_cvt_pk_bf16_f32 {v(p+8+i)}, {v(gq+2*i)}, {v(gq+2*i+1)}")
        A(f"buffer_store_dwordx4 {v(p+8,4)}, v1, s[20:23], s42 offen")
        A("s_add_u32 s41, s41, 16384\ns_add_u32 s42, s42, 16384")
        A(f"v_add_f32 {v(st+b)}, {v(gq)}, {v(gq+1)}")
        A(f"v_mul_f32 {v(st+4+b)}, {v(gq)}, {v(gq)}")
        for i in range(1, 8):
            if i >= 2:
                A(f"v_add_f32 {v(st+b)}, {v(st+b)}, {v(gq+i)}")
            A(f"v_fmac_f32 {v(st+4+b)}, {v(gq+i)}, {v(gq+i)}")
    for o in (0, 4):
        A(f"v_permlane32_swap_b32 {v(st+o)}, {v(st+o+2)}")
        A(f"v_permlane32_swap_b32 {v(st+o+1)}, {v(st+o+3)}")
        A(f"v_add_f32 {v(st+o)}, {v(st+o)}, {v(st+o+2)}")
        A(f"v_add_f32 {v(st+o+1)}, {v(st+o+1)}, {v(st+o+3)}")
        A(f"v_permlane16_swap_b32 {v(st+o)}, {v(st+o+1)}")
        A(f"v_add_f32 {v(st+o)}, {v(st+o)}, {v(st+o+1)}")
    A(f"v_mov_b32 {v(st+1)}, {v(st+4)}")
    A("s_lshl_b32 s37, s28, 1\ns_add_u32 s37, s37, s32\ns_lshl_b32 s37, s37, 4\ns_add_u32 s37, s37, s38\ns_lshl_b32 s37, s37, 9")
    A(f"s_add_u32 s37, s37, {L.GST}")
    A("v_lshlrev_b32 v4, 3, v0")
    A(f"buffer_store_dwordx2 {v(st,2)}, v4, s[20:23], s37 offen")
    return g.finish(256, 184)
```

```python
from asmlib import *
import layout as L
import math

def srd(A, d, lo, nbytes):
    A(f"s_mov_b32 s{d}, s{lo}")
    A(f"s_and_b32 s{d+1}, s{lo+1}, 0xffff")
    A(f"s_mov_b32 s{d+2}, {nbytes}")
    A(f"s_mov_b32 s{d+3}, 0x20000")

def xlane_sum(A, x, t, levels):
    for lv in levels:
        if lv == 8:
            A(f"v_add_f32_dpp {v(x)}, {v(x)}, {v(x)} row_ror:8 row_mask:0xf bank_mask:0xf")
        else:
            A(f"v_mov_b32 {v(t)}, {v(x)}")
            A(f"v_permlane{lv}_swap_b32 {v(x)}, {v(t)}")
            A(f"v_add_f32 {v(x)}, {v(x)}, {v(t)}")

def chan_lane(A, dst, m, tmp):
    A(f"v_lshrrev_b32 {v(tmp)}, 2, {v(m)}")
    A(f"v_and_b32 {v(dst)}, 3, {v(m)}")
    A(f"v_lshl_add_u32 {v(dst)}, {v(tmp)}, 3, {v(dst)}")

NWG_K0 = 256 + 128 + 128 + 160

def gen_k0():
    A = Asm()
    name = "k0_prep_kernel"
    A(f".globl {name}\n.p2align 8\n.type {name},@function\n{name}:")
    A(f"s_cmp_ge_u32 s2, {NWG_K0}")
    A("s_cbranch_scc1 K0_END")
    A("s_load_dwordx4 s[4:7], s[0:1], 0")
    A("s_load_dwordx4 s[8:11], s[0:1], 16")
    A("s_load_dwordx2 s[12:13], s[0:1], 40")
    A("s_load_dwordx2 s[14:15], s[0:1], 56")
    A("s_load_dwordx2 s[16:17], s[0:1], 80")
    A("v_lshrrev_b32 v1, 6, v0")
    A("v_and_b32 v0, 63, v0")
    A("v_readfirstlane_b32 s3, v1")
    A("v_and_b32 v2, 15, v0")
    A("v_lshrrev_b32 v3, 4, v0")
    A("s_waitcnt lgkmcnt(0)")
    srd(A, 20, 16, L.WS_BYTES)
    A("s_cmp_ge_u32 s2, 512")
    A("s_cbranch_scc1 K0_TR")
    A("s_cmp_ge_u32 s2, 256")
    A("s_cbranch_scc1 K0_WW")
    srd(A, 24, 4, 2 * L.T * 1024)
    A("s_and_b32 s28, s2, 7")
    A("s_lshr_b32 s29, s2, 3")
    A("s_lshr_b32 s30, s28, 2")
    A("s_and_b32 s28, s28, 3")
    A("s_lshl_b32 s28, s28, 10")
    A("s_lshl_b32 s29, s29, 5")
    A("s_add_u32 s28, s28, s29")
    A("s_lshl_b32 s29, s3, 3")
    A("s_add_u32 s28, s28, s29")
    A(f"s_cmp_lt_u32 s28, {L.T}")
    A("s_cselect_b32 s26, s26, 0")
    A(f"s_mul_i32 s29, s30, {L.T}")
    A("s_add_u32 s29, s29, s28")
    A("s_lshl_b32 s29, s29, 10")
    A("v_and_b32 v4, 7, v0")
    A("v_lshrrev_b32 v5, 3, v0")
    A("v_lshlrev_b32 v6, 10, v4")
    A("v_lshl_add_u32 v6, v5, 4, v6")
    P = 8
    Uq = 40
    for jj in range(8):
        A(f"buffer_load_dwordx4 {v(P+4*jj,4)}, v6, s[24:27], s29 offen offset:{jj*128}")
    A(f"s_lshl_b32 s31, s30, 12")
    A("s_add_u32 s31, s31, s28")
    A("s_lshr_b32 s32, s31, 4")
    A("s_lshl_b32 s32, s32, 14")
    A("s_and_b32 s31, s31, 15")
    A("s_lshl_b32 s31, s31, 4")
    A("s_add_u32 s32, s32, s31")
    if L.XA:
        A(f"s_add_u32 s32, s32, {L.XA}")
    A("v_lshlrev_b32 v7, 4, v4")
    A("v_lshl_add_u32 v7, v5, 8, v7")
    A("s_mov_b32 s33, 0xffff0000")
    for jj in range(8):
        A(f"s_waitcnt vmcnt({7-jj})")
        for i in range(4):
            r = P + 4 * jj + i
            u = Uq + 2 * (4 * jj + i)
            A(f"v_lshlrev_b32 {v(u)}, 16, {v(r)}")
            A(f"v_and_b32 {v(u+1)}, s33, {v(r)}")
    acc = 104
    A(f"v_pk_add_f32 {v(acc,2)}, {v(Uq,2)}, {v(Uq+2,2)}")
    A(f"v_pk_add_f32 {v(acc+2,2)}, {v(Uq+4,2)}, {v(Uq+6,2)}")
    for i in range(4, 32):
        a = acc + 2 * (i & 1)
        A(f"v_pk_add_f32 {v(a,2)}, {v(a,2)}, {v(Uq+2*i,2)}")
    A(f"v_pk_add_f32 {v(acc,2)}, {v(acc,2)}, {v(acc+2,2)}")
    A(f"v_add_f32 {v(acc)}, {v(acc)}, {v(acc+1)}")
    xlane_sum(A, acc, acc + 1, (8, 16, 32))
    A(f"v_mul_f32 {v(acc)}, {hex(f2u(-1.0/512))}, {v(acc)}")
    for i in range(32):
        A(f"v_pk_add_f32 {v(Uq+2*i,2)}, {v(Uq+2*i,2)}, {v(acc,2)} op_sel_hi:[1,0]")
    q = 108
    A(f"v_pk_mul_f32 {v(q,2)}, {v(Uq,2)}, {v(Uq,2)}")
    A(f"v_pk_mul_f32 {v(q+2,2)}, {v(Uq+2,2)}, {v(Uq+2,2)}")
    for i in range(2, 32):
        a = q + 2 * (i & 1)
        A(f"v_pk_fma_f32 {v(a,2)}, {v(Uq+2*i,2)}, {v(Uq+2*i,2)}, {v(a,2)}")
    A(f"v_pk_add_f32 {v(q,2)}, {v(q,2)}, {v(q+2,2)}")
    A(f"v_add_f32 {v(q)}, {v(q)}, {v(q+1)}")
    xlane_sum(A, q, q + 1, (8, 16, 32))
    A(f"v_mov_b32 {v(q+1)}, {hex(f2u(1e-5))}")
    A(f"v_fmac_f32 {v(q+1)}, {hex(f2u(1.0/512))}, {v(q)}")
    A(f"v_rsq_f32 {v(q)}, {v(q+1)}")
    for jj in range(8):
        for i in range(4):
            u = Uq + 2 * (4 * jj + i)
            A(f"v_pk_mul_f32 {v(u,2)}, {v(u,2)}, {v(q,2)} op_sel_hi:[1,0]")
        for i in range(4):
            u = Uq + 2 * (4 * jj + i)
            A(f"v_cvt_pk_bf16_f32 {v(P+4*jj+i)}, {v(u)}, {v(u+1)}")
        if jj % 2 == 0 and jj:
            A("s_add_u32 s32, s32, 4096")
        A(f"buffer_store_dwordx4 {v(P+4*jj,4)}, v7, s[20:23], s32 offen offset:{(jj&1)*2048}")
    A("s_endpgm")
    A("K0_WW:")
    srd(A, 24, 6, 512 * 3072)
    srd(A, 28, 8, 512 * 1024)
    A("s_and_b32 s32, s2, 127")
    A("s_lshl_b32 s32, s32, 2")
    A("s_add_u32 s32, s32, s3")
    A("s_lshr_b32 s33, s32, 4")
    A("s_and_b32 s34, s32, 15")
    chan_lane(A, 4, 2, 5)
    A("s_lshr_b32 s35, s33, 1")
    A("s_lshl_b32 s35, s35, 5")
    A("s_and_b32 s36, s33, 1")
    A("s_lshl_b32 s36, s36, 2")
    A("s_add_u32 s35, s35, s36")
    A("s_movk_i32 s37, 3072")
    A("v_lshlrev_b32 v9, 4, v0")
    for i in range(8):
        A(f"v_mov_b32 {v(10+i)}, 0")
    A("s_cmp_ge_u32 s2, 384")
    A("s_cbranch_scc1 K0_VO")
    A("v_mul_lo_u32 v6, v4, s37")
    A("v_lshl_add_u32 v6, v3, 4, v6")
    A("s_mul_i32 s38, s35, 3072")
    A("s_add_u32 s38, s38, 1024")
    A(f"s_mul_i32 s39, s34, {32*3072}")
    A(f"s_add_u32 s40, s39, {4*3072}")
    R0 = 20
    for half in range(2):
        for i in range(8):
            sidx = half * 8 + i
            A(f"buffer_load_dwordx4 {v(R0+12*i,4)}, v6, s[24:27], s38 offen offset:{sidx*64}")
            A(f"buffer_load_dwordx4 {v(R0+12*i+4,4)}, v6, s[24:27], s39 offen offset:{sidx*64}")
            A(f"buffer_load_dwordx4 {v(R0+12*i+8,4)}, v6, s[24:27], s40 offen offset:{sidx*64}")
        for i in range(8):
            A(f"s_waitcnt vmcnt({3*(7-i)})")
            A(f"v_mfma_f32_16x16x32_bf16 v[10:13], {v(R0+12*i+4,4)}, {v(R0+12*i,4)}, v[10:13]")
            A(f"v_mfma_f32_16x16x32_bf16 v[14:17], {v(R0+12*i+8,4)}, {v(R0+12*i,4)}, v[14:17]")
    c = 512 ** -0.5 * math.log2(math.e)
    A(f"s_mov_b32 s41, {hex(f2u(c))}")
    for i in range(8):
        A(f"v_mul_f32 {v(10+i)}, s41, {v(10+i)}")
    A(f"s_lshl_b32 s42, s32, 10")
    A(f"s_add_u32 s42, s42, {L.W1}")
    A("s_branch K0_WST")
    A("K0_VO:")
    A("v_lshrrev_b32 v5, 3, v2")
    A("v_and_b32 v6, 7, v2")
    A("v_lshl_add_u32 v6, v5, 7, v6")
    A("v_mul_lo_u32 v6, v6, s37")
    A("v_lshl_add_u32 v6, v3, 4, v6")
    A("s_lshr_b32 s38, s34, 3")
    A("s_lshl_b32 s38, s38, 8")
    A("s_and_b32 s39, s34, 7")
    A("s_lshl_b32 s39, s39, 4")
    A("s_add_u32 s38, s38, s39")
    A("s_mul_i32 s39, s38, 3072")
    A("s_add_u32 s39, s39, 2048")
    A(f"s_add_u32 s40, s39, {8*3072}")
    A("v_lshlrev_b32 v7, 1, v4")
    A("v_lshl_add_u32 v7, v3, 13, v7")
    A("v_add_u32 v8, 4096, v7")
    A("s_lshl_b32 s38, s35, 1")
    for q4 in range(4):
        for i in range(4):
            sidx = q4 * 4 + i
            b = R0 + 16 * i
            A(f"buffer_load_dwordx4 {v(b,4)}, v6, s[24:27], s39 offen offset:{sidx*64}")
            A(f"buffer_load_dwordx4 {v(b+4,4)}, v6, s[24:27], s40 offen offset:{sidx*64}")
            for e in range(8):
                A(f"buffer_load_ushort {v(b+8+e)}, {v(7+(e>>2))}, s[28:31], s38 offen offset:{(e&3)*1024}")
            A("s_add_u32 s38, s38, 32768")
        for i in range(4):
            b = R0 + 16 * i
            A(f"s_waitcnt vmcnt({10*(3-i)})")
            for e in range(4):
                A(f"v_lshl_or_b32 {v(b+8+e)}, {v(b+8+2*e+1)}, 16, {v(b+8+2*e)}")
            A(f"v_mfma_f32_16x16x32_bf16 v[10:13], {v(b,4)}, {v(b+8,4)}, v[10:13]")
            A(f"v_mfma_f32_16x16x32_bf16 v[14:17], {v(b+4,4)}, {v(b+8,4)}, v[14:17]")
    A(f"s_lshl_b32 s42, s32, 10")
    A(f"s_add_u32 s42, s42, {L.W2}")
    A("s_nop 7")
    A("K0_WST:")
    for i in range(4):
        A(f"v_cvt_pk_bf16_f32 {v(20+i)}, {v(10+2*i)}, {v(11+2*i)}")
    A("buffer_store_dwordx4 v[20:23], v9, s[20:23], s42 offen")
    A("s_endpgm")
    A("K0_TR:")
    A("s_sub_u32 s32, s2, 512")
    A("s_lshl_b32 s32, s32, 2")
    A("s_add_u32 s32, s32, s3")
    A("s_mov_b32 s27, 0x20000")
    A("s_cmp_lt_u32 s32, 256")
    A("s_cbranch_scc0 K0_T2")
    A("s_mov_b32 s24, s10\ns_and_b32 s25, s11, 0xffff\ns_mov_b32 s26, 0x100000")
    A("s_lshr_b32 s33, s32, 2\ns_and_b32 s34, s32, 3\ns_mov_b32 s37, 11")
    A(f"s_lshl_b32 s42, s32, 12\ns_add_u32 s42, s42, {L.W1 + 32*16*1024}")
    A("s_branch K0_T9")
    A("K0_T2:")
    A("s_cmp_lt_u32 s32, 384")
    A("s_cbranch_scc0 K0_T3")
    A("s_sub_u32 s32, s32, 256")
    A("s_mov_b32 s24, s12\ns_and_b32 s25, s13, 0xffff\ns_mov_b32 s26, 0x80000")
    A("s_lshr_b32 s33, s32, 2\ns_and_b32 s34, s32, 3\ns_mov_b32 s37, 10")
    A(f"s_lshl_b32 s42, s32, 12\ns_add_u32 s42, s42, {L.W2 + 32*16*1024}")
    A("s_branch K0_T9")
    A("K0_T3:")
    A("s_sub_u32 s32, s32, 384")
    A("s_mov_b32 s24, s14\ns_and_b32 s25, s15, 0xffff\ns_mov_b32 s26, 0x100000")
    A("s_lshr_b32 s33, s32, 3\ns_and_b32 s34, s32, 7\ns_mov_b32 s37, 10")
    A(f"s_lshl_b32 s42, s32, 12\ns_add_u32 s42, s42, {L.W3}")
    A("K0_T9:")
    chan_lane(A, 4, 2, 5)
    A("s_lshr_b32 s35, s33, 1\ns_lshl_b32 s35, s35, 5\ns_and_b32 s36, s33, 1\ns_lshl_b32 s36, s36, 2\ns_add_u32 s35, s35, s36")
    A("s_lshl_b32 s35, s35, 1")
    A("s_lshl_b32 s36, s34, 7")
    A("s_lshl_b32 s36, s36, s37")
    A("s_add_u32 s38, s35, s36")
    A("s_lshl_b32 s39, 1, s37")
    A("v_lshlrev_b32 v5, 3, v3")
    A("v_lshlrev_b32 v5, s37, v5")
    A("v_lshl_add_u32 v5, v4, 1, v5")
    A("v_lshlrev_b32 v9, 4, v0")
    A("s_mul_i32 s40, s39, 24")
    for f in range(4):
        for e in range(8):
            A(f"buffer_load_ushort {v(20+8*f+e)}, v5, s[24:27], s38 offen")
            A("s_add_u32 s38, s38, s39")
        A("s_add_u32 s38, s38, s40")
    for f in range(4):
        b = 20 + 8 * f
        A(f"s_waitcnt vmcnt({8*(3-f) + f})")
        for e in range(4):
            A(f"v_lshl_or_b32 {v(b+e)}, {v(b+2*e+1)}, 16, {v(b+2*e)}")
        A(f"buffer_store_dwordx4 {v(b,4)}, v9, s[20:23], s42 offen offset:{f*1024}")
    A("K0_END:")
    A("s_endpgm")
    assert A.check_branches() == 0
    return name, A.text() + "\n" + kdesc(name, 116, 0, 48), f"; @launch kernel={name} grid=({NWG_K0},1,1) block=(256,1,1) lds=0"
```

```python
MB = 1 << 20
XA = 0
QP = 8 * MB
U = 16 * MB
G = 24 * MB
PO = 32 * MB
AT = 64 * MB
Z = 72 * MB
M = 80 * MB
MM = 96 * MB
W1 = 113 * MB
W2 = 115 * MB
W3 = 116 * MB
GST = 117 * MB
PML = 118 * MB
WS_BYTES = 268435456
T = 4000
TP = 4096
```

```python
from asmlib import *
import layout as L
from k0 import srd
from gemm import Gemm

FS = 1040
BS = 8 * FS
CONV_LDS = 6 * BS + 96 * 8

def conv_body(A, tag, C, src, dst, wptr_off, ln, gate, ident):
    CB = C * 32
    A(f"s_lshl_b32 s32, s28, 2\ns_sub_u32 s32, s32, 1\ns_mul_i32 s32, s32, {CB}")
    A(f"s_lshl_b32 s33, s30, 13\ns_add_u32 s32, s32, s33\ns_add_u32 s32, s32, {src}")
    A("s_mul_i32 s34, s3, 12")
    for i in range(12):
        A(f"s_add_u32 s35, s34, {i}\ns_lshr_b32 s36, s35, 3\ns_and_b32 s37, s35, 7")
        A(f"s_mul_i32 s38, s36, {CB}\ns_lshl_b32 s39, s37, 10\ns_add_u32 s38, s38, s39\ns_add_u32 s38, s38, s32")
        A(f"s_mul_i32 m0, s35, {FS}")
        A("buffer_load_dwordx4 v1, s[20:23], s38 offen lds")
    A("v_and_b32 v2, 3, v0")
    A("v_bfe_u32 v3, v0, 2, 3")
    A("v_lshrrev_b32 v4, 5, v0")
    A("s_and_b32 s40, s3, 1")
    A("s_lshr_b32 s41, s3, 1")
    A("s_lshl_b32 s42, s40, 1")
    A("v_add_u32 v4, s42, v4")
    A("v_lshlrev_b32 v5, 6, v3\nv_lshl_add_u32 v5, v4, 4, v5\nv_lshl_add_u32 v5, v2, 2, v5")
    A("s_lshl_b32 s43, s30, 9")
    W = 16
    ACC = 78
    XR = 142
    XU = 150
    ST = 158
    UR = 166
    for i in range(31):
        A(f"buffer_load_dword {v(W+2*i+1)}, v5, s[24:27], s43 offen")
        A(f"s_add_u32 s43, s43, {C*2}")
    nvm = 31
    if gate:
        A(f"s_lshl_b32 s44, s28, 2\ns_add_u32 s44, s44, s3\ns_mul_i32 s44, s44, {CB}\ns_add_u32 s44, s44, s33\ns_add_u32 s44, s44, {L.U}")
        A("s_add_u32 s45, s44, 4096")
        for i in range(8):
            A(f"buffer_load_dwordx4 {v(UR+4*i,4)}, v1, s[20:23], s{44+(i>>2)} offen offset:{(i&3)*1024}")
        nvm += 8
    A(f"v_mul_u32_u24 v6, {FS}, v3\nv_lshl_add_u32 v6, v4, 8, v6\nv_lshl_add_u32 v6, v2, 2, v6")
    A(f"s_mul_i32 s46, s41, {2*BS}")
    A("v_add_u32 v6, s46, v6")
    for b in range(1, 4):
        A(f"v_add_u32 {v(6+b)}, {b*BS}, v6")
    if ln:
        A("s_lshl_b32 s47, s3, 6\nv_add_u32 v10, s47, v0")
        A("s_lshl_b32 s47, s28, 6\ns_sub_u32 s47, s47, 16\nv_add_u32 v11, s47, v10")
        A("v_lshrrev_b32 v12, 6, v11\nv_and_b32 v12, 127, v12\nv_lshlrev_b32 v12, 13, v12")
        A("v_and_b32 v13, 63, v11\nv_lshl_add_u32 v12, v13, 3, v12")
        A(f"s_mov_b32 s47, {L.GST}\ns_add_u32 s48, s47, 4096")
        A("s_cmp_ge_u32 s3, 2")
        A(f"s_cbranch_scc1 {tag}_NOST")
        for i in range(16):
            A(f"buffer_load_dwordx2 {v(ACC+2*i,2)}, v12, s[20:23], s{47+(i>>3)} offen offset:{(i&7)*512}")
        A("s_waitcnt vmcnt(0)")
        for i in range(1, 16):
            A(f"v_pk_add_f32 {v(ACC,2)}, {v(ACC,2)}, {v(ACC+2*i,2)}")
        A(f"v_mul_f32 {v(ACC)}, {hex(f2u(1/512))}, {v(ACC)}")
        A(f"v_mul_f32 {v(ACC+1)}, {hex(f2u(1/512))}, {v(ACC+1)}")
        A(f"v_fma_f32 {v(ACC+1)}, -{v(ACC)}, {v(ACC)}, {v(ACC+1)}")
        A(f"v_max_f32 {v(ACC+1)}, 0, {v(ACC+1)}")
        A(f"v_add_f32 {v(ACC+1)}, {hex(f2u(1e-5))}, {v(ACC+1)}")
        A(f"v_rsq_f32 {v(ACC+2)}, {v(ACC+1)}")
        A(f"v_mul_f32 {v(ACC+3)}, {v(ACC)}, {v(ACC+2)}")
        A(f"v_sub_f32 {v(ACC+3)}, 0, {v(ACC+3)}")
        A("v_and_b32 v13, 4095, v11")
        A(f"s_movk_i32 s47, {L.T}\ns_movk_i32 s48, 8192")
        A("v_cmp_gt_u32 vcc, s47, v13")
        A("v_cmp_gt_u32 s[50:51], s48, v11")
        A("s_and_b64 vcc, vcc, s[50:51]")
        A("s_nop 1")
        A(f"v_cndmask_b32 {v(ACC+2)}, 0, {v(ACC+2)}, vcc")
        A(f"v_cndmask_b32 {v(ACC+3)}, 0, {v(ACC+3)}, vcc")
        A(f"v_lshlrev_b32 v13, 3, v10")
        A("v_cmp_gt_u32 vcc, 96, v10")
        A("s_and_saveexec_b64 s[50:51], vcc")
        A(f"ds_write_b64 v13, {v(ACC+2,2)} offset:{6*BS}")
        A("s_mov_b64 exec, s[50:51]")
        A(f"{tag}_NOST:")
        A("s_lshl_b32 s47, s41, 8")
        A("v_mov_b32 v14, s47")
    A("s_waitcnt vmcnt(0) lgkmcnt(0)")
    A("s_mov_b32 s49, 0xffff0000")
    for i in range(31):
        A(f"v_lshlrev_b32 {v(W+2*i)}, 16, {v(W+2*i+1)}")
        A(f"v_and_b32 {v(W+2*i+1)}, s49, {v(W+2*i+1)}")
    if ident:
        A(f"v_add_f32 {v(W+30)}, 1.0, {v(W+30)}\nv_add_f32 {v(W+31)}, 1.0, {v(W+31)}")
    A("s_barrier")
    def rd(k):
        b, r = (2 * k) >> 4, (2 * k) & 15
        A(f"ds_read2_b32 {v(XR+2*(k&3),2)}, {v(6+b)} offset0:{r*4} offset1:{r*4+4}")
        if ln:
            A(f"ds_read_b128 {v(ST+4*(k&1),4)}, v14 offset:{6*BS + k*16}")
    per = 2 if ln else 1
    ahead = 1 if ln else 3
    for k in range(ahead):
        rd(k)
    started = set()
    for k in range(32):
        if k + ahead < 32:
            rd(k + ahead)
            A(f"s_waitcnt lgkmcnt({ahead*per})")
        else:
            A(f"s_waitcnt lgkmcnt({(31-k)*per})")
        for h in range(2):
            rho = 2 * k + h
            if rho < 1 or rho > 62:
                continue
            xu = XU + 2 * ((2 * k + h) & 3)
            xr = XR + 2 * (k & 3) + h
            A(f"v_lshlrev_b32 {v(xu)}, 16, {v(xr)}")
            A(f"v_and_b32 {v(xu+1)}, s49, {v(xr)}")
            if ln:
                st = ST + 4 * (k & 1) + 2 * h
                A(f"v_pk_fma_f32 {v(xu,2)}, {v(xu,2)}, {v(st,2)}, {v(st,2)} op_sel:[0,0,1] op_sel_hi:[1,0,1]")
            for o in range(32):
                i = rho - 1 - o
                if 0 <= i <= 30:
                    if o in started:
                        A(f"v_pk_fma_f32 {v(ACC+2*o,2)}, {v(xu,2)}, {v(W+2*i,2)}, {v(ACC+2*o,2)}")
                    else:
                        A(f"v_pk_mul_f32 {v(ACC+2*o,2)}, {v(xu,2)}, {v(W+2*i,2)}")
                        started.add(o)
    A("s_barrier")
    for o in range(32):
        A(f"v_cvt_pk_bf16_f32 {v(ACC+o)}, {v(ACC+2*o)}, {v(ACC+2*o+1)}")
    for k in range(16):
        b, r = (2 * k) >> 4, (2 * k) & 15
        A(f"ds_write2_b32 {v(6+b)}, {v(ACC+2*k)}, {v(ACC+2*k+1)} offset0:{r*4} offset1:{r*4+4}")
    A("s_waitcnt lgkmcnt(0)")
    A("s_barrier")
    A(f"s_mul_i32 s46, s3, {BS}\nv_add_u32 v10, s46, v1")
    for i in range(8):
        A(f"ds_read_b128 {v(W+4*i,4)}, v10 offset:{i*FS}")
    A(f"s_lshl_b32 s44, s28, 2\ns_add_u32 s44, s44, s3\ns_mul_i32 s44, s44, {CB}\ns_add_u32 s44, s44, s33\ns_add_u32 s44, s44, {dst}")
    A("s_add_u32 s45, s44, 4096")
    for i in range(8):
        A(f"s_waitcnt lgkmcnt({7-i})")
        if gate:
            t = ACC + 16 * (i & 1)
            for e in range(4):
                A(f"v_lshlrev_b32 {v(t+2*e)}, 16, {v(W+4*i+e)}\nv_and_b32 {v(t+2*e+1)}, s49, {v(W+4*i+e)}")
                A(f"v_lshlrev_b32 {v(t+8+2*e)}, 16, {v(UR+4*i+e)}\nv_and_b32 {v(t+8+2*e+1)}, s49, {v(UR+4*i+e)}")
            for e in range(4):
                A(f"v_pk_mul_f32 {v(t+2*e,2)}, {v(t+2*e,2)}, {v(t+8+2*e,2)}")
            for e in range(4):
                A(f"v_cvt_pk_bf16_f32 {v(W+4*i+e)}, {v(t+2*e)}, {v(t+2*e+1)}")
        A(f"buffer_store_dwordx4 {v(W+4*i,4)}, v1, s[20:23], s{44+(i>>2)} offen offset:{(i&3)*1024}")
    A("s_endpgm")


def head(A, name, nwg, wofs=None, wbytes=0):
    A(f".globl {name}\n.p2align 8\n.type {name},@function\n{name}:")
    A(f"s_cmp_ge_u32 s2, {nwg}")
    A(f"s_cbranch_scc1 {name}_END")
    A("s_load_dwordx2 s[16:17], s[0:1], 80")
    A(f"s_load_dwordx2 s[18:19], s[0:1], {wofs}")
    A("v_lshrrev_b32 v1, 6, v0")
    A("v_and_b32 v0, 63, v0")
    A("v_readfirstlane_b32 s3, v1")
    A("v_lshlrev_b32 v1, 4, v0")
    A("s_and_b32 s28, s2, 7")
    A("s_lshr_b32 s29, s2, 3")
    A("s_waitcnt lgkmcnt(0)")
    srd(A, 20, 16, L.WS_BYTES)
    srd(A, 24, 18, wbytes)


def gen_k3():
    A = Asm()
    name = "k3_comb_kernel"
    head(A, name, 512, 32, 31 * 1024)
    A("s_cmp_ge_u32 s2, 256")
    A("s_cbranch_scc1 K3_COMB")
    A("s_and_b32 s30, s29, 1\ns_lshr_b32 s29, s29, 1\ns_lshl_b32 s28, s28, 4\ns_add_u32 s28, s28, s29")
    conv_body(A, "K3Z", 512, L.G, L.Z, 32, True, True, False)
    A("K3_COMB:")
    A("s_sub_u32 s29, s29, 32\ns_lshl_b32 s28, s28, 5\ns_add_u32 s28, s28, s29")
    A("s_lshr_b32 s30, s3, 1")
    A("s_and_b32 s31, s3, 1")
    A("v_and_b32 v2, 15, v0\nv_lshlrev_b32 v2, 2, v2")
    A(f"s_lshl_b32 s32, s28, 8\ns_lshl_b32 s33, s30, 6\ns_add_u32 s32, s32, s33\ns_add_u32 s32, s32, {L.PML}")
    for sp in range(4):
        A(f"buffer_load_dword {v(4+sp)}, v2, s[20:23], s32 offen")
        A(f"buffer_load_dword {v(8+sp)}, v2, s[20:23], s32 offen offset:128")
        A("s_add_u32 s32, s32, 65536")
    A("s_lshl_b32 s34, s28, 15\ns_lshl_b32 s33, s3, 13\ns_add_u32 s34, s34, s33")
    D = 32
    for sp in range(4):
        A(f"s_add_u32 s{36+2*sp}, s34, {L.PO + sp*(8<<20)}\ns_add_u32 s{37+2*sp}, s{36+2*sp}, 4096")
    for f in range(8):
        for sp in range(4):
            A(f"buffer_load_dwordx4 {v(D+16*f+4*sp,4)}, v1, s[20:23], s{36+2*sp+(f>>2)} offen offset:{(f&3)*1024}")
    A("s_waitcnt vmcnt(32)")
    A("v_max3_f32 v12, v4, v5, v6\nv_max_f32 v12, v12, v7")
    for sp in range(4):
        A(f"v_sub_f32 {v(4+sp)}, {v(4+sp)}, v12")
    for sp in range(4):
        A(f"v_exp_f32 {v(4+sp)}, {v(4+sp)}")
    A("v_mul_f32 v13, v4, v8\nv_fmac_f32 v13, v5, v9\nv_fmac_f32 v13, v6, v10\nv_fmac_f32 v13, v7, v11")
    A("v_rcp_f32 v13, v13")
    A("s_and_b32 s33, s28, 127\ns_cmp_lt_u32 s33, 125\ns_cselect_b32 s33, 1.0, 0")
    A("v_mul_f32 v13, s33, v13")
    for sp in range(4):
        A(f"v_mul_f32 {v(8+2*sp if sp<2 else 14+2*(sp-2))}, {v(4+sp)}, v13")
    wr = [8, 10, 14, 16]
    A("s_mov_b32 s49, 0xffff0000")
    A(f"s_add_u32 s44, s34, {L.AT}\ns_add_u32 s45, s44, 4096")
    for f in range(8):
        A(f"s_waitcnt vmcnt({4*(7-f) + f})")
        acc = 160
        t = 168
        for sp in range(4):
            for e in range(4):
                r = D + 16 * f + 4 * sp + e
                A(f"v_lshlrev_b32 {v(t+2*e)}, 16, {v(r)}\nv_and_b32 {v(t+2*e+1)}, s49, {v(r)}")
            for e in range(4):
                if sp == 0:
                    A(f"v_pk_mul_f32 {v(acc+2*e,2)}, {v(t+2*e,2)}, {v(wr[sp],2)} op_sel_hi:[1,0]")
                else:
                    A(f"v_pk_fma_f32 {v(acc+2*e,2)}, {v(t+2*e,2)}, {v(wr[sp],2)}, {v(acc+2*e,2)} op_sel_hi:[1,0,1]")
        for e in range(4):
            A(f"v_cvt_pk_bf16_f32 {v(D+16*f+e)}, {v(acc+2*e)}, {v(acc+2*e+1)}")
        A(f"buffer_store_dwordx4 {v(D+16*f,4)}, v1, s[20:23], s{44+(f>>2)} offen offset:{(f&3)*1024}")
    A(f"{name}_END:")
    A("s_endpgm")
    assert A.check_branches() == 0
    return name, A.text() + "\n" + kdesc(name, 198, 0, 64), f"; @launch kernel={name} grid=(512,1,1) block=(256,1,1) lds={CONV_LDS}"


def gen_k45():
    A = Asm()
    name = "k45_conv_kernel"
    head(A, name, 512, 48, 31 * 2048)
    A("s_and_b32 s30, s29, 3\ns_lshr_b32 s29, s29, 2\ns_lshl_b32 s28, s28, 4\ns_add_u32 s28, s28, s29")
    conv_body(A, "K45", 1024, L.M, L.MM, 48, False, False, True)
    A(f"{name}_END:")
    A("s_endpgm")
    assert A.check_branches() == 0
    return name, A.text() + "\n" + kdesc(name, 166, 0, 64), f"; @launch kernel={name} grid=(512,1,1) block=(256,1,1) lds={CONV_LDS}"


def gen_k4():
    g = Gemm("k4_gemm_kernel", NB=8, NT=16, KS=16, NW=8, wb=4, wn=4, kps=1, NS=5)
    A = g.A
    g.prologue(256)
    A(f"s_mov_b32 s53, {L.Z}\ns_cmp_lt_u32 s30, 2\ns_cselect_b32 s53, {L.AT}, s53")
    for i in range(3):
        d = 40 + i
        A(f"s_mul_i32 s37, s3, 3\ns_add_u32 s37, s37, {i}")
        A(f"s_lshl_b32 s38, s28, 3\ns_add_u32 s38, s38, s37\ns_lshl_b32 s38, s38, 14\ns_add_u32 s38, s38, s53")
        A("s_lshl_b32 s39, s30, 4\ns_add_u32 s39, s39, s37\ns_sub_u32 s39, s39, 8")
        A(f"s_lshl_b32 s39, s39, 14\ns_add_u32 s39, s39, {L.W2}")
        A(f"s_cmp_lt_u32 s37, 8\ns_cselect_b32 s{d}, s38, s39")
    acc0, frag0 = 8, 72
    g.main(None, acc0, frag0)
    A("s_lshl_b32 s37, s28, 3\ns_lshl_b32 s38, s32, 2\ns_add_u32 s37, s37, s38\ns_lshl_b32 s37, s37, 15")
    A("s_lshl_b32 s38, s30, 2\ns_add_u32 s38, s38, s33\ns_lshl_b32 s38, s38, 11\ns_add_u32 s37, s37, s38")
    A(f"s_add_u32 s37, s37, {L.M}")
    for b in range(4):
        for pr in range(2):
            q = acc0 + (b * 4 + pr * 2) * 4
            p = frag0 + (b * 2 + pr) * 4
            for i in range(4):
                A(f"v_cvt_pk_bf16_f32 {v(p+i)}, {v(q+2*i)}, {v(q+2*i+1)}")
            A(f"buffer_store_dwordx4 {v(p,4)}, v1, s[20:23], s37 offen offset:{pr*1024}")
        A("s_add_u32 s37, s37, 32768")
    return g.finish(256, 136)


def gen_k5():
    g = Gemm("k5_gemm_kernel", NB=8, NT=8, KS=32, NW=4, wb=4, wn=4, kps=2, NS=4)
    A = g.A
    g.prologue(256)
    srd(A, 8, 4, 2 * L.T * 1024)
    srd(A, 12, 6, 2 * L.T * 1024)
    for i in range(8):
        d = 40 + i
        A(f"s_lshl_b32 s37, s3, 2\ns_add_u32 s37, s37, {i>>1}")
        A(f"s_lshl_b32 s38, s28, 3\ns_add_u32 s38, s38, s37\ns_lshl_b32 s38, s38, 15\ns_add_u32 s38, s38, {L.MM + (i&1)*1024}")
        A("s_lshl_b32 s39, s30, 3\ns_add_u32 s39, s39, s37\ns_sub_u32 s39, s39, 8")
        A(f"s_lshl_b32 s39, s39, 15\ns_add_u32 s39, s39, {L.W3 + (i&1)*1024}")
        A(f"s_cmp_lt_u32 s37, 8\ns_cselect_b32 s{d}, s38, s39")
    acc0, frag0, XR = 8, 72, 200
    def after():
        A("v_and_b32 v7, 15, v0\nv_lshlrev_b32 v7, 10, v7\nv_lshrrev_b32 v232, 4, v0\nv_lshl_add_u32 v7, v232, 4, v7")
        A("s_lshr_b32 s50, s28, 5")
        A("s_and_b32 s51, s28, 31\ns_lshl_b32 s51, s51, 7\ns_lshl_b32 s52, s32, 6\ns_add_u32 s51, s51, s52")
        A(f"s_mul_i32 s50, s50, {L.T}")
        A("s_lshl_b32 s52, s30, 1\ns_add_u32 s52, s52, s33\ns_lshl_b32 s52, s52, 7")
        for b in range(4):
            A(f"s_add_u32 s53, s51, {16*b}\ns_add_u32 s54, s53, s50\ns_lshl_b32 s54, s54, 10\ns_add_u32 s54, s54, s52")
            A(f"s_cmp_lt_u32 s53, {L.T}\ns_cselect_b32 s{56+b}, s54, 0x40000000")
            for pr in range(2):
                A(f"buffer_load_dwordx4 {v(XR+(b*2+pr)*4,4)}, v7, s[8:11], s{56+b} offen offset:{pr*64}")
    g.after_dma = after
    g.extra_vm = 8
    g.main(None, acc0, frag0)
    A("s_mov_b32 s49, 0xffff0000")
    A("s_waitcnt vmcnt(0)")
    for b in range(4):
        for pr in range(2):
            q = acc0 + (b * 4 + pr * 2) * 4
            x = XR + (b * 2 + pr) * 4
            t = frag0 + 8 * ((b * 2 + pr) & 1)
            for i in range(4):
                A(f"v_lshlrev_b32 {v(t+2*i)}, 16, {v(x+i)}\nv_and_b32 {v(t+2*i+1)}, s49, {v(x+i)}")
            for i in range(4):
                A(f"v_pk_add_f32 {v(q+2*i,2)}, {v(q+2*i,2)}, {v(t+2*i,2)}")
            for i in range(4):
                A(f"v_cvt_pk_bf16_f32 {v(x+i)}, {v(q+2*i)}, {v(q+2*i+1)}")
            A(f"buffer_store_dwordx4 {v(x,4)}, v7, s[12:15], s{56+b} offen offset:{pr*64}")
    return g.finish(256, 234)


def gen_post():
    return [gen_k3(), gen_k4(), gen_k45(), gen_k5()]
```

```python
import sys
from k0 import gen_k0
from gemm import gen_k1
ks = [gen_k0(), gen_k1()]
try:
    from attn import gen_k2
    ks.append(gen_k2())
    from post import gen_post
    ks += gen_post()
except ImportError as e:
    print("missing", e, file=sys.stderr)
ref = open("standalone__conformer_family_e_branchformer__speech.s.ref").read().split("\n")
hdr = [l for l in ref if l.startswith(";") and "@launch" not in l and "Override" not in l and "grid=ceil" not in l][:12]
out = "\n".join(hdr) + "\n" + "\n".join(k[2] for k in ks) + "\n"
out += '.amdgcn_target "amdgcn-amd-amdhsa--gfx950"\n.text\n'
out += "\n".join(k[1] for k in ks) + "\n"
dst = sys.argv[1] if len(sys.argv) > 1 else "standalone__conformer_family_e_branchformer__speech.s"
open(dst, "w").write(out)
print("wrote", dst, len(out))
```

```python
import re

TRANS = ("v_exp_f32", "v_log_f32", "v_rcp_f32", "v_rsq_f32", "v_sqrt_f32", "v_sin_f32", "v_cos_f32")

_reg_re = re.compile(r"^(-|abs\(|\|)?([vas])(\d+)\)?\|?$")
_rng_re = re.compile(r"^(-|abs\(|\|)?([vas])\[(\d+):(\d+)\]\)?\|?$")


def regs_of(op):
    op = op.strip()
    m = _reg_re.match(op)
    if m:
        return [(m.group(2), int(m.group(3)))]
    m = _rng_re.match(op)
    if m:
        return [(m.group(2), i) for i in range(int(m.group(3)), int(m.group(4)) + 1)]
    if op == "vcc":
        return [("s", "vcc")]
    if op == "exec":
        return [("s", "exec")]
    if op == "m0":
        return [("s", "m0")]
    return []


def split_ops(s):
    out, cur, depth = [], "", 0
    for ch in s:
        if ch == "[":
            depth += 1
        if ch == "]":
            depth -= 1
        if ch == "," and depth == 0:
            out.append(cur.strip())
            cur = ""
        else:
            cur += ch
    if cur.strip():
        out.append(cur.strip())
    return out


class Ins:
    __slots__ = ("text", "mn", "cls", "w", "r", "ws", "passes", "srcc", "dst", "ab", "data", "lds", "dpp")

    def __init__(self, text):
        self.text = text
        t = text.split(";")[0].strip()
        self.w, self.r = set(), set()
        self.ws = 1
        self.passes = 0
        self.srcc, self.dst, self.ab, self.data = [], [], [], []
        self.lds = False
        self.dpp = False
        if not t or t.endswith(":") or t.startswith("."):
            self.mn, self.cls, self.ws = "", "label", 0
            return
        parts = t.split(None, 1)
        mn = parts[0]
        self.mn = mn
        rest = parts[1] if len(parts) > 1 else ""
        ops = split_ops(rest)
        mods = ""
        if ops:
            sp = ops[-1].split(None, 1)
            if len(sp) > 1 and not ops[-1].startswith("abs("):
                ops[-1], mods = sp[0], sp[1]
        R = [regs_of(o) for o in ops]
        if mn == "s_nop":
            self.cls, self.ws = "nop", int(ops[0], 0) + 1
        elif mn.startswith("v_mfma"):
            self.cls = "mfma"
            self.passes = 8 if "32x32" in mn else 4
            self.dst, self.ab, self.srcc = R[0], R[1] + R[2], R[3]
            self.w |= set(R[0])
            self.r |= set(R[1] + R[2] + R[3])
        elif mn.startswith("v_"):
            self.cls = "trans" if mn.replace("_e32", "").replace("_e64", "") in TRANS else "valu"
            if "dpp" in mn or "row_" in mods or "quad_perm" in mods:
                self.dpp = True
            if mn.startswith("v_cmp"):
                self.w |= set(R[0])
                for x in R[1:]:
                    self.r |= set(x)
            elif mn.startswith("v_permlane") and "swap" in mn:
                self.w |= set(R[0] + R[1])
                self.r |= set(R[0] + R[1])
            elif mn.startswith(("v_add_co", "v_sub_co", "v_addc_co", "v_subb_co")):
                self.w |= set(R[0] + R[1])
                for x in R[2:]:
                    self.r |= set(x)
            else:
                self.w |= set(R[0])
                for x in R[1:]:
                    self.r |= set(x)
                if mn.startswith(("v_fmac", "v_dot2c", "v_pk_fmac", "v_writelane")) or self.dpp:
                    self.r |= set(R[0])
                if mn.startswith("v_cndmask") and len(ops) == 3:
                    self.r.add(("s", "vcc"))
        elif mn.startswith("ds_"):
            self.cls = "ds"
            if mn.startswith(("ds_read", "ds_bpermute", "ds_permute", "ds_swizzle")):
                self.w |= set(R[0])
                for x in R[1:]:
                    self.r |= set(x)
            else:
                for x in R:
                    self.r |= set(x)
        elif mn.startswith(("buffer_", "global_")):
            self.cls = "vmem"
            if " lds" in (" " + mods) :
                self.lds = True
                for x in R:
                    self.r |= set(x)
                self.r.add(("s", "m0"))
            elif "load" in mn:
                self.w |= set(R[0])
                for x in R[1:]:
                    self.r |= set(x)
                if "d16" in mn:
                    self.r |= set(R[0])
            else:
                for x in R:
                    self.r |= set(x)
                d = R[0] if mn.startswith("buffer_") else R[1]
                if mn.endswith(("x3", "x4")):
                    self.data = d
        elif mn.startswith("s_"):
            self.cls = "salu"
            if mn.startswith(("s_cmp", "s_cbranch", "s_branch", "s_waitcnt", "s_barrier", "s_endpgm", "s_setprio", "s_sleep")):
                for x in R:
                    self.r |= set(x)
            else:
                if R:
                    self.w |= set(R[0])
                for x in R[1:]:
                    self.r |= set(x)
                if "saveexec" in mn:
                    self.w.add(("s", "exec"))
        else:
            raise ValueError("unknown instr " + text)


def need(p, c):
    n = 0
    pv = p.cls in ("valu", "trans")
    cv = c.cls in ("valu", "trans")
    if pv:
        wv = {x for x in p.w if x[0] != "s"}
        wsg = {x for x in p.w if x[0] == "s"}
        if c.cls == "mfma" and wv & c.r:
            n = max(n, 2)
        if wsg & c.r:
            if c.cls == "vmem":
                n = max(n, 5)
            if cv:
                n = max(n, 4 if c.mn.startswith(("v_readlane", "v_writelane")) else 2)
        if cv and wv & c.r:
            if c.mn.startswith(("v_readfirstlane", "v_readlane")):
                n = max(n, 1)
            if c.mn.startswith("v_permlane") or c.dpp:
                n = max(n, 2)
            if p.cls == "trans" and c.cls != "trans":
                n = max(n, 1)
    if p.cls == "mfma":
        big = p.passes == 8
        if c.cls == "mfma":
            if p.w & set(c.ab):
                n = max(n, 12 if big else 8)
            if p.w & set(c.srcc):
                if not (p.dst == c.srcc and p.passes == c.passes):
                    n = max(n, 10 if big else 6)
        elif c.cls in ("valu", "trans", "ds", "vmem"):
            if p.w & (c.r | c.w):
                n = max(n, 12 if big else 8)
            if cv and set(p.srcc) & c.w:
                n = max(n, 7 if big else 3)
    if p.cls == "salu" and ("s", "m0") in p.w and c.lds:
        n = max(n, 1)
    if p.cls == "vmem" and p.data and set(p.data) & c.w:
        n = max(n, 2 if cv else 1)
    return n


import os
STAMPS = bool(os.environ.get("STAMPS"))
TS_BASE = 120 << 20
_kidx = [0]

class Asm:
    def stamp(self, n):
        if STAMPS:
            self(f"s_memrealtime s[{80+2*n}:{81+2*n}]")

    def stamp_init(self):
        if STAMPS:
            self.kidx = _kidx[0]; _kidx[0] += 1
            for n in range(1, 8):
                self(f"s_mov_b32 s{80+2*n}, 0")
            self.stamp(0)

    def endpgm(self):
        if STAMPS:
            lb = self.label("NOSTAMP%d" % self.kidx)
            self("s_waitcnt vmcnt(0)")
            self.stamp(7)
            self("s_waitcnt lgkmcnt(0)")
            for n in range(8):
                self(f"v_mov_b32 v{4+n}, s{80+2*n}")
            self(f"s_lshl_b32 s80, s2, 3\ns_add_u32 s80, s80, s3\ns_lshl_b32 s80, s80, 5\ns_add_u32 s80, s80, {TS_BASE + self.kidx * 262144}")
            self("v_mov_b32 v0, 0\ns_mov_b64 exec, 1")
            self("buffer_store_dwordx4 v[4:7], v0, s[20:23], s80 offen")
            self("buffer_store_dwordx4 v[8:11], v0, s[20:23], s80 offen offset:16")
        self("s_endpgm")

    def prefetch_code(self, start, end, nbytes, vt, nwaves=4, sr=96, vm=None):
        lb = self.label("PC" + start)
        self(f"s_getpc_b64 s[{sr}:{sr+1}]")
        self(f"{lb}:")
        self(f"s_add_u32 s{sr}, s{sr}, {start}-{lb}")
        self(f"s_addc_u32 s{sr+1}, s{sr+1}, ({start}-{lb})>>32")
        self(f"s_and_b32 s{sr+1}, s{sr+1}, 0xffff")
        self(f"s_mov_b32 s{sr+2}, {end}-{start}")
        self(f"s_mov_b32 s{sr+3}, 0x20000")
        self(f"s_lshl_b32 s{sr+4}, s3, 13")
        self(f"v_lshlrev_b32 v{vt}, 7, v0")
        n = (nbytes + nwaves * 8192 - 1) // (nwaves * 8192)
        for i in range(n):
            t = f"buffer_load_dword v{vt+1}, v{vt}, s[{sr}:{sr+3}], s{sr+4} offen"
            if vm is not None:
                vm.issue("PC", t)
            else:
                self(t)
            if i + 1 < n:
                self(f"s_add_u32 s{sr+4}, s{sr+4}, {nwaves*8192}")
        return n

    def __init__(self):
        self.lines = []
        self.auto = True
        self.nlabel = 0
        self.inserted = 0

    def __call__(self, text):
        for ln in text.split("\n"):
            ln = ln.strip()
            if not ln:
                continue
            ins = Ins(ln)
            if self.auto and ins.cls not in ("label", "nop"):
                d = 0
                req = 0
                for p in reversed(self.lines):
                    if d >= 20:
                        break
                    if p.cls not in ("label", "nop"):
                        req = max(req, need(p, ins) - d)
                    d += p.ws
                if req > 0:
                    self.lines.append(Ins(f"s_nop {req - 1}"))
                    self.inserted += 1
            self.lines.append(ins)

    def label(self, prefix="L"):
        self.nlabel += 1
        return f"{prefix}_{self.nlabel}"

    def check_branches(self):
        pos = {}
        for i, x in enumerate(self.lines):
            t = x.text.split(";")[0].strip()
            if x.cls == "label" and t.endswith(":"):
                pos[t[:-1]] = i
        bad = 0
        for i, x in enumerate(self.lines):
            if x.mn.startswith(("s_cbranch", "s_branch")):
                tgt = x.text.split(";")[0].split()[1]
                if tgt not in pos:
                    continue
                j = pos[tgt]
                dc = 0
                for c in self.lines[j:j + 40]:
                    if dc >= 20:
                        break
                    if c.cls not in ("label", "nop"):
                        d = dc
                        for p in reversed(self.lines[max(0, i - 40):i + 1]):
                            if d >= 20:
                                break
                            if p.cls not in ("label", "nop") and need(p, c) > d:
                                print(f"HAZARD across branch {x.text}: '{p.text}' -> '{c.text}' need {need(p,c)} have {d}")
                                bad += 1
                            d += p.ws
                    dc += c.ws
                    if c.mn in ("s_branch", "s_endpgm"):
                        break
        return bad

    def text(self):
        out = []
        for x in self.lines:
            out.append(x.text if x.cls == "label" else "  " + x.text)
        return "\n".join(out)


def v(a, n=1):
    return f"v{a}" if n == 1 else f"v[{a}:{a+n-1}]"


def a_(a, n=1):
    return f"a{a}" if n == 1 else f"a[{a}:{a+n-1}]"


def s(a, n=1):
    return f"s{a}" if n == 1 else f"s[{a}:{a+n-1}]"


def f2u(x):
    import struct
    return struct.unpack("<I", struct.pack("<f", x))[0]


def kdesc(name, vgpr, agpr, sgpr=102):
    sgpr = 102
    acc = (vgpr + 3) // 4 * 4
    tot = acc + agpr if agpr else vgpr
    return f""".section .rodata,"a"
.p2align 6
.amdhsa_kernel {name}
  .amdhsa_next_free_vgpr {tot}
  .amdhsa_next_free_sgpr {sgpr}
  .amdhsa_accum_offset {acc}
  .amdhsa_group_segment_fixed_size 0
  .amdhsa_kernarg_size 88
  .amdhsa_user_sgpr_count 2
  .amdhsa_user_sgpr_kernarg_segment_ptr 1
  .amdhsa_system_sgpr_workgroup_id_x 1
  .amdhsa_float_denorm_mode_32 3
.end_amdhsa_kernel
.text"""
```

```python
from asmlib import *
import layout as L
from k0 import srd

LANE, L16, DV0, DV1, KA0, KA1, VA, LS0, LS1 = 0, 1, 2, 3, 4, 5, 6, 7, 8
BS0, BS1 = 9, 10
T0 = 12
NEGM = 20
PP = 28
SS = 36
RING = 68
XT = 100
QQ = 128
NR = 8
DIST = 7
THRESH = 2.0 ** 30

def Sreg(p, ka, qa): return SS + p * 16 + (ka * 2 + qa) * 4
def Q(qa, j): return QQ + (qa * 16 + j) * 4
def O(dt, qa): return (dt * 2 + qa) * 4
def ring(n): return RING + (n % NR) * 4
MF = "v_mfma_f32_16x16x32_bf16"

def kread(n, odd, slot_reg=None):
    j, ka = n >> 1, n & 1
    base = KA1 if (j >> 2) & 1 else KA0
    return [f"ds_read_b128 {v(ring(n),4)}, {v(base)} offset:{odd*32768 + ka*16384 + j*1024}"]

def vread(dt, odd):
    j3, j10, gp = dt >> 4, (dt >> 2) & 3, dt & 3
    off = odd * 32768 + (8 * j3 + j10) * 1024 + gp * 256
    r = ring(dt)
    return [f"ds_read_b64_tr_b16 {v(r,2)}, {v(VA)} offset:{off}",
            f"ds_read_b64_tr_b16 {v(r+2,2)}, {v(VA)} offset:{off+16384}"]

def softmax_ops(p):
    out = []
    t = 0
    for qa in range(2):
        bs = BS0 + qa
        for ka in range(2):
            sr = Sreg(p, ka, qa)
            tt = T0 + 4 * (t & 1); t += 1
            for r in range(4):
                out.append(f"v_exp_f32 {v(tt+r)}, {v(sr+r)}")
            if ka == 0:
                out.append(f"v_add_f32 {v(bs)}, {v(tt)}, {v(tt+1)}")
            else:
                out.append(f"v_add_f32 {v(bs)}, {v(bs)}, {v(tt)}")
                out.append(f"v_add_f32 {v(bs)}, {v(bs)}, {v(tt+1)}")
            out.append(f"v_cvt_pk_bf16_f32 {v(PP+qa*4+ka*2)}, {v(tt)}, {v(tt+1)}")
            out.append(f"v_add_f32 {v(bs)}, {v(bs)}, {v(tt+2)}")
            out.append(f"v_add_f32 {v(bs)}, {v(bs)}, {v(tt+3)}")
            out.append(f"v_cvt_pk_bf16_f32 {v(PP+qa*4+ka*2+1)}, {v(tt+2)}, {v(tt+3)}")
    return out

def check_ops():
    return [f"v_max_f32 {v(11)}, {v(BS0)}, {v(BS1)}",
            f"v_cmp_lt_f32 vcc, s45, {v(11)}"]

def dma_ops():
    out = ["s_mov_b32 m0, s47"]
    for i in range(4):
        out.append(f"buffer_load_dwordx4 {v(DV0)}, s[20:23], s46 offen offset:{i*1024} lds")
    out.append("s_add_u32 m0, s47, 16384")
    for i in range(4):
        out.append(f"buffer_load_dwordx4 {v(DV1)}, s[20:23], s46 offen offset:{i*1024} lds")
    out.append("s_add_u32 s46, s46, 32768")
    out.append("s_add_u32 s47, s47, 32768")
    out.append("s_and_b32 s47, s47, 0x1ffff")
    return out

def xmax(A, x, t):
    for lv in (16, 32):
        A(f"v_mov_b32 {v(t)}, {v(x)}")
        A(f"v_permlane{lv}_swap_b32 {v(x)}, {v(t)}")
        A(f"v_max_f32 {v(x)}, {v(x)}, {v(t)}")

def rowmax(A, p, qa, dst, t):
    a, b = Sreg(p, 0, qa), Sreg(p, 1, qa)
    A(f"v_max3_f32 {v(dst)}, {v(a)}, {v(a+1)}, {v(a+2)}")
    A(f"v_max3_f32 {v(dst)}, {v(dst)}, {v(a+3)}, {v(b)}")
    A(f"v_max3_f32 {v(dst)}, {v(dst)}, {v(b+1)}, {v(b+2)}")
    A(f"v_max_f32 {v(dst)}, {v(dst)}, {v(b+3)}")
    xmax(A, dst, t)

class Sched:
    def __init__(self, A):
        self.A = A
        self.q = []
    def issue(self, fid, instrs):
        for x in instrs:
            self.A(x); self.q.append(fid)
    def wait(self, fid):
        if fid not in self.q:
            return
        last = max(i for i, f in enumerate(self.q) if f == fid)
        n = len(self.q) - 1 - last
        self.A(f"s_waitcnt lgkmcnt({n})")
        self.q = self.q[last + 1:]

def spread(fill, nslots, start=0, end=None):
    end = nslots if end is None else end
    d = {}
    n = end - start
    for i, x in enumerate(fill):
        d.setdefault(start + i * n // len(fill), []).append(x)
    return d

def half(A, sc, p, tail, tag):
    if not tail:
        fill = spread(softmax_ops(p) + check_ops(), 64, 1, 56)
        for n in range(32):
            j, ka = n >> 1, n & 1
            if n % 2 == 0:
                sc.wait(("K", n + 1))
            for qa in range(2):
                sr = Sreg(p ^ 1, ka, qa)
                c = v(NEGM + 4 * qa, 4) if j == 0 else v(sr, 4)
                A(f"{MF} {v(sr,4)}, {v(ring(n),4)}, {v(Q(qa,j),4)}, {c}")
                if qa == 1:
                    m = n + DIST
                    if m < 32:
                        sc.issue(("K", m), kread(m, p ^ 1))
                    else:
                        if m == 32 and p == 0:
                            A(f"v_xor_b32 {v(VA)}, 0x10000, {v(VA)}")
                        sc.issue(("V", m - 32), vread(m - 32, p))
                for x in fill.get(2 * n + qa, []):
                    A(x)
    else:
        A("s_waitcnt lgkmcnt(0)")
        sc.q = []
        if p == 0:
            A(f"v_xor_b32 {v(VA)}, 0x10000, {v(VA)}")
        for m in range(DIST):
            sc.issue(("V", m), vread(m, p))
        for x in softmax_ops(p) + check_ops():
            A(x)
    A(f"s_cbranch_vccnz RARE{p}")
    A(f"RET{tag}:")
    fill = [f"v_add_f32 {v(LS0)}, {v(LS0)}, {v(BS0)}", f"v_add_f32 {v(LS1)}, {v(LS1)}, {v(BS1)}"]
    if not tail:
        A("s_waitcnt vmcnt(0)")
        A("s_barrier")
        fill = dma_ops() + fill
    fill = spread(fill, 64, 1, 40)
    for dt in range(32):
        if dt % 2 == 0:
            sc.wait(("V", dt + 1))
        for qa in range(2):
            A(f"{MF} {a_(O(dt,qa),4)}, {v(ring(dt),4)}, {v(PP+4*qa,4)}, {a_(O(dt,qa),4)}")
            if qa == 1:
                m = dt + DIST
                if m < 32:
                    sc.issue(("V", m), vread(m, p))
                elif not tail:
                    if m == 32 and p == 0:
                        A(f"v_xor_b32 {v(KA0)}, 0x10000, {v(KA0)}")
                        A(f"v_xor_b32 {v(KA1)}, 0x10000, {v(KA1)}")
                    sc.issue(("K", m - 32), kread(m - 32, p))
            for x in fill.get(2 * dt + qa, []):
                A(x)

def rare(A, p):
    A(f"RARE{p}:")
    A("s_nop 15")
    D0, AL = XT, XT + 2
    for qa in range(2):
        rowmax(A, p, qa, D0 + qa, XT + 4)
        A(f"v_max_f32 {v(D0+qa)}, 0, {v(D0+qa)}")
        A(f"v_sub_f32 {v(AL+qa)}, 0, {v(D0+qa)}")
        A(f"v_exp_f32 {v(AL+qa)}, {v(AL+qa)}")
        for pp in range(2):
            for ka in range(2):
                for r in range(4):
                    x = Sreg(pp, ka, qa) + r
                    A(f"v_sub_f32 {v(x)}, {v(x)}, {v(D0+qa)}")
        for r in range(4):
            A(f"v_sub_f32 {v(NEGM+4*qa+r)}, {v(NEGM+4*qa+r)}, {v(D0+qa)}")
        A(f"v_mul_f32 {v(LS0+qa)}, {v(LS0+qa)}, {v(AL+qa)}")
    for dt in range(32):
        for qa in range(2):
            t = XT + 8 + 4 * qa
            for r in range(4):
                A(f"v_accvgpr_read_b32 {v(t+r)}, {a_(O(dt,qa)+r)}")
            for r in range(4):
                A(f"v_mul_f32 {v(t+r)}, {v(t+r)}, {v(AL+qa)}")
            for r in range(4):
                A(f"v_accvgpr_write_b32 {a_(O(dt,qa)+r)}, {v(t+r)}")
    for x in softmax_ops(p):
        A(x)
    A("s_nop 3")
    A("s_cmp_eq_u32 s44, 1")
    A(f"s_cbranch_scc1 RETT{p}")
    A(f"s_branch RETL{p}")

def gen_k2():
    A = Asm()
    name = "k2_attn_kernel"
    A(f".globl {name}\n.p2align 8\n.type {name},@function\n{name}:\n{name}_S:")
    A("s_cmp_ge_u32 s2, 256")
    A("s_cbranch_scc1 K2_END")
    A.stamp_init()
    A("s_load_dwordx2 s[16:17], s[0:1], 80")
    A("v_lshrrev_b32 v1, 6, v0")
    A("v_and_b32 v0, 63, v0")
    A("v_readfirstlane_b32 s3, v1")
    A(f"v_lshlrev_b32 {v(L16)}, 4, v0")
    A("s_and_b32 s28, s2, 7")
    A("s_lshr_b32 s29, s2, 3")
    A("s_and_b32 s30, s29, 3")
    A("s_lshr_b32 s29, s29, 2")
    A("s_lshl_b32 s31, s28, 3")
    A("s_add_u32 s31, s31, s29")
    A("s_lshl_b32 s31, s31, 2")
    A("s_add_u32 s31, s31, s3")
    A("s_lshr_b32 s32, s28, 2")
    A("s_mul_i32 s33, s30, 31")
    A("s_cmp_lg_u32 s30, 0")
    A("s_addc_u32 s33, s33, 0")
    A("s_cmp_eq_u32 s30, 0")
    A("s_addc_u32 s44, 31, 0")
    A("s_lshl_b32 s34, s32, 7")
    A("s_add_u32 s33, s33, s34")
    A("s_lshl_b32 s46, s33, 15")
    if L.XA:
        A(f"s_add_u32 s46, s46, {L.XA}")
    A("s_lshl_b32 s47, s3, 12")
    A(f"s_mov_b32 s45, {hex(f2u(THRESH))}")
    A("s_and_b32 s35, s3, 1")
    A("s_lshl_b32 s35, s35, 7")
    A(f"v_xor_b32 {v(DV0)}, s35, {v(L16)}")
    A(f"v_add_u32 {v(DV0)}, s47, {v(DV0)}")
    A(f"v_add_u32 {v(DV1)}, 16384, {v(DV0)}")
    A("s_lshl_b32 s36, s31, 15")
    A(f"s_add_u32 s36, s36, {L.QP}")
    A("s_waitcnt lgkmcnt(0)")
    srd(A, 20, 16, L.WS_BYTES)
    for x in dma_ops():
        A(x)
    A("s_add_u32 s37, s36, 16384")
    for j in range(16):
        for qa in range(2):
            A(f"buffer_load_dwordx4 {v(Q(qa,j),4)}, {v(L16)}, s[20:23], s{36+qa} offen offset:{(j&3)*1024}")
        if j % 4 == 3:
            A("s_add_u32 s36, s36, 4096\ns_add_u32 s37, s37, 4096")
    for _ in range(2):
        for x in dma_ops():
            A(x)
    A(f"v_mov_b32 {v(KA0)}, {v(L16)}")
    A(f"v_xor_b32 {v(KA1)}, 128, {v(L16)}")
    A(f"v_lshrrev_b32 {v(T0)}, 2, v0")
    A(f"v_bfe_u32 {v(T0+1)}, v0, 1, 1")
    A(f"v_lshlrev_b32 {v(T0+2)}, 3, {v(T0+1)}")
    A(f"v_xor_b32 {v(T0)}, {v(T0)}, {v(T0+2)}")
    A(f"v_lshlrev_b32 {v(T0)}, 4, {v(T0)}")
    A(f"v_lshl_add_u32 {v(T0)}, {v(T0+1)}, 12, {v(T0)}")
    A(f"v_and_b32 {v(T0+1)}, 1, v0")
    A(f"v_lshl_add_u32 {v(VA)}, {v(T0+1)}, 3, {v(T0)}")
    A(f"v_xor_b32 {v(VA)}, 0x10000, {v(VA)}")
    A(f"v_mov_b32 {v(LS0)}, 0\nv_mov_b32 {v(LS1)}, 0")
    for i in range(256):
        A(f"v_accvgpr_write_b32 a{i}, 0")
    A.stamp(1)
    A("s_waitcnt vmcnt(48)")
    A("s_barrier")
    A.stamp(2)
    sc = Sched(A)
    for m in range(DIST):
        sc.issue(("K", m), kread(m, 0))
    for n in range(32):
        j, ka = n >> 1, n & 1
        if ka == 0:
            A(f"s_waitcnt vmcnt({16 + 2*(15-j)})")
            sc.wait(("K", n + 1))
        for qa in range(2):
            sr = Sreg(0, ka, qa)
            c = "0" if j == 0 else v(sr, 4)
            A(f"{MF} {v(sr,4)}, {v(ring(n),4)}, {v(Q(qa,j),4)}, {c}")
        if n + DIST < 32:
            sc.issue(("K", n + DIST), kread(n + DIST, 0))
    A("s_waitcnt vmcnt(8)")
    A("s_barrier")
    for m in range(DIST):
        sc.issue(("K", m), kread(m, 1))
    for qa in range(2):
        rowmax(A, 0, qa, T0 + qa, T0 + 2)
        for ka in range(2):
            for r in range(4):
                x = Sreg(0, ka, qa) + r
                A(f"v_sub_f32 {v(x)}, {v(x)}, {v(T0+qa)}")
        for r in range(4):
            A(f"v_sub_f32 {v(NEGM+4*qa+r)}, 0, {v(T0+qa)}")
    q0 = list(sc.q)
    A.stamp(3)
    A(".p2align 6")
    A("LOOP:")
    half(A, sc, 0, False, "L0")
    assert sc.q == q0
    A("s_sub_u32 s44, s44, 1")
    A("s_cmp_eq_u32 s44, 1")
    A("s_cbranch_scc1 TAIL1")
    half(A, sc, 1, False, "L1")
    assert sc.q == q0
    A("s_sub_u32 s44, s44, 1")
    A("s_cmp_lg_u32 s44, 1")
    A("s_cbranch_scc1 LOOP")
    half(A, sc, 0, True, "T0")
    A("s_branch EPI")
    A("TAIL1:")
    half(A, sc, 1, True, "T1")
    A("EPI:")
    A.stamp(4)
    A.prefetch_code("k3_comb_kernel_S", "k3_comb_kernel_END", 32768, XT)
    for qa in range(2):
        x = LS0 + qa
        for lv in (16, 32):
            A(f"v_mov_b32 {v(T0)}, {v(x)}")
            A(f"v_permlane{lv}_swap_b32 {v(x)}, {v(T0)}")
            A(f"v_add_f32 {v(x)}, {v(x)}, {v(T0)}")
    A(f"v_and_b32 {v(T0)}, 16, v0")
    A(f"v_cmp_eq_u32 vcc, 0, {v(T0)}")
    A(f"v_cndmask_b32 {v(T0+1)}, {v(NEGM+4)}, {v(NEGM)}, vcc")
    A(f"v_cndmask_b32 {v(T0+2)}, {v(LS1)}, {v(LS0)}, vcc")
    A(f"v_sub_f32 {v(T0+1)}, 0, {v(T0+1)}")
    A(f"v_cmp_gt_u32 vcc, 32, v0")
    A(f"v_cndmask_b32 {v(T0+1)}, {v(T0+2)}, {v(T0+1)}, vcc")
    A(f"v_lshlrev_b32 {v(T0+3)}, 2, v0")
    A("s_lshl_b32 s36, s30, 8\ns_add_u32 s36, s36, s31\ns_lshl_b32 s36, s36, 8")
    A(f"s_add_u32 s36, s36, {L.PML}")
    A(f"buffer_store_dword {v(T0+1)}, {v(T0+3)}, s[20:23], s36 offen")
    A("s_lshl_b32 s36, s30, 23\ns_lshl_b32 s37, s31, 15\ns_add_u32 s36, s36, s37")
    A(f"s_add_u32 s36, s36, {L.PO}")
    A("s_add_u32 s37, s36, 16384")
    k = 0
    for f in range(16):
        for qa in range(2):
            t = QQ + (k % 8) * 12; k += 1
            for u in range(2):
                for r in range(4):
                    A(f"v_accvgpr_read_b32 {v(t+4+4*u+r)}, {a_(O(2*f+u,qa)+r)}")
            for i in range(4):
                A(f"v_cvt_pk_bf16_f32 {v(t+i)}, {v(t+4+2*i)}, {v(t+5+2*i)}")
            A(f"buffer_store_dwordx4 {v(t,4)}, {v(L16)}, s[20:23], s{36+qa} offen offset:{(f&3)*1024}")
        if f % 4 == 3:
            A("s_add_u32 s36, s36, 4096\ns_add_u32 s37, s37, 4096")
    A.endpgm()
    A("K2_END:")
    A("s_endpgm")
    rare(A, 0)
    rare(A, 1)
    assert A.check_branches() == 0
    return name, A.text() + "\n" + kdesc(name, 256, 256, 64), f"; @launch kernel={name} grid=(256,1,1) block=(256,1,1) lds=131072"
```

```python
from asmlib import *
import layout as L
import math

MF = "v_mfma_f32_16x16x32_bf16"

def R(x, n=1):
    if x >= 256:
        return a_(x - 256, n)
    assert x + n <= 256
    return v(x, n)

class Q:
    def __init__(self, A, name, mx):
        self.A, self.name, self.mx, self.q = A, name, mx, []
    def issue(self, tag, text):
        self.A(text); self.q.append(tag)
    def count_for(self, tag):
        if tag not in self.q:
            return None
        last = max(i for i, f in enumerate(self.q) if f == tag)
        n = len(self.q) - 1 - last
        self.q = self.q[last + 1:]
        return min(n, self.mx)
    def wait(self, tag):
        n = self.count_for(tag)
        if n is not None:
            self.A(f"s_waitcnt {self.name}({n})")

def waits(A, vm, vtags, lk, ltags):
    parts = []
    n = None
    for t in vtags:
        c = vm.count_for(t)
        if c is not None:
            n = c
    if n is not None:
        parts.append(f"vmcnt({n})")
    n = None
    for t in ltags:
        c = lk.count_for(t)
        if c is not None:
            n = c
    if n is not None:
        parts.append(f"lgkmcnt({n})")
    if parts:
        A("s_waitcnt " + " ".join(parts))

class G4:
    def __init__(self, A, vm, lk, NB, wn, KS, kps, NS, WD, s_act, blk_stride, s_w, acc0, fr0, w0, vl16, vt, st, lds0=0, rng=None, swap=False):
        self.__dict__.update(locals())
        self.rng = rng or [(0, NB)] * wn
        self.nst = KS // kps
        self.ppw = NB * kps // 4
        assert NB * kps % 4 == 0
        self.slot = NB * kps * 1024
        self.accs = {}
        a = acc0
        for n in range(0, wn, 2):
            f, c = self.rng[n]
            for b in range(f, f + c):
                self.accs[(b, n)] = a; self.accs[(b, n + 1)] = a + 4; a += 8
        self.acc_end = a

    def setup(self):
        A, st, vt = self.A, self.st, self.vt
        for i in range(self.ppw):
            A(f"s_mul_i32 s{st}, s3, {self.ppw}\ns_add_u32 s{st}, s{st}, {i}")
            sh = int(math.log2(self.kps))
            A(f"s_lshr_b32 s{st+1}, s{st}, {sh}\ns_mul_i32 s{st+1}, s{st+1}, {self.blk_stride}")
            A(f"s_and_b32 s{st}, s{st}, {self.kps-1}\ns_lshl_b32 s{st}, s{st}, 10")
            A(f"s_add_u32 s{st+1}, s{st+1}, s{st}\ns_add_u32 s{st+2+i}, s{st+1}, s{self.s_act}")
        A(f"s_mul_i32 s{st}, s3, {self.ppw*1024}")
        if self.lds0:
            A(f"s_add_u32 s{st}, s{st}, {self.lds0}")
        A(f"v_mov_b32 {v(vt)}, {v(self.vl16)}")
        A(f"v_mov_b32 {v(vt+1)}, {v(self.vl16)}")
        A(f"v_add_u32 {v(vt+2)}, 0x10000, {v(self.vl16)}")
        A(f"v_add_u32 {v(vt+3)}, 0x20000, {v(self.vl16)}")

    def dma(self, stage):
        out = []
        sl = stage % self.NS
        for i in range(self.ppw):
            out.append((None, f"s_add_u32 m0, s{self.st}, {sl*self.slot + i*1024}"))
            out.append((("D", stage), f"buffer_load_dwordx4 {v(self.vt)}, s[20:23], s{self.st+2+i} offen lds"))
        out.append((None, f"v_add_u32 {v(self.vt)}, {self.kps*1024}, {v(self.vt)}"))
        return out

    def wreg(self, n, k):
        return self.w0 + ((k % self.WD) * self.wn + n) * 4

    def wload(self, k):
        out = []
        for n in range(self.wn):
            out.append((("W", k), f"buffer_load_dwordx4 {R(self.wreg(n,k),4)}, {v(self.vt+1)}, s[20:23], s{self.s_w[n]} offen offset:{(k&3)*1024}"))
        if k & 3 == 3:
            out.append((None, f"v_add_u32 {v(self.vt+1)}, 4096, {v(self.vt+1)}"))
        return out

    def freg(self, b, k):
        return self.fr0 + ((k & 1) * self.NB + b) * 4

    def reads(self, k):
        out = []
        stage, kk = k // self.kps, k % self.kps
        for b in range(self.NB):
            off = self.lds0 + (stage % self.NS) * self.slot + (b * self.kps + kk) * 1024
            w = off >> 16
            base = self.vl16 if w == 0 else self.vt + 1 + w
            out.append((("F", k, b), f"ds_read_b128 {R(self.freg(b,k),4)}, {v(base)} offset:{off & 0xffff}"))
        return out

    def emit(self, item):
        tag, text = item
        if tag is None:
            self.A(text)
        elif tag[0] == "F":
            self.lk.issue(tag, text)
        else:
            self.vm.issue(tag, text)

    def prefetch(self, nw=None):
        nw = min(self.WD, self.KS) if nw is None else nw
        ns = min(self.NS, self.nst)
        wk = 0
        for s_ in range(ns):
            for x in self.dma(s_):
                self.emit(x)
            while wk < nw and wk < (s_ + 1) * self.kps:
                for x in self.wload(wk):
                    self.emit(x)
                wk += 1
        while wk < nw:
            for x in self.wload(wk):
                self.emit(x)
            wk += 1
        self.w_issued = nw
        self.d_issued = ns

    def run(self, extra=None, first_c="0"):
        A = self.A
        self.vm.wait(("D", 0))
        A("s_barrier")
        A.stamp(2)
        for x in self.reads(0):
            self.emit(x)
        for k in range(self.KS):
            stage, kk = k // self.kps, k % self.kps
            fill = []
            last_in_stage = kk == self.kps - 1 and k + 1 < self.KS
            if last_in_stage:
                waits(A, self.vm, [("W", k), ("D", stage + 1)], self.lk, [("F", k, self.NB - 1)])
                A("s_barrier")
            else:
                waits(A, self.vm, [("W", k)], self.lk, [("F", k, self.NB // 2 - 1)])
            if k + 1 < self.KS:
                fill += self.reads(k + 1)
            if last_in_stage and self.d_issued < self.nst:
                fill += self.dma(self.d_issued); self.d_issued += 1
            late = []
            if self.w_issued < self.KS and self.w_issued < k + self.WD:
                fill += self.wload(self.w_issued); self.w_issued += 1
            if extra:
                fill += extra(k)
            mm = []
            for b in range(self.NB):
                for n in range(self.wn):
                    if (b, n) in self.accs:
                        acc = self.accs[(b, n)]
                        c = first_c if k == 0 and first_c is not None else R(acc, 4)
                        x, y = R(self.wreg(n, k), 4), R(self.freg(b, k), 4)
                        if self.swap:
                            x, y = y, x
                        mm.append((b, f"{MF} {R(acc,4)}, {x}, {y}, {c}"))
            fi = 0
            for i, (b, x) in enumerate(mm):
                if b == self.NB // 2:
                    self.lk.wait(("F", k, self.NB - 1))
                A(x)
                tgt = (i + 1) * len(fill) * 4 // (3 * len(mm))
                while fi < len(fill) and fi < tgt:
                    self.emit(fill[fi]); fi += 1
            while fi < len(fill):
                self.emit(fill[fi]); fi += 1
            if k == self.KS // 2 - 1:
                A.stamp(3)
        A.stamp(4)
```

```python
from asmlib import *
import layout as L
from k0 import srd
import math

def gelu_consts():
    c0 = -2.0 * math.sqrt(2.0 / math.pi) * math.log2(math.e)
    return c0, c0 * 0.044715

class Gemm:
    def __init__(self, name, NB, NT, KS, NW, wb, wn, kps, NS):
        self.__dict__.update(locals())
        self.A = Asm()
        self.P = (NB + NT) * kps
        assert self.P % NW == 0
        self.ppw = self.P // NW
        self.slot = self.P * 1024
        self.lds = self.slot * NS
        assert (NB // wb) * (NT // wn) == NW

    def prologue(self, nwg):
        A = self.A
        name = self.name
        A(f".globl {name}\n.p2align 8\n.type {name},@function\n{name}:")
        A(f"s_cmp_ge_u32 s2, {nwg}")
        A(f"s_cbranch_scc1 {name}_END")
        A.stamp_init()
        A("s_load_dwordx2 s[16:17], s[0:1], 80")
        A("s_load_dwordx2 s[4:5], s[0:1], 0")
        A("s_load_dwordx2 s[6:7], s[0:1], 64")
        A("v_lshrrev_b32 v1, 6, v0")
        A("v_and_b32 v0, 63, v0")
        A("v_readfirstlane_b32 s3, v1")
        A("v_lshlrev_b32 v1, 4, v0")
        A("v_mov_b32 v2, v1")
        A("s_and_b32 s28, s2, 7")
        A("s_lshr_b32 s29, s2, 3")
        A("s_and_b32 s30, s29, 3")
        A("s_lshr_b32 s29, s29, 2")
        A("s_lshl_b32 s28, s28, 3")
        A("s_add_u32 s28, s28, s29")
        A("s_waitcnt lgkmcnt(0)")
        srd(A, 20, 16, L.WS_BYTES)

    def main(self, piece_base, acc0, frag0):
        A = self.A
        NB, NT, KS, NW, wb, wn, kps, NS, ppw = self.NB, self.NT, self.KS, self.NW, self.wb, self.wn, self.kps, self.NS, self.ppw
        nst = KS // kps
        nfr = (wb + wn) * kps
        nwin = (self.lds + 65535) // 65536
        RA, RW = 3, 3 + nwin
        ngr = NB // wb
        A(f"s_and_b32 s32, s3, {ngr-1}")
        A(f"s_lshr_b32 s33, s3, {int(math.log2(ngr))}")
        A(f"s_mul_i32 s34, s32, {wb*kps*1024}")
        A(f"s_mul_i32 s35, s33, {wn*kps*1024}")
        A(f"s_add_u32 s35, s35, {NB*kps*1024}")
        for w in range(nwin):
            A(f"v_add_u32 {v(RA+w)}, s34, v1")
            A(f"v_add_u32 {v(RW+w)}, s35, v1")
            if w + 1 < nwin:
                A("s_add_u32 s34, s34, 65536\ns_add_u32 s35, s35, 65536")
        A(f"s_mul_i32 s36, s3, {ppw*1024}")
        def dma(stage):
            sl = stage % NS
            out = []
            for i in range(ppw):
                out.append(f"s_add_u32 m0, s36, {sl*self.slot + i*1024}\nbuffer_load_dwordx4 v2, s[20:23], s{40+i} offen lds")
            out.append(f"v_add_u32 v2, {kps*1024}, v2")
            return out
        def reads(stage):
            sl = stage % NS
            st = frag0 + (stage & 1) * nfr * 4
            out = []
            for k in range(kps):
                for i in range(max(wb, wn)):
                    for (cnt, R, o) in ((wb, RA, 0), (wn, RW, wb)):
                        if i < cnt:
                            off = sl * self.slot + (i * kps + k) * 1024
                            w = off // 65536
                            r = st + ((k * (wb + wn)) + o + i) * 4
                            out.append(f"ds_read_b128 {v(r,4)}, {v(R+w)} offset:{off - w*65536}")
            return out
        def mfmas(stage):
            st = frag0 + (stage & 1) * nfr * 4
            out = []
            for k in range(kps):
                for n in range(wn):
                    for b in range(wb):
                        acc = acc0 + (b * wn + n) * 4
                        ra = st + (k * (wb + wn) + wb + n) * 4
                        rb = st + (k * (wb + wn) + b) * 4
                        c = "0" if (stage == 0 and k == 0) else v(acc, 4)
                        out.append(f"v_mfma_f32_16x16x32_bf16 {v(acc,4)}, {v(ra,4)}, {v(rb,4)}, {c}")
            return out
        for st in range(min(NS, nst)):
            for x in dma(st):
                A(x)
        A.stamp(1)
        self.extra_vm = getattr(self, "extra_vm", 0)
        if hasattr(self, "after_dma"):
            self.after_dma()
        ev = self.extra_vm
        def outstanding_after(stage_needed, issued_upto):
            return (issued_upto - stage_needed) * ppw
        issued = min(NS, nst) - 1
        A(f"s_waitcnt vmcnt({min(63, outstanding_after(0, issued) + ev)})")
        A("s_barrier")
        A.stamp(2)
        for x in reads(0):
            A(x)
        for st in range(nst):
            if st + 1 < nst:
                n = outstanding_after(st + 1, issued)
                if st + 1 <= min(NS, nst) - 1:
                    n += ev
                A(f"s_waitcnt vmcnt({min(63, n)}) lgkmcnt(0)")
                A("s_barrier")
            else:
                A("s_waitcnt lgkmcnt(0)")
            fill = []
            if st + NS < nst:
                fill += dma(st + NS)
                issued = st + NS
            if st + 1 < nst:
                fill = reads(st + 1) + fill
            mm = mfmas(st)
            per = len(fill) / len(mm)
            accu = 0.0
            fi = 0
            for x in mm:
                A(x)
                accu += per * 1.5
                while fi < len(fill) and fi < accu:
                    A(fill[fi]); fi += 1
            while fi < len(fill):
                A(fill[fi]); fi += 1
            if st == nst // 2 - 1:
                A.stamp(3)
        A.stamp(4)

    def finish(self, nwg, nvgpr):
        A = self.A
        A.endpgm()
        A(f"{self.name}_END:")
        A("s_endpgm")
        assert A.check_branches() == 0
        return self.name, A.text() + "\n" + kdesc(self.name, nvgpr, 0, 64), \
            f"; @launch kernel={self.name} grid=({nwg},1,1) block=({64*self.NW},1,1) lds={self.lds}"


def emit_gelu(A, regs, tmp, sc0, sc1):
    n = len(regs)
    for i in range(n):
        A(f"v_mul_f32 {v(tmp[i])}, {v(regs[i])}, {v(regs[i])}")
    for i in range(n):
        A(f"v_fma_f32 {v(tmp[i])}, {v(tmp[i])}, s{sc1}, {v(sc0)}")
    for i in range(n):
        A(f"v_mul_f32 {v(tmp[i])}, {v(tmp[i])}, {v(regs[i])}")
    for i in range(n):
        A(f"v_exp_f32 {v(tmp[i])}, {v(tmp[i])}")
    for i in range(n):
        A(f"v_add_f32 {v(tmp[i])}, 1.0, {v(tmp[i])}")
    for i in range(n):
        A(f"v_rcp_f32 {v(tmp[i])}, {v(tmp[i])}")
    for i in range(n):
        A(f"v_mul_f32 {v(regs[i])}, {v(regs[i])}, {v(tmp[i])}")


def gen_k1():
    g = Gemm("k1_gemm_kernel", NB=8, NT=24, KS=16, NW=8, wb=4, wn=6, kps=1, NS=4)
    A = g.A
    g.prologue(256)
    for i in range(4):
        d = 40 + i
        A(f"s_lshl_b32 s37, s3, 2\ns_add_u32 s37, s37, {i}")
        A(f"s_lshl_b32 s38, s28, 3\ns_add_u32 s38, s38, s37\ns_lshl_b32 s38, s38, 14")
        if L.XA:
            A(f"s_add_u32 s38, s38, {L.XA}")
        A("s_sub_u32 s39, s37, 8")
        A("s_mul_i32 s50, s39, 43\ns_lshr_b32 s50, s50, 8")
        A("s_mul_i32 s51, s50, 6\ns_sub_u32 s51, s39, s51")
        A("s_lshr_b32 s52, s51, 1\ns_lshl_b32 s52, s52, 5")
        A("s_and_b32 s51, s51, 1\ns_add_u32 s52, s52, s51")
        A("s_lshl_b32 s51, s30, 2\ns_add_u32 s51, s51, s50\ns_lshl_b32 s51, s51, 1\ns_add_u32 s52, s52, s51")
        A(f"s_lshl_b32 s52, s52, 14\ns_add_u32 s52, s52, {L.W1}")
        A("s_cmp_lt_u32 s37, 8")
        A(f"s_cselect_b32 s{d}, s38, s52")
    acc0, frag0 = 8, 104
    g.main(None, acc0, frag0)
    A("s_lshl_b32 s37, s28, 3\ns_lshl_b32 s38, s32, 2\ns_add_u32 s37, s37, s38\ns_lshl_b32 s37, s37, 14")
    A("s_lshl_b32 s38, s30, 2\ns_add_u32 s38, s38, s33")
    A("s_lshl_b32 s39, s38, 10\ns_add_u32 s37, s37, s39")
    A(f"s_add_u32 s40, s37, {L.QP}\ns_add_u32 s41, s37, {L.U}\ns_add_u32 s42, s37, {L.G}")
    c0, c1 = gelu_consts()
    tmp = list(range(frag0, frag0 + 16))
    pk = frag0 + 16
    st = frag0 + 64
    A(f"v_mov_b32 v3, {hex(f2u(c0))}\ns_mov_b32 s43, {hex(f2u(c1))}")
    for b in range(4):
        q = acc0 + (b * 6) * 4
        p = pk + 12 * b
        for i in range(4):
            A(f"v_cvt_pk_bf16_f32 {v(p+i)}, {v(q+2*i)}, {v(q+2*i+1)}")
        A(f"buffer_store_dwordx4 {v(p,4)}, v1, s[20:23], s40 offen")
        A("s_add_u32 s40, s40, 16384")
    for b in range(4):
        u = acc0 + (b * 6 + 2) * 4
        gq = u + 8
        p = pk + 12 * b
        emit_gelu(A, list(range(u, u + 16)), tmp, 3, 43)
        for i in range(4):
            A(f"v_cvt_pk_bf16_f32 {v(p+4+i)}, {v(u+2*i)}, {v(u+2*i+1)}")
        A(f"buffer_store_dwordx4 {v(p+4,4)}, v1, s[20:23], s41 offen")
        for i in range(4):
            A(f"v_cvt_pk_bf16_f32 {v(p+8+i)}, {v(gq+2*i)}, {v(gq+2*i+1)}")
        A(f"buffer_store_dwordx4 {v(p+8,4)}, v1, s[20:23], s42 offen")
        A("s_add_u32 s41, s41, 16384\ns_add_u32 s42, s42, 16384")
        A(f"v_add_f32 {v(st+b)}, {v(gq)}, {v(gq+1)}")
        A(f"v_mul_f32 {v(st+4+b)}, {v(gq)}, {v(gq)}")
        for i in range(1, 8):
            if i >= 2:
                A(f"v_add_f32 {v(st+b)}, {v(st+b)}, {v(gq+i)}")
            A(f"v_fmac_f32 {v(st+4+b)}, {v(gq+i)}, {v(gq+i)}")
    for o in (0, 4):
        A(f"v_permlane32_swap_b32 {v(st+o)}, {v(st+o+2)}")
        A(f"v_permlane32_swap_b32 {v(st+o+1)}, {v(st+o+3)}")
        A(f"v_add_f32 {v(st+o)}, {v(st+o)}, {v(st+o+2)}")
        A(f"v_add_f32 {v(st+o+1)}, {v(st+o+1)}, {v(st+o+3)}")
        A(f"v_permlane16_swap_b32 {v(st+o)}, {v(st+o+1)}")
        A(f"v_add_f32 {v(st+o)}, {v(st+o)}, {v(st+o+1)}")
    A(f"v_mov_b32 {v(st+1)}, {v(st+4)}")
    A("s_lshl_b32 s37, s28, 1\ns_add_u32 s37, s37, s32\ns_lshl_b32 s37, s37, 4\ns_add_u32 s37, s37, s38\ns_lshl_b32 s37, s37, 9")
    A(f"s_add_u32 s37, s37, {L.GST}")
    A("v_lshlrev_b32 v4, 3, v0")
    A(f"buffer_store_dwordx2 {v(st,2)}, v4, s[20:23], s37 offen")
    return g.finish(256, 184)
```

```python
from asmlib import *
import layout as L
import math

def srd(A, d, lo, nbytes):
    A(f"s_mov_b32 s{d}, s{lo}")
    A(f"s_and_b32 s{d+1}, s{lo+1}, 0xffff")
    A(f"s_mov_b32 s{d+2}, {nbytes}")
    A(f"s_mov_b32 s{d+3}, 0x20000")

def xlane_sum(A, x, t, levels):
    for lv in levels:
        if lv == 8:
            A(f"v_add_f32_dpp {v(x)}, {v(x)}, {v(x)} row_ror:8 row_mask:0xf bank_mask:0xf")
        else:
            A(f"v_mov_b32 {v(t)}, {v(x)}")
            A(f"v_permlane{lv}_swap_b32 {v(x)}, {v(t)}")
            A(f"v_add_f32 {v(x)}, {v(x)}, {v(t)}")

def chan_lane(A, dst, m, tmp):
    A(f"v_lshrrev_b32 {v(tmp)}, 2, {v(m)}")
    A(f"v_and_b32 {v(dst)}, 3, {v(m)}")
    A(f"v_lshl_add_u32 {v(dst)}, {v(tmp)}, 3, {v(dst)}")

NWG_K0 = 256 + 64 + 64 + 80

def gen_k0():
    A = Asm()
    name = "k0_prep_kernel"
    A(f".globl {name}\n.p2align 8\n.type {name},@function\n{name}:\n{name}_S:")
    A(f"s_cmp_ge_u32 s2, {NWG_K0}")
    A("s_cbranch_scc1 K0_END")
    A.stamp_init()
    A("s_load_dwordx4 s[4:7], s[0:1], 0")
    A("s_load_dwordx4 s[8:11], s[0:1], 16")
    A("s_load_dwordx2 s[12:13], s[0:1], 40")
    A("s_load_dwordx2 s[14:15], s[0:1], 56")
    A("s_load_dwordx2 s[16:17], s[0:1], 80")
    A("v_lshrrev_b32 v1, 6, v0")
    A("v_and_b32 v0, 63, v0")
    A("v_readfirstlane_b32 s3, v1")
    A("v_and_b32 v2, 15, v0")
    A("v_lshrrev_b32 v3, 4, v0")
    A("s_waitcnt lgkmcnt(0)")
    srd(A, 20, 16, L.WS_BYTES)
    A.prefetch_code("k0_prep_kernel_S", "k1_gemm_kernel_END", 32768, 208)
    A("s_cmp_ge_u32 s2, 384")
    A("s_cbranch_scc1 K0_TR")
    A("s_cmp_ge_u32 s2, 256")
    A("s_cbranch_scc1 K0_WW")
    srd(A, 24, 4, 2 * L.T * 1024)
    A("s_and_b32 s28, s2, 7")
    A("s_lshr_b32 s29, s2, 3")
    A("s_lshr_b32 s30, s28, 2")
    A("s_and_b32 s28, s28, 3")
    A("s_lshl_b32 s28, s28, 10")
    A("s_lshl_b32 s29, s29, 5")
    A("s_add_u32 s28, s28, s29")
    A("s_lshl_b32 s29, s3, 3")
    A("s_add_u32 s28, s28, s29")
    A(f"s_cmp_lt_u32 s28, {L.T}")
    A("s_cselect_b32 s26, s26, 0")
    A(f"s_mul_i32 s29, s30, {L.T}")
    A("s_add_u32 s29, s29, s28")
    A("s_lshl_b32 s29, s29, 10")
    A("v_and_b32 v4, 7, v0")
    A("v_lshrrev_b32 v5, 3, v0")
    A("v_lshlrev_b32 v6, 10, v4")
    A("v_lshl_add_u32 v6, v5, 4, v6")
    P = 8
    Uq = 40
    for jj in range(8):
        A(f"buffer_load_dwordx4 {v(P+4*jj,4)}, v6, s[24:27], s29 offen offset:{jj*128}")
    A(f"s_lshl_b32 s31, s30, 12")
    A("s_add_u32 s31, s31, s28")
    A("s_lshr_b32 s32, s31, 4")
    A("s_lshl_b32 s32, s32, 14")
    A("s_and_b32 s31, s31, 15")
    A("s_lshl_b32 s31, s31, 4")
    A("s_add_u32 s32, s32, s31")
    if L.XA:
        A(f"s_add_u32 s32, s32, {L.XA}")
    A("v_lshlrev_b32 v7, 4, v4")
    A("v_lshl_add_u32 v7, v5, 8, v7")
    A("s_mov_b32 s33, 0xffff0000")
    for jj in range(8):
        A(f"s_waitcnt vmcnt({7-jj})")
        for i in range(4):
            r = P + 4 * jj + i
            u = Uq + 2 * (4 * jj + i)
            A(f"v_lshlrev_b32 {v(u)}, 16, {v(r)}")
            A(f"v_and_b32 {v(u+1)}, s33, {v(r)}")
    A.stamp(1)
    acc = 104
    A(f"v_pk_add_f32 {v(acc,2)}, {v(Uq,2)}, {v(Uq+2,2)}")
    A(f"v_pk_add_f32 {v(acc+2,2)}, {v(Uq+4,2)}, {v(Uq+6,2)}")
    for i in range(4, 32):
        a = acc + 2 * (i & 1)
        A(f"v_pk_add_f32 {v(a,2)}, {v(a,2)}, {v(Uq+2*i,2)}")
    A(f"v_pk_add_f32 {v(acc,2)}, {v(acc,2)}, {v(acc+2,2)}")
    A(f"v_add_f32 {v(acc)}, {v(acc)}, {v(acc+1)}")
    xlane_sum(A, acc, acc + 1, (8, 16, 32))
    A(f"v_mul_f32 {v(acc)}, {hex(f2u(-1.0/512))}, {v(acc)}")
    for i in range(32):
        A(f"v_pk_add_f32 {v(Uq+2*i,2)}, {v(Uq+2*i,2)}, {v(acc,2)} op_sel_hi:[1,0]")
    q = 108
    A(f"v_pk_mul_f32 {v(q,2)}, {v(Uq,2)}, {v(Uq,2)}")
    A(f"v_pk_mul_f32 {v(q+2,2)}, {v(Uq+2,2)}, {v(Uq+2,2)}")
    for i in range(2, 32):
        a = q + 2 * (i & 1)
        A(f"v_pk_fma_f32 {v(a,2)}, {v(Uq+2*i,2)}, {v(Uq+2*i,2)}, {v(a,2)}")
    A(f"v_pk_add_f32 {v(q,2)}, {v(q,2)}, {v(q+2,2)}")
    A(f"v_add_f32 {v(q)}, {v(q)}, {v(q+1)}")
    xlane_sum(A, q, q + 1, (8, 16, 32))
    A(f"v_mov_b32 {v(q+1)}, {hex(f2u(1e-5))}")
    A(f"v_fmac_f32 {v(q+1)}, {hex(f2u(1.0/512))}, {v(q)}")
    A(f"v_rsq_f32 {v(q)}, {v(q+1)}")
    for jj in range(8):
        for i in range(4):
            u = Uq + 2 * (4 * jj + i)
            A(f"v_pk_mul_f32 {v(u,2)}, {v(u,2)}, {v(q,2)} op_sel_hi:[1,0]")
        for i in range(4):
            u = Uq + 2 * (4 * jj + i)
            A(f"v_cvt_pk_bf16_f32 {v(P+4*jj+i)}, {v(u)}, {v(u+1)}")
        if jj % 2 == 0 and jj:
            A("s_add_u32 s32, s32, 4096")
        A(f"buffer_store_dwordx4 {v(P+4*jj,4)}, v7, s[20:23], s32 offen offset:{(jj&1)*2048}")
    A.endpgm()
    A("K0_WW:")
    srd(A, 24, 6, 512 * 3072)
    srd(A, 28, 8, 512 * 1024)
    A("s_and_b32 s32, s2, 63")
    A("s_lshr_b32 s33, s32, 3")
    A("s_and_b32 s34, s32, 7")
    chan_lane(A, 4, 2, 5)
    A("s_movk_i32 s37, 3072")
    A("v_lshlrev_b32 v9, 4, v0")
    A("s_lshl_b32 s36, s3, 8")
    AF, BF, AC = 16, 80, 144
    A("s_cmp_ge_u32 s2, 320")
    A("s_cbranch_scc1 K0_VO")
    A("v_mul_lo_u32 v6, v4, s37")
    A("v_lshl_add_u32 v6, v3, 4, v6")
    A(f"s_mul_i32 s38, s34, {64*3072}\ns_add_u32 s38, s38, s36")
    A(f"s_mul_i32 s39, s33, {64*3072}\ns_add_u32 s39, s39, s36\ns_add_u32 s39, s39, 1024")
    for t in range(4):
        o = ((t >> 1) * 32 + (t & 1) * 4) * 3072
        A(f"s_add_u32 s{40+t}, s38, {o}\ns_add_u32 s{44+t}, s39, {o}")
    for ks in range(4):
        for t in range(4):
            A(f"buffer_load_dwordx4 {v(AF+(t*4+ks)*4,4)}, v6, s[24:27], s{40+t} offen offset:{ks*64}")
            A(f"buffer_load_dwordx4 {v(BF+(t*4+ks)*4,4)}, v6, s[24:27], s{44+t} offen offset:{ks*64}")
    c = 512 ** -0.5 * math.log2(math.e)
    A(f"s_mov_b32 s48, {hex(f2u(c))}")
    A(f"s_mov_b32 s49, {L.W1}")
    A("s_waitcnt vmcnt(0)")
    A("s_branch K0_MM")
    A("K0_VO:")
    A("v_lshrrev_b32 v5, 3, v2")
    A("v_and_b32 v6, 7, v2")
    A("v_lshl_add_u32 v6, v5, 7, v6")
    A("v_mul_lo_u32 v6, v6, s37")
    A("v_lshl_add_u32 v6, v3, 4, v6")
    A("v_lshrrev_b32 v7, 3, v0\nv_lshlrev_b32 v7, 10, v7\nv_and_b32 v8, 7, v0\nv_lshl_add_u32 v7, v8, 4, v7")
    A("s_lshl_b32 s39, s3, 17\ns_lshl_b32 s38, s33, 7\ns_add_u32 s39, s39, s38")
    A("s_lshl_b32 s50, s3, 14")
    for i in range(16):
        A(f"s_add_u32 m0, s50, {i*1024}")
        A("buffer_load_dwordx4 v7, s[28:31], s39 offen lds")
        A("s_add_u32 s39, s39, 8192")
    A("s_lshr_b32 s38, s34, 2\ns_lshl_b32 s38, s38, 8\ns_and_b32 s39, s34, 3\ns_lshl_b32 s39, s39, 5\ns_add_u32 s38, s38, s39")
    A("s_mul_i32 s38, s38, 3072\ns_add_u32 s38, s38, s36\ns_add_u32 s38, s38, 2048")
    for t in range(4):
        A(f"s_add_u32 s{40+t}, s38, {t*8*3072}")
    for ks in range(4):
        for t in range(4):
            A(f"buffer_load_dwordx4 {v(AF+(t*4+ks)*4,4)}, v6, s[24:27], s{40+t} offen offset:{ks*64}")
    A("v_bfe_u32 v7, v0, 2, 2\nv_lshl_add_u32 v7, v3, 3, v7\nv_lshlrev_b32 v7, 7, v7\nv_and_b32 v8, 3, v0\nv_lshl_add_u32 v7, v8, 4, v7")
    A("v_add_u32 v7, s50, v7")
    A("s_waitcnt vmcnt(16)")
    for ks in range(4):
        for t in range(4):
            o = ks * 4096 + (t >> 1) * 64 + (t & 1) * 8
            r = BF + (t * 4 + ks) * 4
            A(f"ds_read_b64_tr_b16 {v(r,2)}, v7 offset:{o}")
            A(f"ds_read_b64_tr_b16 {v(r+2,2)}, v7 offset:{o+512}")
        A("s_waitcnt lgkmcnt(0)")
    A("s_mov_b32 s48, 1.0")
    A(f"s_mov_b32 s49, {L.W2}")
    A("s_waitcnt vmcnt(0)")
    A("K0_MM:")
    for ks in range(4):
        for a in range(4):
            for b in range(4):
                ac = AC + (b * 4 + a) * 4
                cc = "0" if ks == 0 else v(ac, 4)
                A(f"v_mfma_f32_16x16x32_bf16 {v(ac,4)}, {v(AF+(a*4+ks)*4,4)}, {v(BF+(b*4+ks)*4,4)}, {cc}")
    A("s_lshl_b32 s50, s3, 14\nv_add_u32 v7, s50, v9")
    for i in range(16):
        A(f"ds_write_b128 v7, {v(AC+4*i,4)} offset:{i*1024}")
    A("s_waitcnt lgkmcnt(0)")
    A("s_barrier")
    A("s_lshl_b32 s50, s3, 12\nv_add_u32 v7, s50, v9")
    for src in range(4):
        for a in range(4):
            A(f"ds_read_b128 {v(AF+(src*4+a)*4,4)}, v7 offset:{src*16384+a*1024}")
        if src == 1:
            A("s_waitcnt lgkmcnt(0)")
    A("s_waitcnt lgkmcnt(0)")
    for src in range(1, 4):
        for i in range(8):
            A(f"v_pk_add_f32 {v(AF+2*i,2)}, {v(AF+2*i,2)}, {v(AF+src*16+2*i,2)}")
    for i in range(16):
        A(f"v_mul_f32 {v(AF+i)}, s48, {v(AF+i)}")
    for i in range(8):
        A(f"v_cvt_pk_bf16_f32 {v(BF+i)}, {v(AF+2*i)}, {v(AF+2*i+1)}")
    A("s_lshl_b32 s42, s33, 2\ns_add_u32 s42, s42, s3\ns_lshl_b32 s42, s42, 14\ns_lshl_b32 s43, s34, 11\ns_add_u32 s42, s42, s43\ns_add_u32 s42, s42, s49")
    A(f"buffer_store_dwordx4 {v(BF,4)}, v9, s[20:23], s42 offen")
    A(f"buffer_store_dwordx4 {v(BF+4,4)}, v9, s[20:23], s42 offen offset:1024")
    A.endpgm()
    A("K0_TR:")
    A("s_sub_u32 s32, s2, 384")
    A("s_lshl_b32 s32, s32, 2")
    A("s_add_u32 s32, s32, s3")
    A("s_mov_b32 s27, 0x20000")
    A("s_cmp_lt_u32 s32, 128")
    A("s_cbranch_scc0 K0_T2")
    A("s_mov_b32 s24, s10\ns_and_b32 s25, s11, 0xffff\ns_mov_b32 s26, 0x100000")
    A("s_lshr_b32 s33, s32, 3\ns_and_b32 s34, s32, 7\ns_mov_b32 s37, 11\ns_mov_b32 s36, 14")
    A(f"s_mov_b32 s42, {L.W1 + 32*16*1024}")
    A("s_branch K0_T9")
    A("K0_T2:")
    A("s_cmp_lt_u32 s32, 192")
    A("s_cbranch_scc0 K0_T3")
    A("s_sub_u32 s32, s32, 128")
    A("s_mov_b32 s24, s12\ns_and_b32 s25, s13, 0xffff\ns_mov_b32 s26, 0x80000")
    A("s_lshr_b32 s33, s32, 2\ns_and_b32 s34, s32, 3\ns_mov_b32 s37, 10\ns_mov_b32 s36, 14")
    A(f"s_mov_b32 s42, {L.W2 + 32*16*1024}")
    A("s_branch K0_T9")
    A("K0_T3:")
    A("s_sub_u32 s32, s32, 192")
    A("s_mov_b32 s24, s14\ns_and_b32 s25, s15, 0xffff\ns_mov_b32 s26, 0x100000")
    A("s_lshr_b32 s33, s32, 2\ns_and_b32 s34, s32, 3\ns_mov_b32 s37, 10\ns_mov_b32 s36, 15")
    A(f"s_mov_b32 s42, {L.W3}")
    A("K0_T9:")
    A("v_lshlrev_b32 v5, s37, v3\nv_lshl_add_u32 v5, v2, 4, v5")
    A("s_lshl_b32 s38, s33, 5\ns_lshl_b32 s38, s38, s37\ns_lshl_b32 s39, s34, 8\ns_add_u32 s38, s38, s39")
    A("s_lshl_b32 s39, 4, s37")
    A("s_lshl_b32 s50, s3, 13")
    for i in range(8):
        A(f"s_add_u32 m0, s50, {i*1024}")
        A("buffer_load_dwordx4 v5, s[24:27], s38 offen lds")
        A("s_add_u32 s38, s38, s39")
    A("v_bfe_u32 v7, v0, 2, 2\nv_lshl_add_u32 v7, v3, 3, v7\nv_lshlrev_b32 v7, 8, v7\nv_and_b32 v8, 3, v0\nv_lshl_add_u32 v7, v8, 4, v7")
    A("v_add_u32 v7, s50, v7")
    A("v_lshlrev_b32 v9, 4, v0")
    A("s_lshl_b32 s43, s34, 3\ns_lshl_b32 s43, s43, s36\ns_add_u32 s42, s42, s43\ns_lshl_b32 s43, s33, 10\ns_add_u32 s42, s42, s43")
    A("s_lshl_b32 s43, 1, s36")
    A("s_waitcnt vmcnt(0)")
    for h in range(2):
        for t in range(4 * h, 4 * h + 4):
            o = (t >> 1) * 64 + (t & 1) * 8
            A(f"ds_read_b64_tr_b16 {v(16+4*t,2)}, v7 offset:{o}")
            A(f"ds_read_b64_tr_b16 {v(18+4*t,2)}, v7 offset:{o+1024}")
        A("s_waitcnt lgkmcnt(0)")
        for t in range(4 * h, 4 * h + 4):
            A(f"buffer_store_dwordx4 {v(16+4*t,4)}, v9, s[20:23], s42 offen")
            A("s_add_u32 s42, s42, s43")
    A.endpgm()
    A("K0_END:")
    A("s_endpgm")
    assert A.check_branches() == 0
    return name, A.text() + "\n" + kdesc(name, 212, 0, 48), f"; @launch kernel={name} grid=({NWG_K0},1,1) block=(256,1,1) lds=65536"
```

```python
MB = 1 << 20
XA = 0
G = 8 * MB
QP = 16 * MB
U = 24 * MB
Z = 32 * MB
AT = 40 * MB
PO = 48 * MB
M = 80 * MB
MM = 96 * MB
W1 = 113 * MB
W2 = 115 * MB
W3 = 116 * MB
GST = 117 * MB
PML = 118 * MB
WS_BYTES = 268435456
T = 4000
TP = 4096
```

```python
from asmlib import *
import layout as L
from k0 import srd
from g4 import *
from gemm import gelu_consts, emit_gelu

IB = 4352
IG = 272
IMG = 10 * IB

def head(A, name, ptrs=()):
    A(f".globl {name}\n.p2align 8\n.type {name},@function\n{name}:\n{name}_S:")
    A("s_cmp_ge_u32 s2, 256")
    A(f"s_cbranch_scc1 {name}_END")
    A.stamp_init()
    A("s_load_dwordx2 s[16:17], s[0:1], 80")
    for (sreg, off) in ptrs:
        A(f"s_load_dwordx2 s[{sreg}:{sreg+1}], s[0:1], {off}")
    A("v_lshrrev_b32 v1, 6, v0")
    A("v_and_b32 v0, 63, v0")
    A("v_readfirstlane_b32 s3, v1")
    A("v_lshlrev_b32 v1, 4, v0")
    A("s_and_b32 s28, s2, 7\ns_lshr_b32 s29, s2, 3\ns_and_b32 s30, s29, 3\ns_lshr_b32 s29, s29, 2")
    A("s_lshl_b32 s28, s28, 3\ns_add_u32 s28, s28, s29")
    A("s_lshl_b32 s31, s30, 2\ns_add_u32 s31, s31, s3")
    A("s_mov_b32 s49, 0xffff0000")
    A("s_waitcnt lgkmcnt(0)")
    srd(A, 20, 16, L.WS_BYTES)

def tail(A, name, lds, nv=256, na=256):
    A.endpgm()
    A(f"{name}_END:")
    A("s_endpgm")
    assert A.check_branches() == 0
    return name, A.text() + "\n" + kdesc(name, nv, na, 100), f"; @launch kernel={name} grid=(256,1,1) block=(256,1,1) lds={lds}"

def phase_p1(A, vm, lk):
    A(f"s_lshl_b32 s32, s28, 17")
    if L.XA:
        A(f"s_add_u32 s32, s32, {L.XA}")
    for kind in range(3):
        for par in range(2):
            A(f"s_lshl_b32 s{34+kind*2+par}, s31, 15\ns_add_u32 s{34+kind*2+par}, s{34+kind*2+par}, {L.W1 + (kind*32+par)*16384}")
    g = G4(A, vm, lk, NB=8, wn=6, KS=16, kps=2, NS=4, WD=4, s_act=32, blk_stride=16384, s_w=list(range(34, 40)),
           acc0=16, fr0=256, w0=320, vl16=1, vt=2, st=50)
    g.setup()
    g.prefetch()
    A.stamp(1)
    g.run()
    A.prefetch_code("k2_attn_kernel_S", "K2_END", 32768, 8, vm=vm)
    A("s_lshl_b32 s40, s28, 17\ns_lshl_b32 s41, s31, 10\ns_add_u32 s40, s40, s41")
    A(f"s_add_u32 s41, s40, {L.U}\ns_add_u32 s42, s40, {L.G}\ns_add_u32 s40, s40, {L.QP}")
    c0, c1 = gelu_consts()
    tmp = list(range(208, 224))
    st = 224
    A(f"v_mov_b32 v6, {hex(f2u(c0))}\ns_mov_b32 s43, {hex(f2u(c1))}")
    for b in range(8):
        q = g.accs[(b, 0)]
        for i in range(4):
            A(f"v_cvt_pk_bf16_f32 {v(q+i)}, {v(q+2*i)}, {v(q+2*i+1)}")
        vm.issue("S", f"buffer_store_dwordx4 {v(q,4)}, v1, s[20:23], s40 offen")
        A("s_add_u32 s40, s40, 16384")
    for b in range(8):
        u, gq = g.accs[(b, 2)], g.accs[(b, 4)]
        emit_gelu(A, list(range(u, u + 8)) + list(range(gq, gq + 8)), tmp, 6, 43)
        for i in range(4):
            A(f"v_cvt_pk_bf16_f32 {v(u+i)}, {v(u+2*i)}, {v(u+2*i+1)}")
        vm.issue("S", f"buffer_store_dwordx4 {v(u,4)}, v1, s[20:23], s41 offen")
        for i in range(4):
            A(f"v_cvt_pk_bf16_f32 {v(u+4+i)}, {v(gq+2*i)}, {v(gq+2*i+1)}")
        vm.issue("S", f"buffer_store_dwordx4 {v(u+4,4)}, v1, s[20:23], s42 offen")
        A("s_add_u32 s41, s41, 16384\ns_add_u32 s42, s42, 16384")
        s1, s2 = st + (b >> 2) * 8 + (b & 3), st + (b >> 2) * 8 + 4 + (b & 3)
        A(f"v_add_f32 {v(s1)}, {v(gq)}, {v(gq+1)}")
        A(f"v_mul_f32 {v(s2)}, {v(gq)}, {v(gq)}")
        for i in range(1, 8):
            if i >= 2:
                A(f"v_add_f32 {v(s1)}, {v(s1)}, {v(gq+i)}")
            A(f"v_fmac_f32 {v(s2)}, {v(gq+i)}, {v(gq+i)}")
    A("s_lshl_b32 s37, s28, 5\ns_add_u32 s37, s37, s31\ns_lshl_b32 s37, s37, 9")
    A(f"s_add_u32 s37, s37, {L.GST}\ns_add_u32 s38, s37, 8192")
    A("v_lshlrev_b32 v7, 3, v0")
    for h in range(2):
        for o in (0, 4):
            x = st + h * 8 + o
            A(f"v_permlane32_swap_b32 {v(x)}, {v(x+2)}")
            A(f"v_permlane32_swap_b32 {v(x+1)}, {v(x+3)}")
            A(f"v_add_f32 {v(x)}, {v(x)}, {v(x+2)}")
            A(f"v_add_f32 {v(x+1)}, {v(x+1)}, {v(x+3)}")
            A(f"v_permlane16_swap_b32 {v(x)}, {v(x+1)}")
            A(f"v_add_f32 {v(x)}, {v(x)}, {v(x+1)}")
        x = st + h * 8
        A(f"v_mov_b32 {v(x+1)}, {v(x+4)}")
        vm.issue("S", f"buffer_store_dwordx2 {v(x,2)}, v7, s[20:23], s{37+h} offen")

def gen_k1n():
    A = Asm(); name = "k1_gemm_kernel"
    head(A, name)
    vm, lk = Q(A, "vmcnt", 63), Q(A, "lgkmcnt", 15)
    phase_p1(A, vm, lk)
    return tail(A, name, 65536, 256, 160)

def conv_wload(A, vm, W, srdreg, rowbytes, s_off, vtmp, tag):
    A(f"v_lshlrev_b32 {v(vtmp)}, 2, v0")
    per = 4096 // rowbytes
    for i in range(31):
        vm.issue(tag, f"buffer_load_dword {v(W+2*i+1)}, {v(vtmp)}, s[{srdreg}:{srdreg+3}], s{s_off} offen offset:{(i%per)*rowbytes}")
        if i % per == per - 1:
            A(f"s_add_u32 s{s_off}, s{s_off}, 4096")

def conv_wunpack(A, W, ident):
    for i in range(31):
        A(f"v_lshlrev_b32 {v(W+2*i)}, 16, {v(W+2*i+1)}")
        A(f"v_and_b32 {v(W+2*i+1)}, s49, {v(W+2*i+1)}")
    if ident:
        A(f"v_add_f32 {v(W+30)}, 1.0, {v(W+30)}\nv_add_f32 {v(W+31)}, 1.0, {v(W+31)}")

def conv_addr(A, img, VW, VR, t):
    A(f"v_lshrrev_b32 {v(t)}, 4, v0\nv_mul_u32_u24 {v(t)}, {IG}, {v(t)}")
    A(f"v_and_b32 {v(VW)}, 15, v0\nv_lshl_add_u32 {v(VW)}, {v(VW)}, 4, {v(t)}")
    A(f"s_mul_i32 s44, s3, {4*IG}\ns_add_u32 s44, s44, {img}")
    A(f"v_add_u32 {v(VW)}, s44, {v(VW)}")
    A(f"v_lshrrev_b32 {v(t)}, 2, v0\nv_mul_u32_u24 {v(t)}, {IG}, {v(t)}")
    A(f"v_and_b32 {v(VR)}, 3, v0\nv_lshl_add_u32 {v(VR)}, {v(VR)}, 2, {v(t)}")
    A(f"s_mul_i32 s44, s3, {2*IB}\ns_add_u32 s44, s44, {img}")
    A(f"v_add_u32 {v(VR)}, s44, {v(VR)}")
    for b in range(1, 4):
        A(f"v_add_u32 {v(VR+b)}, {b*IB}, {v(VR)}")

def conv_core(A, lk, W, ACC, XR, XU, VW, VR, OUT):
    def rd(k):
        b, r = (2 * k) >> 4, (2 * k) & 15
        lk.issue(("C", k), f"ds_read2_b32 {v(XR+2*(k&3),2)}, {v(VR+b)} offset0:{r*4} offset1:{r*4+4}")
    for k in range(3):
        rd(k)
    started = set()
    for k in range(32):
        if k + 3 < 32:
            rd(k + 3)
        lk.wait(("C", k))
        for h in range(2):
            rho = 2 * k + h
            if rho < 1 or rho > 62:
                continue
            xu = XU + 2 * (rho & 3)
            xr = XR + 2 * (k & 3) + h
            A(f"v_lshlrev_b32 {v(xu)}, 16, {v(xr)}")
            A(f"v_and_b32 {v(xu+1)}, s49, {v(xr)}")
            for o in range(32):
                i = rho - 1 - o
                if 0 <= i <= 30:
                    if o in started:
                        A(f"v_pk_fma_f32 {v(ACC+2*o,2)}, {v(xu,2)}, {v(W+2*i,2)}, {v(ACC+2*o,2)}")
                    else:
                        A(f"v_pk_mul_f32 {v(ACC+2*o,2)}, {v(xu,2)}, {v(W+2*i,2)}")
                        started.add(o)
    A("s_barrier")
    for o in range(32):
        A(f"v_cvt_pk_bf16_f32 {v(ACC+o)}, {v(ACC+2*o)}, {v(ACC+2*o+1)}")
    for k in range(16):
        b, r = (2 * k) >> 4, (2 * k) & 15
        A(f"ds_write2_b32 {v(VR+b)}, {v(ACC+2*k)}, {v(ACC+2*k+1)} offset0:{r*4} offset1:{r*4+4}")
    A("s_waitcnt lgkmcnt(0)")
    lk.q = []
    A("s_barrier")
    for b in range(8):
        lk.issue(("O", b), f"ds_read_b128 {v(OUT+4*b,4)}, {v(VW)} offset:{b*IB}")

def phase_z(A, vm, lk, pre=None):
    W, ACC, XR, XU, VW, VR = 16, 80, 144, 152, 8, 9
    GR, UR = 160, 200
    STT = IMG
    A("s_lshl_b32 s47, s3, 6\nv_add_u32 v13, s47, v0")
    A("s_lshl_b32 s47, s28, 7\ns_sub_u32 s47, s47, 16\nv_add_u32 v14, s47, v13")
    A("v_lshrrev_b32 v15, 6, v14\nv_and_b32 v15, 127, v15\nv_lshlrev_b32 v15, 13, v15")
    A("v_and_b32 v2, 63, v14\nv_lshl_add_u32 v15, v2, 3, v15")
    A(f"s_mov_b32 s47, {L.GST}\ns_add_u32 s48, s47, 4096")
    for i in range(16):
        vm.issue("ST", f"buffer_load_dwordx2 {v(ACC+2*i,2)}, v15, s[20:23], s{47+(i>>3)} offen offset:{(i&7)*512}")
    A(f"s_lshl_b32 s40, s28, 17\ns_lshl_b32 s41, s31, 10\ns_add_u32 s40, s40, s41")
    A(f"s_add_u32 s41, s40, {L.G - 16384}")
    for b in range(10):
        vm.issue(("G", b), f"buffer_load_dwordx4 {v(GR+4*b,4)}, v1, s[20:23], s41 offen")
        A("s_add_u32 s41, s41, 16384")
    A("s_lshl_b32 s42, s30, 8")
    conv_wload(A, vm, W, 24, 1024, 42, 2, "CW")
    conv_addr(A, 0, VW, VR, 3)
    vm.wait("ST")
    for i in range(1, 16):
        A(f"v_pk_add_f32 {v(ACC,2)}, {v(ACC,2)}, {v(ACC+2*i,2)}")
    A(f"v_mul_f32 {v(ACC)}, {hex(f2u(1/512))}, {v(ACC)}")
    A(f"v_mul_f32 {v(ACC+1)}, {hex(f2u(1/512))}, {v(ACC+1)}")
    A(f"v_fma_f32 {v(ACC+1)}, -{v(ACC)}, {v(ACC)}, {v(ACC+1)}")
    A(f"v_max_f32 {v(ACC+1)}, 0, {v(ACC+1)}")
    A(f"v_add_f32 {v(ACC+1)}, {hex(f2u(1e-5))}, {v(ACC+1)}")
    A(f"v_rsq_f32 {v(ACC+2)}, {v(ACC+1)}")
    A(f"v_mul_f32 {v(ACC+3)}, {v(ACC)}, {v(ACC+2)}")
    A(f"v_sub_f32 {v(ACC+3)}, 0, {v(ACC+3)}")
    A("v_and_b32 v2, 4095, v14")
    A(f"s_movk_i32 s47, {L.T}\ns_movk_i32 s48, 8192")
    A("v_cmp_gt_u32 vcc, s47, v2")
    A("v_cmp_gt_u32 s[50:51], s48, v14")
    A("s_and_b64 vcc, vcc, s[50:51]")
    A("s_nop 1")
    A(f"v_cndmask_b32 {v(ACC+2)}, 0, {v(ACC+2)}, vcc")
    A(f"v_cndmask_b32 {v(ACC+3)}, 0, {v(ACC+3)}, vcc")
    A("v_lshlrev_b32 v2, 3, v13")
    A(f"ds_write_b64 v2, {v(ACC+2,2)} offset:{STT}")
    A(f"s_add_u32 s41, s40, {L.U}")
    for b in range(8):
        vm.issue(("U", b), f"buffer_load_dwordx4 {v(UR+4*b,4)}, v1, s[20:23], s41 offen")
        A("s_add_u32 s41, s41, 16384")
    A("s_waitcnt lgkmcnt(0)")
    A("s_barrier")
    A("v_and_b32 v2, 15, v0\nv_lshlrev_b32 v2, 3, v2")
    for b in range(10):
        lk.issue(("T", b), f"ds_read_b64 {v(ACC+2*b,2)}, v2 offset:{STT + b*128}")
    for b in range(10):
        waits(A, vm, [("G", b)], lk, [("T", b)])
        t = ACC + 24 + 8 * (b & 1)
        for e in range(4):
            A(f"v_lshlrev_b32 {v(t+2*e)}, 16, {v(GR+4*b+e)}\nv_and_b32 {v(t+2*e+1)}, s49, {v(GR+4*b+e)}")
        for e in range(4):
            A(f"v_pk_fma_f32 {v(t+2*e,2)}, {v(t+2*e,2)}, {v(ACC+2*b,2)}, {v(ACC+2*b,2)} op_sel:[0,0,1] op_sel_hi:[1,0,1]")
        for e in range(4):
            A(f"v_cvt_pk_bf16_f32 {v(GR+4*b+e)}, {v(t+2*e)}, {v(t+2*e+1)}")
        lk.issue("wr", f"ds_write_b128 {v(VW)}, {v(GR+4*b,4)} offset:{b*IB}")
    vm.wait("CW")
    conv_wunpack(A, W, False)
    if pre:
        pre()
    A("s_waitcnt lgkmcnt(0)")
    lk.q = []
    A("s_barrier")
    A.stamp(2)
    conv_core(A, lk, W, ACC, XR, XU, VW, VR, GR)
    A.stamp(3)
    A(f"s_add_u32 s41, s40, {L.Z}")
    for b in range(8):
        waits(A, vm, [("U", b)], lk, [("O", b)])
        t = ACC + 16 * (b & 1)
        for e in range(4):
            A(f"v_lshlrev_b32 {v(t+2*e)}, 16, {v(GR+4*b+e)}\nv_and_b32 {v(t+2*e+1)}, s49, {v(GR+4*b+e)}")
            A(f"v_lshlrev_b32 {v(t+8+2*e)}, 16, {v(UR+4*b+e)}\nv_and_b32 {v(t+8+2*e+1)}, s49, {v(UR+4*b+e)}")
        for e in range(4):
            A(f"v_pk_mul_f32 {v(t+2*e,2)}, {v(t+2*e,2)}, {v(t+8+2*e,2)}")
        for e in range(4):
            A(f"v_cvt_pk_bf16_f32 {v(GR+4*b+e)}, {v(t+2*e)}, {v(t+2*e+1)}")
        vm.issue("S", f"buffer_store_dwordx4 {v(GR+4*b,4)}, v1, s[20:23], s41 offen")
        A("s_add_u32 s41, s41, 16384")

def comb_loads(A, vm):
    A("s_lshl_b32 s52, s28, 2\ns_add_u32 s52, s52, s30")
    A("v_and_b32 v4, 15, v0\nv_lshlrev_b32 v4, 2, v4")
    A(f"s_lshl_b32 s53, s52, 8\ns_lshr_b32 s54, s3, 1\ns_lshl_b32 s54, s54, 6\ns_add_u32 s53, s53, s54\ns_add_u32 s53, s53, {L.PML}")
    for sp in range(4):
        vm.issue("ML", f"buffer_load_dword {a_(128+sp)}, v4, s[20:23], s53 offen")
        vm.issue("ML", f"buffer_load_dword {a_(132+sp)}, v4, s[20:23], s53 offen offset:128")
        A("s_add_u32 s53, s53, 65536")
    A("s_lshl_b32 s55, s52, 15\ns_lshl_b32 s54, s3, 13\ns_add_u32 s55, s55, s54")
    for sp in range(4):
        A(f"s_add_u32 s{56+2*sp}, s55, {L.PO + sp*(8<<20)}\ns_add_u32 s{57+2*sp}, s{56+2*sp}, 4096")
    for f in range(8):
        for sp in range(4):
            vm.issue(("P", f), f"buffer_load_dwordx4 {a_(16*f+4*sp,4)}, v1, s[20:23], s{56+2*sp+(f>>2)} offen offset:{(f&3)*1024}")

def phase_comb(A, vm, lk):
    vm.wait("ML")
    for i in range(8):
        A(f"v_accvgpr_read_b32 {v(16+i)}, {a_(128+i)}")
    A("v_max3_f32 v24, v16, v17, v18\nv_max_f32 v24, v24, v19")
    for sp in range(4):
        A(f"v_sub_f32 {v(16+sp)}, {v(16+sp)}, v24")
    for sp in range(4):
        A(f"v_exp_f32 {v(16+sp)}, {v(16+sp)}")
    A("v_mul_f32 v25, v16, v20\nv_fmac_f32 v25, v17, v21\nv_fmac_f32 v25, v18, v22\nv_fmac_f32 v25, v19, v23")
    A("v_rcp_f32 v25, v25")
    A("s_and_b32 s53, s52, 127\ns_cmp_lt_u32 s53, 125\ns_cselect_b32 s53, 1.0, 0")
    A("v_mul_f32 v25, s53, v25")
    wr = [26, 28, 30, 32]
    for sp in range(4):
        A(f"v_mul_f32 {v(wr[sp])}, {v(16+sp)}, v25")
    A(f"s_add_u32 s44, s55, {L.AT}\ns_add_u32 s45, s44, 4096")
    for f in range(8):
        vm.wait(("P", f))
        acc, t, raw, o = 40, 48, 56, 64 + 4 * f
        for sp in range(4):
            for e in range(4):
                A(f"v_accvgpr_read_b32 {v(raw+e)}, {a_(16*f+4*sp+e)}")
            for e in range(4):
                A(f"v_lshlrev_b32 {v(t+2*e)}, 16, {v(raw+e)}\nv_and_b32 {v(t+2*e+1)}, s49, {v(raw+e)}")
            for e in range(4):
                if sp == 0:
                    A(f"v_pk_mul_f32 {v(acc+2*e,2)}, {v(t+2*e,2)}, {v(wr[sp],2)} op_sel_hi:[1,0]")
                else:
                    A(f"v_pk_fma_f32 {v(acc+2*e,2)}, {v(t+2*e,2)}, {v(wr[sp],2)}, {v(acc+2*e,2)} op_sel_hi:[1,0,1]")
        for e in range(4):
            A(f"v_cvt_pk_bf16_f32 {v(o+e)}, {v(acc+2*e)}, {v(acc+2*e+1)}")
        vm.issue("S", f"buffer_store_dwordx4 {v(o,4)}, v1, s[20:23], s{44+(f>>2)} offen offset:{(f&3)*1024}")

def gen_k3n():
    A = Asm(); name = "k3_comb_kernel"
    head(A, name, [(18, 32)])
    srd(A, 24, 18, 31 * 1024)
    vm, lk = Q(A, "vmcnt", 63), Q(A, "lgkmcnt", 15)
    phase_z(A, vm, lk, pre=lambda: comb_loads(A, vm))
    A.stamp(4)
    A.prefetch_code("k4_gemm_kernel_S", "k4_gemm_kernel_END", 32768, 2, vm=vm)
    phase_comb(A, vm, lk)
    return tail(A, name, IMG + 2048, 256, 136)

def p4_make(A, vm, lk, half, w0, st, vt):
    src = L.Z if half else L.AT
    A(f"s_lshl_b32 s32, s28, 17\ns_add_u32 s32, s32, {src - 16384}")
    sw = [60 + 2 * half, 61 + 2 * half]
    for par in range(2):
        A(f"s_lshl_b32 s{sw[par]}, s31, 15\ns_add_u32 s{sw[par]}, s{sw[par]}, {L.W2 + (half*32+par)*16384}")
    g = G4(A, vm, lk, NB=10, wn=2, KS=16, kps=2, NS=4, WD=16, s_act=32, blk_stride=16384, s_w=sw,
           acc0=16, fr0=96, w0=w0, vl16=1, vt=vt, st=st)
    g.setup()
    return g

def p4_finish(A, vm, lk, g, half, img, pre=None):
    W, ACC, XR, XU, VW, VR = 176, 96, 160, 168, 238, 239
    for b in range(10):
        q = g.accs[(b, 0)]
        for i in range(4):
            A(f"v_cvt_pk_bf16_f32 {v(q+i)}, {v(q+2*i)}, {v(q+2*i+1)}")
        lk.issue("wr", f"ds_write_b128 {v(VW)}, {v(q,4)} offset:{b*IB}")
    vm.wait("CW")
    conv_wunpack(A, W, True)
    A("s_waitcnt lgkmcnt(0)")
    lk.q = []
    A("s_barrier")
    if pre:
        pre()
    conv_core(A, lk, W, ACC, XR, XU, VW, VR, 16)
    A(f"s_lshl_b32 s40, s28, 18\ns_lshl_b32 s41, s31, 10\ns_add_u32 s40, s40, s41\ns_add_u32 s40, s40, {L.MM + half*16384}")
    for b in range(8):
        lk.wait(("O", b))
        vm.issue("S", f"buffer_store_dwordx4 {v(16+4*b,4)}, v1, s[20:23], s40 offen")
        A("s_add_u32 s40, s40, 32768")

def gen_k4n():
    A = Asm(); name = "k4_gemm_kernel"
    head(A, name, [(18, 48)])
    srd(A, 24, 18, 31 * 2048)
    vm, lk = Q(A, "vmcnt", 63), Q(A, "lgkmcnt", 15)
    img = 81920
    g1 = p4_make(A, vm, lk, 1, 256, 50, 2)
    g1.prefetch(nw=8)
    conv_addr(A, img, 238, 239, 6)
    def cw(half):
        A(f"s_lshl_b32 s42, s30, 8\ns_add_u32 s42, s42, {half*1024}")
        conv_wload(A, vm, 176, 24, 2048, 42, 6, "CW")
    A.stamp(1)
    g1.run()
    cw(1)
    g0 = [None]
    def pre():
        g0[0] = p4_make(A, vm, lk, 0, 384, 66, 8)
        g0[0].prefetch()
    p4_finish(A, vm, lk, g1, 1, img, pre)
    A.stamp(5)
    A("s_nop 1")
    cw(0)
    A.prefetch_code("k5_gemm_kernel_S", "k5_gemm_kernel_END", 32768, 12, vm=vm)
    g0[0].run()
    p4_finish(A, vm, lk, g0[0], 0, img)
    return tail(A, name, img + IMG, 256, 256)

def gen_k5n():
    A = Asm(); name = "k5_gemm_kernel"
    head(A, name, [(4, 0), (6, 64)])
    srd(A, 8, 4, 2 * L.T * 1024)
    srd(A, 12, 6, 2 * L.T * 1024)
    vm, lk = Q(A, "vmcnt", 63), Q(A, "lgkmcnt", 15)
    A(f"s_lshl_b32 s32, s28, 18\ns_add_u32 s32, s32, {L.MM}")
    for par in range(2):
        A(f"s_lshl_b32 s{34+par}, s31, 16\ns_add_u32 s{34+par}, s{34+par}, {L.W3 + par*32768}")
    g = G4(A, vm, lk, NB=8, wn=2, KS=32, kps=2, NS=8, WD=16, s_act=32, blk_stride=32768, s_w=[34, 35],
           acc0=16, fr0=80, w0=256, vl16=1, vt=2, st=50)
    g.setup()
    g.prefetch(nw=12)
    XR = 144
    A("v_and_b32 v7, 15, v0\nv_lshlrev_b32 v7, 10, v7\nv_lshrrev_b32 v8, 4, v0\nv_lshl_add_u32 v7, v8, 4, v7")
    A("s_lshr_b32 s60, s28, 5\ns_and_b32 s61, s28, 31\ns_lshl_b32 s61, s61, 7")
    A(f"s_mul_i32 s60, s60, {L.T}\ns_lshl_b32 s62, s31, 6")
    for b in range(8):
        A(f"s_add_u32 s63, s61, {16*b}\ns_add_u32 s64, s63, s60\ns_lshl_b32 s64, s64, 10\ns_add_u32 s64, s64, s62")
        A(f"s_cmp_lt_u32 s63, {L.T}\ns_cselect_b32 s{66+b}, s64, 0x40000000")
    def extra(k):
        if 20 <= k < 28:
            b = k - 20
            return [(("X", b), f"buffer_load_dwordx4 {v(XR+4*b,4)}, v7, s[8:11], s{66+b} offen")]
        return []
    A.stamp(1)
    g.run(extra)
    for b in range(8):
        vm.wait(("X", b))
        q = g.accs[(b, 0)]
        x = XR + 4 * b
        t = 80 + 8 * (b & 1)
        for i in range(4):
            A(f"v_lshlrev_b32 {v(t+2*i)}, 16, {v(x+i)}\nv_and_b32 {v(t+2*i+1)}, s49, {v(x+i)}")
        for i in range(4):
            A(f"v_pk_add_f32 {v(q+2*i,2)}, {v(q+2*i,2)}, {v(t+2*i,2)}")
        for i in range(4):
            A(f"v_cvt_pk_bf16_f32 {v(x+i)}, {v(q+2*i)}, {v(q+2*i+1)}")
        vm.issue("S", f"buffer_store_dwordx4 {v(x,4)}, v7, s[12:15], s{66+b} offen")
    return tail(A, name, 131072, 256, 128)
```

```python
import sys
from k0 import gen_k0
from mega import gen_mega
ks = [gen_mega()]
ref = open("standalone__conformer_family_e_branchformer__speech.s.ref").read().split("\n")
hdr = [l for l in ref if l.startswith(";") and "@launch" not in l and "Override" not in l and "grid=ceil" not in l][:12]
out = "\n".join(hdr) + "\n" + "\n".join(k[2] for k in ks) + "\n"
out += '.amdgcn_target "amdgcn-amd-amdhsa--gfx950"\n.text\n'
out += "\n".join(k[1] for k in ks) + "\n"
dst = sys.argv[1] if len(sys.argv) > 1 else "standalone__conformer_family_e_branchformer__speech.s"
open(dst, "w").write(out)
print("wrote", dst, len(out))
```

```python
import re

TRANS = ("v_exp_f32", "v_log_f32", "v_rcp_f32", "v_rsq_f32", "v_sqrt_f32", "v_sin_f32", "v_cos_f32")

_reg_re = re.compile(r"^(-|abs\(|\|)?([vas])(\d+)\)?\|?$")
_rng_re = re.compile(r"^(-|abs\(|\|)?([vas])\[(\d+):(\d+)\]\)?\|?$")


def regs_of(op):
    op = op.strip()
    m = _reg_re.match(op)
    if m:
        return [(m.group(2), int(m.group(3)))]
    m = _rng_re.match(op)
    if m:
        return [(m.group(2), i) for i in range(int(m.group(3)), int(m.group(4)) + 1)]
    if op == "vcc":
        return [("s", "vcc")]
    if op == "exec":
        return [("s", "exec")]
    if op == "m0":
        return [("s", "m0")]
    return []


def split_ops(s):
    out, cur, depth = [], "", 0
    for ch in s:
        if ch == "[":
            depth += 1
        if ch == "]":
            depth -= 1
        if ch == "," and depth == 0:
            out.append(cur.strip())
            cur = ""
        else:
            cur += ch
    if cur.strip():
        out.append(cur.strip())
    return out


class Ins:
    __slots__ = ("text", "mn", "cls", "w", "r", "ws", "passes", "srcc", "dst", "ab", "data", "lds", "dpp")

    def __init__(self, text):
        self.text = text
        t = text.split(";")[0].strip()
        self.w, self.r = set(), set()
        self.ws = 1
        self.passes = 0
        self.srcc, self.dst, self.ab, self.data = [], [], [], []
        self.lds = False
        self.dpp = False
        if not t or t.endswith(":") or t.startswith("."):
            self.mn, self.cls, self.ws = "", "label", 0
            return
        parts = t.split(None, 1)
        mn = parts[0]
        self.mn = mn
        rest = parts[1] if len(parts) > 1 else ""
        ops = split_ops(rest)
        mods = ""
        if ops:
            sp = ops[-1].split(None, 1)
            if len(sp) > 1 and not ops[-1].startswith("abs("):
                ops[-1], mods = sp[0], sp[1]
        R = [regs_of(o) for o in ops]
        if mn == "s_nop":
            self.cls, self.ws = "nop", int(ops[0], 0) + 1
        elif mn.startswith("v_mfma"):
            self.cls = "mfma"
            self.passes = 8 if "32x32" in mn else (2 if "4x4x4" in mn else 4)
            self.dst, self.ab, self.srcc = R[0], R[1] + R[2], R[3]
            self.w |= set(R[0])
            self.r |= set(R[1] + R[2] + R[3])
        elif mn.startswith("v_"):
            self.cls = "trans" if mn.replace("_e32", "").replace("_e64", "") in TRANS else "valu"
            if "dpp" in mn or "row_" in mods or "quad_perm" in mods:
                self.dpp = True
            if mn.startswith("v_cmp"):
                self.w |= set(R[0])
                for x in R[1:]:
                    self.r |= set(x)
            elif mn.startswith("v_permlane") and "swap" in mn:
                self.w |= set(R[0] + R[1])
                self.r |= set(R[0] + R[1])
            elif mn.startswith(("v_add_co", "v_sub_co", "v_addc_co", "v_subb_co")):
                self.w |= set(R[0] + R[1])
                for x in R[2:]:
                    self.r |= set(x)
            else:
                self.w |= set(R[0])
                for x in R[1:]:
                    self.r |= set(x)
                if mn.startswith(("v_fmac", "v_dot2c", "v_pk_fmac", "v_writelane")) or self.dpp:
                    self.r |= set(R[0])
                if mn.startswith("v_cndmask") and len(ops) == 3:
                    self.r.add(("s", "vcc"))
        elif mn.startswith("ds_"):
            self.cls = "ds"
            if mn.startswith(("ds_read", "ds_bpermute", "ds_permute", "ds_swizzle")):
                self.w |= set(R[0])
                for x in R[1:]:
                    self.r |= set(x)
            else:
                for x in R:
                    self.r |= set(x)
        elif mn.startswith(("buffer_", "global_")):
            self.cls = "vmem"
            if " lds" in (" " + mods) :
                self.lds = True
                for x in R:
                    self.r |= set(x)
                self.r.add(("s", "m0"))
            elif "load" in mn:
                self.w |= set(R[0])
                for x in R[1:]:
                    self.r |= set(x)
                if "d16" in mn:
                    self.r |= set(R[0])
            else:
                for x in R:
                    self.r |= set(x)
                d = R[0] if mn.startswith("buffer_") else R[1]
                if mn.endswith(("x3", "x4")):
                    self.data = d
        elif mn.startswith("s_"):
            self.cls = "salu"
            if mn.startswith(("s_cmp", "s_cbranch", "s_branch", "s_waitcnt", "s_barrier", "s_endpgm", "s_setprio", "s_sleep")):
                for x in R:
                    self.r |= set(x)
            else:
                if R:
                    self.w |= set(R[0])
                for x in R[1:]:
                    self.r |= set(x)
                if "saveexec" in mn:
                    self.w.add(("s", "exec"))
        else:
            raise ValueError("unknown instr " + text)


def need(p, c):
    n = 0
    pv = p.cls in ("valu", "trans")
    cv = c.cls in ("valu", "trans")
    if pv:
        wv = {x for x in p.w if x[0] != "s"}
        wsg = {x for x in p.w if x[0] == "s"}
        if c.cls == "mfma" and wv & c.r:
            n = max(n, 2)
        if wsg & c.r:
            if c.cls == "vmem":
                n = max(n, 5)
            if cv:
                n = max(n, 4 if c.mn.startswith(("v_readlane", "v_writelane")) else 2)
        if cv and wv & c.r:
            if c.mn.startswith(("v_readfirstlane", "v_readlane")):
                n = max(n, 1)
            if c.mn.startswith("v_permlane") or c.dpp:
                n = max(n, 2)
            if p.cls == "trans" and c.cls != "trans":
                n = max(n, 1)
    if p.cls == "mfma":
        ix = {2: 0, 4: 1, 8: 2}[p.passes]
        if c.cls == "mfma":
            if p.w & set(c.ab):
                n = max(n, (5, 8, 12)[ix])
            if p.w & set(c.srcc):
                if not (p.dst == c.srcc and p.passes == c.passes):
                    n = max(n, (4, 6, 10)[ix])
                elif p.passes == 2:
                    n = max(n, 2)
        elif c.cls in ("valu", "trans", "ds", "vmem"):
            if p.w & (c.r | c.w):
                n = max(n, (5, 8, 12)[ix])
            if cv and set(p.srcc) & c.w:
                n = max(n, (1, 3, 7)[ix])
    if p.cls == "salu" and ("s", "m0") in p.w and c.lds:
        n = max(n, 1)
    if p.cls == "vmem" and p.data and set(p.data) & c.w:
        n = max(n, 2 if cv else 1)
    return n


import os
STAMPS = bool(os.environ.get("STAMPS"))
TS_BASE = 120 << 20
_kidx = [0]
SB = 72
NST = 12

class Asm:
    def stamp(self, n):
        if STAMPS:
            self(f"s_memrealtime s[{SB+2*n}:{SB+1+2*n}]")

    def stamp_init(self):
        if STAMPS:
            self.kidx = _kidx[0]; _kidx[0] += 1
            for n in range(1, NST):
                self(f"s_mov_b32 s{SB+2*n}, 0")
            self.stamp(0)

    def endpgm(self):
        if STAMPS:
            lb = self.label("NOSTAMP%d" % self.kidx)
            self("s_waitcnt vmcnt(0)")
            self.stamp(NST - 1)
            self("s_waitcnt lgkmcnt(0)")
            for n in range(NST):
                self(f"v_mov_b32 v{4+n}, s{SB+2*n}")
            self(f"s_lshl_b32 s{SB}, s2, 3\ns_add_u32 s{SB}, s{SB}, s3\ns_lshl_b32 s{SB}, s{SB}, 6\ns_add_u32 s{SB}, s{SB}, {TS_BASE + self.kidx * 524288}")
            self("v_mov_b32 v0, 0\ns_mov_b64 exec, 1")
            for n in range(NST // 4):
                self(f"buffer_store_dwordx4 v[{4+4*n}:{7+4*n}], v0, s[20:23], s{SB} offen offset:{16*n}")
        self("s_endpgm")

    def prefetch_code(self, start, end, nbytes, vt, nwaves=4, sr=96, vm=None):
        lb = self.label("PC" + start)
        self(f"s_getpc_b64 s[{sr}:{sr+1}]")
        self(f"{lb}:")
        self(f"s_add_u32 s{sr}, s{sr}, {start}-{lb}")
        self(f"s_addc_u32 s{sr+1}, s{sr+1}, ({start}-{lb})>>32")
        self(f"s_and_b32 s{sr+1}, s{sr+1}, 0xffff")
        self(f"s_mov_b32 s{sr+2}, {end}-{start}")
        self(f"s_mov_b32 s{sr+3}, 0x20000")
        self(f"s_lshl_b32 s{sr+4}, s3, 13")
        self(f"v_lshlrev_b32 v{vt}, 7, v0")
        n = (nbytes + nwaves * 8192 - 1) // (nwaves * 8192)
        for i in range(n):
            t = f"buffer_load_dword v{vt+1}, v{vt}, s[{sr}:{sr+3}], s{sr+4} offen"
            if vm is not None:
                vm.issue("PC", t)
            else:
                self(t)
            if i + 1 < n:
                self(f"s_add_u32 s{sr+4}, s{sr+4}, {nwaves*8192}")
        return n

    def __init__(self):
        self.lines = []
        self.auto = True
        self.nlabel = 0
        self.inserted = 0

    def __call__(self, text):
        for ln in text.split("\n"):
            ln = ln.strip()
            if not ln:
                continue
            ins = Ins(ln)
            if self.auto and ins.cls not in ("label", "nop"):
                d = 0
                req = 0
                for p in reversed(self.lines):
                    if d >= 20:
                        break
                    if p.cls not in ("label", "nop"):
                        req = max(req, need(p, ins) - d)
                    d += p.ws
                if req > 0:
                    self.lines.append(Ins(f"s_nop {req - 1}"))
                    self.inserted += 1
            self.lines.append(ins)

    def label(self, prefix="L"):
        self.nlabel += 1
        return f"{prefix}_{self.nlabel}"

    def check_branches(self):
        pos = {}
        for i, x in enumerate(self.lines):
            t = x.text.split(";")[0].strip()
            if x.cls == "label" and t.endswith(":"):
                pos[t[:-1]] = i
        bad = 0
        for i, x in enumerate(self.lines):
            if x.mn.startswith(("s_cbranch", "s_branch")):
                tgt = x.text.split(";")[0].split()[1]
                if tgt not in pos:
                    continue
                j = pos[tgt]
                dc = 0
                for c in self.lines[j:j + 40]:
                    if dc >= 20:
                        break
                    if c.cls not in ("label", "nop"):
                        d = dc
                        for p in reversed(self.lines[max(0, i - 40):i + 1]):
                            if d >= 20:
                                break
                            if p.cls not in ("label", "nop") and need(p, c) > d:
                                print(f"HAZARD across branch {x.text}: '{p.text}' -> '{c.text}' need {need(p,c)} have {d}")
                                bad += 1
                            d += p.ws
                    dc += c.ws
                    if c.mn in ("s_branch", "s_endpgm"):
                        break
        return bad

    def text(self):
        out = []
        for x in self.lines:
            out.append(x.text if x.cls == "label" else "  " + x.text)
        return "\n".join(out)


def v(a, n=1):
    return f"v{a}" if n == 1 else f"v[{a}:{a+n-1}]"


def a_(a, n=1):
    return f"a{a}" if n == 1 else f"a[{a}:{a+n-1}]"


def s(a, n=1):
    return f"s{a}" if n == 1 else f"s[{a}:{a+n-1}]"


def f2u(x):
    import struct
    return struct.unpack("<I", struct.pack("<f", x))[0]


def kdesc(name, vgpr, agpr, sgpr=102):
    sgpr = 102
    acc = (vgpr + 3) // 4 * 4
    tot = acc + agpr if agpr else vgpr
    return f""".section .rodata,"a"
.p2align 6
.amdhsa_kernel {name}
  .amdhsa_next_free_vgpr {tot}
  .amdhsa_next_free_sgpr {sgpr}
  .amdhsa_accum_offset {acc}
  .amdhsa_group_segment_fixed_size 0
  .amdhsa_kernarg_size 88
  .amdhsa_user_sgpr_count 2
  .amdhsa_user_sgpr_kernarg_segment_ptr 1
  .amdhsa_system_sgpr_workgroup_id_x 1
  .amdhsa_float_denorm_mode_32 3
.end_amdhsa_kernel
.text"""
```

```python
from asmlib import *
import layout as L
import math

MF = "v_mfma_f32_16x16x32_bf16"

def R(x, n=1):
    if x >= 256:
        return a_(x - 256, n)
    assert x + n <= 256
    return v(x, n)

class Q:
    def __init__(self, A, name, mx):
        self.A, self.name, self.mx, self.q = A, name, mx, []
    def issue(self, tag, text):
        self.A(text); self.q.append(tag)
    def count_for(self, tag):
        if tag not in self.q:
            return None
        last = max(i for i, f in enumerate(self.q) if f == tag)
        n = len(self.q) - 1 - last
        self.q = self.q[last + 1:]
        return min(n, self.mx)
    def wait(self, tag):
        n = self.count_for(tag)
        if n is not None:
            self.A(f"s_waitcnt {self.name}({n})")

def waits(A, vm, vtags, lk, ltags):
    parts = []
    n = None
    for t in vtags:
        c = vm.count_for(t)
        if c is not None:
            n = c
    if n is not None:
        parts.append(f"vmcnt({n})")
    n = None
    for t in ltags:
        c = lk.count_for(t)
        if c is not None:
            n = c
    if n is not None:
        parts.append(f"lgkmcnt({n})")
    if parts:
        A("s_waitcnt " + " ".join(parts))

class G4:
    def __init__(self, A, vm, lk, NB, wn, KS, kps, NS, WD, s_act, blk_stride, s_w, acc0, fr0, w0, vl16, vt, st, lds0=0, rng=None, swap=False, dfl='', stamps=(2, 3, 4)):
        self.__dict__.update(locals())
        self.rng = rng or [(0, NB)] * wn
        self.nst = KS // kps
        self.ppw = NB * kps // 4
        assert NB * kps % 4 == 0
        self.slot = NB * kps * 1024
        self.accs = {}
        a = acc0
        for n in range(0, wn, 2):
            f, c = self.rng[n]
            for b in range(f, f + c):
                self.accs[(b, n)] = a; self.accs[(b, n + 1)] = a + 4; a += 8
        self.acc_end = a

    def setup(self):
        A, st, vt = self.A, self.st, self.vt
        for i in range(self.ppw):
            A(f"s_mul_i32 s{st}, s3, {self.ppw}\ns_add_u32 s{st}, s{st}, {i}")
            sh = int(math.log2(self.kps))
            A(f"s_lshr_b32 s{st+1}, s{st}, {sh}\ns_mul_i32 s{st+1}, s{st+1}, {self.blk_stride}")
            A(f"s_and_b32 s{st}, s{st}, {self.kps-1}\ns_lshl_b32 s{st}, s{st}, 10")
            A(f"s_add_u32 s{st+1}, s{st+1}, s{st}\ns_add_u32 s{st+2+i}, s{st+1}, s{self.s_act}")
        A(f"s_mul_i32 s{st}, s3, {self.ppw*1024}")
        if self.lds0:
            A(f"s_add_u32 s{st}, s{st}, {self.lds0}")
        A(f"v_mov_b32 {v(vt)}, {v(self.vl16)}")
        A(f"v_mov_b32 {v(vt+1)}, {v(self.vl16)}")
        A(f"v_add_u32 {v(vt+2)}, 0x10000, {v(self.vl16)}")
        A(f"v_add_u32 {v(vt+3)}, 0x20000, {v(self.vl16)}")

    def dma(self, stage):
        out = []
        sl = stage % self.NS
        for i in range(self.ppw):
            out.append((None, f"s_add_u32 m0, s{self.st}, {sl*self.slot + i*1024}"))
            out.append((("D", id(self), stage), f"buffer_load_dwordx4 {v(self.vt)}, s[20:23], s{self.st+2+i} offen{self.dfl} lds"))
        out.append((None, f"v_add_u32 {v(self.vt)}, {self.kps*1024}, {v(self.vt)}"))
        return out

    def wreg(self, n, k):
        return self.w0 + ((k % self.WD) * self.wn + n) * 4

    def wload(self, k):
        out = []
        for n in range(self.wn):
            out.append((("W", id(self), k), f"buffer_load_dwordx4 {R(self.wreg(n,k),4)}, {v(self.vt+1)}, s[20:23], s{self.s_w[n]} offen offset:{(k&3)*1024}"))
        if k & 3 == 3:
            out.append((None, f"v_add_u32 {v(self.vt+1)}, 4096, {v(self.vt+1)}"))
        return out

    def freg(self, b, k):
        return self.fr0 + ((k & 1) * self.NB + b) * 4

    def reads(self, k):
        out = []
        stage, kk = k // self.kps, k % self.kps
        for b in range(self.NB):
            off = self.lds0 + (stage % self.NS) * self.slot + (b * self.kps + kk) * 1024
            w = off >> 16
            base = self.vl16 if w == 0 else self.vt + 1 + w
            out.append((("F", k, b), f"ds_read_b128 {R(self.freg(b,k),4)}, {v(base)} offset:{off & 0xffff}"))
        return out

    def emit(self, item):
        if callable(item):
            return item()
        tag, text = item
        if tag is None:
            self.A(text)
        elif tag[0] == "F":
            self.lk.issue(tag, text)
        else:
            self.vm.issue(tag, text)

    def prefetch_list(self, nw=None):
        nw = min(self.WD, self.KS) if nw is None else nw
        ns = min(self.NS, self.nst)
        wk = 0
        items = []
        for s_ in range(ns):
            items += self.dma(s_)
            while wk < nw and wk < (s_ + 1) * self.kps:
                items += self.wload(wk)
                wk += 1
        while wk < nw:
            items += self.wload(wk)
            wk += 1
        self.w_issued = nw
        self.d_issued = ns
        return [(lambda x=x: self.emit(x)) for x in items]

    def wlist(self, nw):
        items = []
        for k in range(nw):
            items += self.wload(k)
        self.w_issued = nw
        return [(lambda x=x: self.emit(x)) for x in items]

    def dlist(self):
        ns = min(self.NS, self.nst)
        items = []
        for s_ in range(ns):
            items += self.dma(s_)
        self.d_issued = ns
        return [(lambda x=x: self.emit(x)) for x in items]

    def prefetch(self, nw=None):
        for f in self.prefetch_list(nw):
            f()

    def run(self, extra=None, first_c="0"):
        A = self.A
        self.vm.wait(("D", id(self), 0))
        A("s_barrier")
        if self.stamps: A.stamp(self.stamps[0])
        for x in self.reads(0):
            self.emit(x)
        for k in range(self.KS):
            stage, kk = k // self.kps, k % self.kps
            fill = []
            last_in_stage = kk == self.kps - 1 and k + 1 < self.KS
            if last_in_stage:
                waits(A, self.vm, [("W", id(self), k), ("D", id(self), stage + 1)], self.lk, [("F", k, self.NB - 1)])
                A("s_barrier")
            else:
                waits(A, self.vm, [("W", id(self), k)], self.lk, [("F", k, self.NB // 2 - 1)])
            if k + 1 < self.KS:
                fill += self.reads(k + 1)
            if last_in_stage and self.d_issued < self.nst:
                fill += self.dma(self.d_issued); self.d_issued += 1
            late = []
            if self.w_issued < self.KS and self.w_issued < k + self.WD:
                fill += self.wload(self.w_issued); self.w_issued += 1
            if extra:
                fill += extra(k)
            mm = []
            for b in range(self.NB):
                for n in range(self.wn):
                    if (b, n) in self.accs:
                        acc = self.accs[(b, n)]
                        c = first_c if k == 0 and first_c is not None else R(acc, 4)
                        x, y = R(self.wreg(n, k), 4), R(self.freg(b, k), 4)
                        if self.swap:
                            x, y = y, x
                        mm.append((b, f"{MF} {R(acc,4)}, {x}, {y}, {c}"))
            fi = 0
            for i, (b, x) in enumerate(mm):
                if b == self.NB // 2:
                    self.lk.wait(("F", k, self.NB - 1))
                A(x)
                tgt = (i + 1) * len(fill) * 4 // (3 * len(mm))
                while fi < len(fill) and fi < tgt:
                    self.emit(fill[fi]); fi += 1
            while fi < len(fill):
                self.emit(fill[fi]); fi += 1
            if k == self.KS // 2 - 1:
                if self.stamps and self.stamps[1]: A.stamp(self.stamps[1])
        if self.stamps: A.stamp(self.stamps[2])
```

```python
from asmlib import *
import layout as L
import math

def srd(A, d, lo, nbytes):
    A(f"s_mov_b32 s{d}, s{lo}")
    A(f"s_and_b32 s{d+1}, s{lo+1}, 0xffff")
    A(f"s_mov_b32 s{d+2}, {nbytes}")
    A(f"s_mov_b32 s{d+3}, 0x20000")

def xlane_sum(A, x, t, levels):
    for lv in levels:
        if lv == 8:
            A(f"v_add_f32_dpp {v(x)}, {v(x)}, {v(x)} row_ror:8 row_mask:0xf bank_mask:0xf")
        else:
            A(f"v_mov_b32 {v(t)}, {v(x)}")
            A(f"v_permlane{lv}_swap_b32 {v(x)}, {v(t)}")
            A(f"v_add_f32 {v(x)}, {v(x)}, {v(t)}")

def chan_lane(A, dst, m, tmp):
    A(f"v_lshrrev_b32 {v(tmp)}, 2, {v(m)}")
    A(f"v_and_b32 {v(dst)}, 3, {v(m)}")
    A(f"v_lshl_add_u32 {v(dst)}, {v(tmp)}, 3, {v(dst)}")

NWG_K0 = 256 + 64 + 64 + 80 + 24 + 8

def gen_k0():
    A = Asm()
    name = "k0_prep_kernel"
    A(f".globl {name}\n.p2align 8\n.type {name},@function\n{name}:\n{name}_S:")
    A(f"s_cmp_ge_u32 s2, {NWG_K0}")
    A("s_cbranch_scc1 K0_END")
    A.stamp_init()
    A("s_load_dwordx4 s[4:7], s[0:1], 0")
    A("s_load_dwordx4 s[8:11], s[0:1], 16")
    A("s_load_dwordx2 s[12:13], s[0:1], 40")
    A("s_load_dwordx2 s[14:15], s[0:1], 56")
    A("s_load_dwordx2 s[16:17], s[0:1], 80")
    A("s_load_dwordx2 s[52:53], s[0:1], 32")
    A("s_load_dwordx2 s[54:55], s[0:1], 48")
    A("v_lshrrev_b32 v1, 6, v0")
    A("v_and_b32 v0, 63, v0")
    A("v_readfirstlane_b32 s3, v1")
    A("v_and_b32 v2, 15, v0")
    A("v_lshrrev_b32 v3, 4, v0")
    A("s_waitcnt lgkmcnt(0)")
    srd(A, 20, 16, L.WS_BYTES)
    A.prefetch_code("k0_prep_kernel_S", "PF_P1_END", 32768, 208)
    A("s_cmp_ge_u32 s2, 488")
    A("s_cbranch_scc1 K0_ZR")
    A("s_cmp_ge_u32 s2, 464")
    A("s_cbranch_scc1 K0_TP")
    A("s_cmp_ge_u32 s2, 384")
    A("s_cbranch_scc1 K0_TR")
    A("s_cmp_ge_u32 s2, 256")
    A("s_cbranch_scc1 K0_WW")
    srd(A, 24, 4, 2 * L.T * 1024)
    A("s_and_b32 s28, s2, 7")
    A("s_lshr_b32 s29, s2, 3")
    A("s_lshr_b32 s30, s28, 2")
    A("s_and_b32 s28, s28, 3")
    A("s_lshl_b32 s28, s28, 10")
    A("s_lshl_b32 s29, s29, 5")
    A("s_add_u32 s28, s28, s29")
    A("s_lshl_b32 s29, s3, 3")
    A("s_add_u32 s28, s28, s29")
    A(f"s_cmp_lt_u32 s28, {L.T}")
    A("s_cselect_b32 s26, s26, 0")
    A(f"s_mul_i32 s29, s30, {L.T}")
    A("s_add_u32 s29, s29, s28")
    A("s_lshl_b32 s29, s29, 10")
    A("v_and_b32 v4, 7, v0")
    A("v_lshrrev_b32 v5, 3, v0")
    A("v_lshlrev_b32 v6, 10, v4")
    A("v_lshl_add_u32 v6, v5, 4, v6")
    P = 8
    Uq = 40
    for jj in range(8):
        A(f"buffer_load_dwordx4 {v(P+4*jj,4)}, v6, s[24:27], s29 offen offset:{jj*128}")
    A(f"s_lshl_b32 s31, s30, 12")
    A("s_add_u32 s31, s31, s28")
    A("s_lshr_b32 s32, s31, 4")
    A("s_lshl_b32 s32, s32, 14")
    A("s_and_b32 s31, s31, 15")
    A("s_lshl_b32 s31, s31, 4")
    A("s_add_u32 s32, s32, s31")
    if L.XA:
        A(f"s_add_u32 s32, s32, {L.XA}")
    A("v_lshlrev_b32 v7, 4, v4")
    A("v_lshl_add_u32 v7, v5, 8, v7")
    A("s_mov_b32 s33, 0xffff0000")
    for jj in range(8):
        A(f"s_waitcnt vmcnt({7-jj})")
        for i in range(4):
            r = P + 4 * jj + i
            u = Uq + 2 * (4 * jj + i)
            A(f"v_lshlrev_b32 {v(u)}, 16, {v(r)}")
            A(f"v_and_b32 {v(u+1)}, s33, {v(r)}")
    A.stamp(1)
    acc = 104
    A(f"v_pk_add_f32 {v(acc,2)}, {v(Uq,2)}, {v(Uq+2,2)}")
    A(f"v_pk_add_f32 {v(acc+2,2)}, {v(Uq+4,2)}, {v(Uq+6,2)}")
    for i in range(4, 32):
        a = acc + 2 * (i & 1)
        A(f"v_pk_add_f32 {v(a,2)}, {v(a,2)}, {v(Uq+2*i,2)}")
    A(f"v_pk_add_f32 {v(acc,2)}, {v(acc,2)}, {v(acc+2,2)}")
    A(f"v_add_f32 {v(acc)}, {v(acc)}, {v(acc+1)}")
    xlane_sum(A, acc, acc + 1, (8, 16, 32))
    A(f"v_mul_f32 {v(acc)}, {hex(f2u(-1.0/512))}, {v(acc)}")
    for i in range(32):
        A(f"v_pk_add_f32 {v(Uq+2*i,2)}, {v(Uq+2*i,2)}, {v(acc,2)} op_sel_hi:[1,0]")
    q = 108
    A(f"v_pk_mul_f32 {v(q,2)}, {v(Uq,2)}, {v(Uq,2)}")
    A(f"v_pk_mul_f32 {v(q+2,2)}, {v(Uq+2,2)}, {v(Uq+2,2)}")
    for i in range(2, 32):
        a = q + 2 * (i & 1)
        A(f"v_pk_fma_f32 {v(a,2)}, {v(Uq+2*i,2)}, {v(Uq+2*i,2)}, {v(a,2)}")
    A(f"v_pk_add_f32 {v(q,2)}, {v(q,2)}, {v(q+2,2)}")
    A(f"v_add_f32 {v(q)}, {v(q)}, {v(q+1)}")
    xlane_sum(A, q, q + 1, (8, 16, 32))
    A(f"v_mov_b32 {v(q+1)}, {hex(f2u(1e-5))}")
    A(f"v_fmac_f32 {v(q+1)}, {hex(f2u(1.0/512))}, {v(q)}")
    A(f"v_rsq_f32 {v(q)}, {v(q+1)}")
    for jj in range(8):
        for i in range(4):
            u = Uq + 2 * (4 * jj + i)
            A(f"v_pk_mul_f32 {v(u,2)}, {v(u,2)}, {v(q,2)} op_sel_hi:[1,0]")
        for i in range(4):
            u = Uq + 2 * (4 * jj + i)
            A(f"v_cvt_pk_bf16_f32 {v(P+4*jj+i)}, {v(u)}, {v(u+1)}")
        if jj % 2 == 0 and jj:
            A("s_add_u32 s32, s32, 4096")
        A(f"buffer_store_dwordx4 {v(P+4*jj,4)}, v7, s[20:23], s32 offen offset:{(jj&1)*2048}")
    A.endpgm()
    A("K0_WW:")
    srd(A, 24, 6, 512 * 3072)
    srd(A, 28, 8, 512 * 1024)
    A("s_and_b32 s32, s2, 63")
    A("s_lshr_b32 s33, s32, 3")
    A("s_and_b32 s34, s32, 7")
    chan_lane(A, 4, 2, 5)
    A("s_movk_i32 s37, 3072")
    A("v_lshlrev_b32 v9, 4, v0")
    A("s_lshl_b32 s36, s3, 8")
    AF, BF, AC = 16, 80, 144
    A("s_cmp_ge_u32 s2, 320")
    A("s_cbranch_scc1 K0_VO")
    A("v_mul_lo_u32 v6, v4, s37")
    A("v_lshl_add_u32 v6, v3, 4, v6")
    A(f"s_mul_i32 s38, s34, {64*3072}\ns_add_u32 s38, s38, s36")
    A(f"s_mul_i32 s39, s33, {64*3072}\ns_add_u32 s39, s39, s36\ns_add_u32 s39, s39, 1024")
    for t in range(4):
        o = ((t >> 1) * 32 + (t & 1) * 4) * 3072
        A(f"s_add_u32 s{40+t}, s38, {o}\ns_add_u32 s{44+t}, s39, {o}")
    for ks in range(4):
        for t in range(4):
            A(f"buffer_load_dwordx4 {v(AF+(t*4+ks)*4,4)}, v6, s[24:27], s{40+t} offen offset:{ks*64}")
            A(f"buffer_load_dwordx4 {v(BF+(t*4+ks)*4,4)}, v6, s[24:27], s{44+t} offen offset:{ks*64}")
    c = 512 ** -0.5 * math.log2(math.e)
    A(f"s_mov_b32 s48, {hex(f2u(c))}")
    A(f"s_mov_b32 s49, {L.W1}")
    A("s_waitcnt vmcnt(0)")
    A("s_branch K0_MM")
    A("K0_VO:")
    A("v_lshrrev_b32 v5, 3, v2")
    A("v_and_b32 v6, 7, v2")
    A("v_lshl_add_u32 v6, v5, 7, v6")
    A("v_mul_lo_u32 v6, v6, s37")
    A("v_lshl_add_u32 v6, v3, 4, v6")
    A("v_lshrrev_b32 v7, 3, v0\nv_lshlrev_b32 v7, 10, v7\nv_and_b32 v8, 7, v0\nv_lshl_add_u32 v7, v8, 4, v7")
    A("s_lshl_b32 s39, s3, 17\ns_lshl_b32 s38, s33, 7\ns_add_u32 s39, s39, s38")
    A("s_lshl_b32 s50, s3, 14")
    for i in range(16):
        A(f"s_add_u32 m0, s50, {i*1024}")
        A("buffer_load_dwordx4 v7, s[28:31], s39 offen lds")
        A("s_add_u32 s39, s39, 8192")
    A("s_lshr_b32 s38, s34, 2\ns_lshl_b32 s38, s38, 8\ns_and_b32 s39, s34, 3\ns_lshl_b32 s39, s39, 5\ns_add_u32 s38, s38, s39")
    A("s_mul_i32 s38, s38, 3072\ns_add_u32 s38, s38, s36\ns_add_u32 s38, s38, 2048")
    for t in range(4):
        A(f"s_add_u32 s{40+t}, s38, {t*8*3072}")
    for ks in range(4):
        for t in range(4):
            A(f"buffer_load_dwordx4 {v(AF+(t*4+ks)*4,4)}, v6, s[24:27], s{40+t} offen offset:{ks*64}")
    A("v_bfe_u32 v7, v0, 2, 2\nv_lshl_add_u32 v7, v3, 3, v7\nv_lshlrev_b32 v7, 7, v7\nv_and_b32 v8, 3, v0\nv_lshl_add_u32 v7, v8, 4, v7")
    A("v_add_u32 v7, s50, v7")
    A("s_waitcnt vmcnt(16)")
    for ks in range(4):
        for t in range(4):
            o = ks * 4096 + (t >> 1) * 64 + (t & 1) * 8
            r = BF + (t * 4 + ks) * 4
            A(f"ds_read_b64_tr_b16 {v(r,2)}, v7 offset:{o}")
            A(f"ds_read_b64_tr_b16 {v(r+2,2)}, v7 offset:{o+512}")
        A("s_waitcnt lgkmcnt(0)")
    A("s_mov_b32 s48, 1.0")
    A(f"s_mov_b32 s49, {L.W2}")
    A("s_waitcnt vmcnt(0)")
    A("K0_MM:")
    for ks in range(4):
        for a in range(4):
            for b in range(4):
                ac = AC + (b * 4 + a) * 4
                cc = "0" if ks == 0 else v(ac, 4)
                A(f"v_mfma_f32_16x16x32_bf16 {v(ac,4)}, {v(AF+(a*4+ks)*4,4)}, {v(BF+(b*4+ks)*4,4)}, {cc}")
    A("s_lshl_b32 s50, s3, 14\nv_add_u32 v7, s50, v9")
    for i in range(16):
        A(f"ds_write_b128 v7, {v(AC+4*i,4)} offset:{i*1024}")
    A("s_waitcnt lgkmcnt(0)")
    A("s_barrier")
    A("s_lshl_b32 s50, s3, 12\nv_add_u32 v7, s50, v9")
    for src in range(4):
        for a in range(4):
            A(f"ds_read_b128 {v(AF+(src*4+a)*4,4)}, v7 offset:{src*16384+a*1024}")
        if src == 1:
            A("s_waitcnt lgkmcnt(0)")
    A("s_waitcnt lgkmcnt(0)")
    for src in range(1, 4):
        for i in range(8):
            A(f"v_pk_add_f32 {v(AF+2*i,2)}, {v(AF+2*i,2)}, {v(AF+src*16+2*i,2)}")
    for i in range(16):
        A(f"v_mul_f32 {v(AF+i)}, s48, {v(AF+i)}")
    for i in range(8):
        A(f"v_cvt_pk_bf16_f32 {v(BF+i)}, {v(AF+2*i)}, {v(AF+2*i+1)}")
    A("s_lshl_b32 s42, s33, 2\ns_add_u32 s42, s42, s3\ns_lshl_b32 s42, s42, 14\ns_lshl_b32 s43, s34, 11\ns_add_u32 s42, s42, s43\ns_add_u32 s42, s42, s49")
    A(f"buffer_store_dwordx4 {v(BF,4)}, v9, s[20:23], s42 offen")
    A(f"buffer_store_dwordx4 {v(BF+4,4)}, v9, s[20:23], s42 offen offset:1024")
    A.endpgm()
    A("K0_TR:")
    A("s_sub_u32 s32, s2, 384")
    A("s_lshl_b32 s32, s32, 2")
    A("s_add_u32 s32, s32, s3")
    A("s_mov_b32 s27, 0x20000")
    A("s_cmp_lt_u32 s32, 128")
    A("s_cbranch_scc0 K0_T2")
    A("s_mov_b32 s24, s10\ns_and_b32 s25, s11, 0xffff\ns_mov_b32 s26, 0x100000")
    A("s_lshr_b32 s33, s32, 3\ns_and_b32 s34, s32, 7\ns_mov_b32 s37, 11\ns_mov_b32 s36, 14")
    A(f"s_mov_b32 s42, {L.W1 + 32*16*1024}")
    A("s_branch K0_T9")
    A("K0_T2:")
    A("s_cmp_lt_u32 s32, 192")
    A("s_cbranch_scc0 K0_T3")
    A("s_sub_u32 s32, s32, 128")
    A("s_mov_b32 s24, s12\ns_and_b32 s25, s13, 0xffff\ns_mov_b32 s26, 0x80000")
    A("s_lshr_b32 s33, s32, 2\ns_and_b32 s34, s32, 3\ns_mov_b32 s37, 10\ns_mov_b32 s36, 14")
    A(f"s_mov_b32 s42, {L.W2 + 32*16*1024}")
    A("s_branch K0_T9")
    A("K0_T3:")
    A("s_sub_u32 s32, s32, 192")
    A("s_mov_b32 s24, s14\ns_and_b32 s25, s15, 0xffff\ns_mov_b32 s26, 0x100000")
    A("s_lshr_b32 s33, s32, 2\ns_and_b32 s34, s32, 3\ns_mov_b32 s37, 10\ns_mov_b32 s36, 15")
    A(f"s_mov_b32 s42, {L.W3}")
    A("K0_T9:")
    A("v_lshlrev_b32 v5, s37, v3\nv_lshl_add_u32 v5, v2, 4, v5")
    A("s_lshl_b32 s38, s33, 5\ns_lshl_b32 s38, s38, s37\ns_lshl_b32 s39, s34, 8\ns_add_u32 s38, s38, s39")
    A("s_lshl_b32 s39, 4, s37")
    A("s_lshl_b32 s50, s3, 13")
    for i in range(8):
        A(f"s_add_u32 m0, s50, {i*1024}")
        A("buffer_load_dwordx4 v5, s[24:27], s38 offen lds")
        A("s_add_u32 s38, s38, s39")
    A("v_bfe_u32 v7, v0, 2, 2\nv_lshl_add_u32 v7, v3, 3, v7\nv_lshlrev_b32 v7, 8, v7\nv_and_b32 v8, 3, v0\nv_lshl_add_u32 v7, v8, 4, v7")
    A("v_add_u32 v7, s50, v7")
    A("v_lshlrev_b32 v9, 4, v0")
    A("s_lshl_b32 s43, s34, 3\ns_lshl_b32 s43, s43, s36\ns_add_u32 s42, s42, s43\ns_lshl_b32 s43, s33, 10\ns_add_u32 s42, s42, s43")
    A("s_lshl_b32 s43, 1, s36")
    A("s_waitcnt vmcnt(0)")
    for h in range(2):
        for t in range(4 * h, 4 * h + 4):
            o = (t >> 1) * 64 + (t & 1) * 8
            A(f"ds_read_b64_tr_b16 {v(16+4*t,2)}, v7 offset:{o}")
            A(f"ds_read_b64_tr_b16 {v(18+4*t,2)}, v7 offset:{o+1024}")
        A("s_waitcnt lgkmcnt(0)")
        for t in range(4 * h, 4 * h + 4):
            A(f"buffer_store_dwordx4 {v(16+4*t,4)}, v9, s[20:23], s42 offen")
            A("s_add_u32 s42, s42, s43")
    A.endpgm()
    A("K0_TP:")
    A("s_sub_u32 s32, s2, 464\ns_lshl_b32 s32, s32, 2\ns_add_u32 s32, s32, s3")
    A("s_mov_b32 s27, 0x20000")
    A("s_cmp_lt_u32 s32, 32")
    A("s_cselect_b32 s24, s52, s54\ns_cselect_b32 s25, s53, s55\ns_and_b32 s25, s25, 0xffff")
    A("s_cmp_lt_u32 s32, 32")
    A("s_cselect_b32 s37, 10, 11\ns_cselect_b32 s33, 0, 32\ns_sub_u32 s33, s32, s33")
    A("s_lshl_b32 s39, 1, s37\ns_mul_i32 s26, s39, 31")
    A("v_lshrrev_b32 v2, 2, v0\nv_and_b32 v3, 3, v0")
    chan_lane(A, 4, 2, 5)
    A("s_lshr_b32 s35, s33, 1\ns_lshl_b32 s35, s35, 5\ns_and_b32 s36, s33, 1\ns_lshl_b32 s36, s36, 2\ns_add_u32 s35, s35, s36")
    A("v_add_u32 v4, s35, v4\nv_lshlrev_b32 v4, 1, v4")
    A("v_sub_u32 v5, 3, v3\nv_lshlrev_b32 v5, s37, v5\nv_add_u32 v5, v5, v4")
    A("s_mov_b32 s38, 0")
    for kk in range(4, 36):
        A(f"buffer_load_ushort {v(16+kk)}, v5, s[24:27], s38 offen")
        A("s_add_u32 s38, s38, s39")
    A("v_mov_b32 v16, 0")
    A("v_bfrev_b32 v8, -2")
    for kk in range(1, 4):
        A(f"v_sub_u32 v6, {kk-1}, v3\nv_cmp_gt_i32 vcc, 0, v6\nv_lshlrev_b32 v6, s37, v6\nv_add_u32 v6, v6, v4")
        A(f"v_cndmask_b32 {v(9+kk)}, v6, v8, vcc")
        A(f"buffer_load_ushort {v(16+kk)}, {v(9+kk)}, s[24:27], 0 offen")
    A("v_and_b32 v6, 1, v3\nv_lshlrev_b32 v6, 4, v6\nv_mov_b32 v7, 0x3f80\nv_lshlrev_b32 v7, v6, v7")
    A("v_cmp_gt_u32 vcc, 2, v3")
    A("v_cndmask_b32 v82, 0, v7, vcc\nv_cndmask_b32 v83, v7, 0, vcc")
    A("v_lshlrev_b32 v9, 4, v0")
    A(f"s_mul_i32 s42, s32, 5120\ns_add_u32 s42, s42, {L.TT}\ns_add_u32 s43, s42, 4096")
    A("s_waitcnt vmcnt(0)")
    for i in range(18):
        A(f"v_lshl_or_b32 {v(64+i)}, {v(17+2*i)}, 16, {v(16+2*i)}")
    for i in range(5):
        A(f"buffer_store_dwordx4 {v(64+4*i,4)}, v9, s[20:23], s{42+(i>>2)} offen offset:{(i&3)*1024}")
    A.endpgm()
    A("K0_ZR:")
    A("s_sub_u32 s32, s2, 488")
    for i in range(4):
        A(f"v_mov_b32 {v(16+i)}, 0")
    A("v_lshlrev_b32 v9, 4, v0")
    A(f"s_lshr_b32 s33, s32, 1\ns_mul_i32 s33, s33, {8*L.MB + L.GD}\ns_and_b32 s34, s32, 1\ns_mul_i32 s34, s34, {8*L.MB + 16384}")
    A(f"s_add_u32 s33, s33, s34\ns_add_u32 s33, s33, {L.XA - 16384}\ns_lshl_b32 s34, s3, 12\ns_add_u32 s33, s33, s34")
    A("s_cmp_lt_u32 s32, 6\ns_cselect_b32 s33, s33, 0x7f000000")
    for i in range(4):
        A(f"buffer_store_dwordx4 v[16:19], v9, s[20:23], s33 offen offset:{i*1024}")
    A("s_lshl_b32 s34, s3, 6\nv_add_u32 v4, s34, v0")
    A("s_movk_i32 s35, 65\nv_cmp_eq_u32 vcc, 0, v4\nv_cmp_eq_u32 s[36:37], s35, v4")
    A("s_or_b64 vcc, vcc, s[36:37]\ns_nop 1")
    A("v_cndmask_b32 v5, 0, 16, vcc")
    A("v_lshlrev_b32 v6, 7, v4")
    A("v_bfrev_b32 v8, -2\nv_cmp_gt_u32 vcc, 0x42, v4\ns_nop 1\nv_cndmask_b32 v6, v8, v6, vcc")
    A(f"s_mul_i32 s33, s32, {66*128}\ns_add_u32 s33, s33, {L.FLAGS}")
    A("buffer_store_dword v5, v6, s[20:23], s33 offen")
    A.endpgm()
    A("K0_END:")
    A("s_endpgm")
    assert A.check_branches() == 0
    return name, A.text() + "\n" + kdesc(name, 212, 0, 48), f"; @launch kernel={name} grid=({NWG_K0},1,1) block=(256,1,1) lds=65536"
```

```python
MB = 1 << 20
GD = 65536
XA = GD
Z = XA + 8 * MB + GD
AT = Z + 8 * MB + GD
QP = AT + 8 * MB + GD
MM = QP + 8 * MB
PO = MM + 16 * MB
W1 = PO + 32 * MB
W2 = W1 + 3 * MB // 2
W3 = W2 + MB
GST = W3 + MB
PML = GST + 3 * MB // 2
TT = PML + MB // 4
FLAGS = TT + MB // 2
NFLAG = 8 * 66 * 128
G = 96 * MB
U = 104 * MB
WS_BYTES = 268435456
T = 4000
TP = 4096
assert FLAGS + NFLAG < 96 * MB
```

```python
from asmlib import *
import layout as L
from k0 import srd
from g4 import *
from gemm import gelu_consts
from ph import c4_tload, c4_addr, c4_write, c4_core, RS, T4B
import attn as AT_
from attn import Sreg, ring, kread, vread, softmax_ops, check_ops, rowmax, Sched, spread, DIST, THRESH
from attn import L16, DV0, DV1, KA0, KA1, VA, LS0, LS1, BS0, BS1, T0, NEGM, PP, XT

SC = " sc1"
F_S, F_Q, F_Z, F_P, F_ML, F_AT, F_MG = range(7)
FK = 66 * 128

def Qr(qa, j): return 256 + (qa * 16 + j) * 4
def Or(dt, qa):
    i = (dt * 2 + qa) * 4
    return 128 + i if i < 128 else 256 + i

class M:
    def __init__(self):
        self.A = Asm()
        self.vm = Q(self.A, "vmcnt", 63)
        self.lk = Q(self.A, "lgkmcnt", 15)

    def signal(self, kind, tag, vt):
        A = self.A
        A(f"v_mov_b32 {v(vt)}, 1\ns_add_u32 s26, s24, {kind*FK}")
        self.vm.wait(tag)
        A("s_mov_b64 exec, 1")
        self.vm.issue("SIG", f"buffer_atomic_add {v(vt)}, off, s[20:23], s26 sc1")
        A("s_mov_b64 exec, -1")

    def _poll_text(self, nbr, vt, sreg):
        if nbr:
            return f"buffer_load_dword {v(vt)}, {v(vt+1)}, s[20:23], s{sreg} offen sc1"
        return f"buffer_load_dword {v(vt)}, off, s[20:23], s{sreg} sc1"

    def poll_issue(self, kind, nbr, vt, sreg=27):
        A = self.A
        A(f"s_add_u32 s{sreg}, s24, {kind*FK - (128 if nbr else 0)}")
        if nbr:
            A(f"v_min_u32 {v(vt+1)}, 2, v0\nv_lshlrev_b32 {v(vt+1)}, 7, {v(vt+1)}")
        self.vm.issue(("POLL", kind), self._poll_text(nbr, vt, sreg))

    def poll_check(self, kind, nbr, vt, sreg=27):
        A = self.A
        ok, lp = A.label("POK"), A.label("PLP")
        self.vm.wait(("POLL", kind))
        A(f"{lp}:")
        A(f"v_cmp_le_u32 vcc, 16, {v(vt)}")
        A("s_cmp_eq_u64 vcc, -1")
        A(f"s_cbranch_scc1 {ok}")
        A("s_sleep 1")
        A(self._poll_text(nbr, vt, sreg))
        A("s_sub_u32 s25, s25, 1")
        A("s_waitcnt vmcnt(0)")
        A(f"s_cbranch_scc0 {lp}")
        A("s_endpgm")
        A(f"{ok}:")

    def pf(self, a, b, vt):
        self.A.prefetch_code(a, b, 32768, vt, vm=self.vm)

def gelu_pk(A, regs, tmp):
    for x, t in zip(regs, tmp):
        A(f"v_pk_mul_f32 {v(t,2)}, {v(x,2)}, {v(x,2)}")
    for x, t in zip(regs, tmp):
        A(f"v_pk_fma_f32 {v(t,2)}, {v(t,2)}, v[8:9], v[6:7]")
    for x, t in zip(regs, tmp):
        A(f"v_pk_mul_f32 {v(t,2)}, {v(t,2)}, {v(x,2)}")
    for x, t in zip(regs, tmp):
        A(f"v_exp_f32 {v(t)}, {v(t)}\nv_exp_f32 {v(t+1)}, {v(t+1)}")
    for x, t in zip(regs, tmp):
        A(f"v_pk_add_f32 {v(t,2)}, {v(t,2)}, v[10:11]")
    for x, t in zip(regs, tmp):
        A(f"v_rcp_f32 {v(t)}, {v(t)}\nv_rcp_f32 {v(t+1)}, {v(t+1)}")
    for x, t in zip(regs, tmp):
        A(f"v_pk_mul_f32 {v(x,2)}, {v(x,2)}, {v(t,2)}")

def kv_dma_ops():
    out = ["s_mov_b32 m0, s47"]
    for i in range(4):
        out.append(f"buffer_load_dwordx4 {v(DV0)}, s[20:23], s46 offen offset:{i*1024} lds")
    out.append("s_add_u32 m0, s47, 16384")
    for i in range(4):
        out.append(f"buffer_load_dwordx4 {v(DV1)}, s[20:23], s46 offen offset:{i*1024} lds")
    out += ["s_add_u32 s46, s46, 32768", "s_add_u32 s47, s47, 32768", "s_and_b32 s47, s47, 0x1ffff"]
    return out

def half(A, sc, p, tail, tag, tailfill=None):
    if not tail:
        fill = spread(softmax_ops(p) + check_ops(), 64, 1, 56)
        for n in range(32):
            j, ka = n >> 1, n & 1
            if n % 2 == 0:
                sc.wait(("K", n + 1))
            for qa in range(2):
                sr = Sreg(p ^ 1, ka, qa)
                c = v(NEGM + 4 * qa, 4) if j == 0 else v(sr, 4)
                A(f"{MF} {v(sr,4)}, {v(ring(n),4)}, {R(Qr(qa,j),4)}, {c}")
                if qa == 1:
                    m = n + DIST
                    if m < 32:
                        sc.issue(("K", m), kread(m, p ^ 1))
                    else:
                        if m == 32 and p == 0:
                            A(f"v_xor_b32 {v(VA)}, 0x10000, {v(VA)}")
                        sc.issue(("V", m - 32), vread(m - 32, p))
                for x in fill.get(2 * n + qa, []):
                    A(x)
    else:
        A("s_waitcnt lgkmcnt(0)")
        sc.q = []
        if p == 0:
            A(f"v_xor_b32 {v(VA)}, 0x10000, {v(VA)}")
        for m in range(DIST):
            sc.issue(("V", m), vread(m, p))
        for x in softmax_ops(p) + check_ops():
            A(x)
    A(f"s_cbranch_vccnz RARE{p}")
    A(f"RET{tag}:")
    fill = [f"v_add_f32 {v(LS0)}, {v(LS0)}, {v(BS0)}", f"v_add_f32 {v(LS1)}, {v(LS1)}, {v(BS1)}"]
    if not tail:
        A("s_waitcnt vmcnt(0)")
        A("s_barrier")
        fill = kv_dma_ops() + fill
        fill = spread(fill, 64, 1, 40)
    else:
        fill = spread(fill + list(tailfill or []), 64, 1, 62)
    for dt in range(32):
        if dt % 2 == 0:
            sc.wait(("V", dt + 1))
        for qa in range(2):
            o = R(Or(dt, qa), 4)
            A(f"{MF} {o}, {v(ring(dt),4)}, {v(PP+4*qa,4)}, {o}")
            if qa == 1:
                m = dt + DIST
                if m < 32:
                    sc.issue(("V", m), vread(m, p))
                elif not tail:
                    if m == 32 and p == 0:
                        A(f"v_xor_b32 {v(KA0)}, 0x10000, {v(KA0)}")
                        A(f"v_xor_b32 {v(KA1)}, 0x10000, {v(KA1)}")
                    sc.issue(("K", m - 32), kread(m - 32, p))
            for x in fill.get(2 * dt + qa, []):
                if callable(x):
                    x()
                else:
                    A(x)

def rare(A, p):
    A(f"RARE{p}:")
    A("s_nop 15")
    D0, AL = XT, XT + 2
    for qa in range(2):
        rowmax(A, p, qa, D0 + qa, XT + 4)
        A(f"v_max_f32 {v(D0+qa)}, 0, {v(D0+qa)}")
        A(f"v_sub_f32 {v(AL+qa)}, 0, {v(D0+qa)}")
        A(f"v_exp_f32 {v(AL+qa)}, {v(AL+qa)}")
        for pp in range(2):
            for ka in range(2):
                for r in range(4):
                    x = Sreg(pp, ka, qa) + r
                    A(f"v_sub_f32 {v(x)}, {v(x)}, {v(D0+qa)}")
        for r in range(4):
            A(f"v_sub_f32 {v(NEGM+4*qa+r)}, {v(NEGM+4*qa+r)}, {v(D0+qa)}")
        A(f"v_mul_f32 {v(LS0+qa)}, {v(LS0+qa)}, {v(AL+qa)}")
    for dt in range(32):
        for qa in range(2):
            o = Or(dt, qa)
            if o < 256:
                for r in range(4):
                    A(f"v_mul_f32 {v(o+r)}, {v(o+r)}, {v(AL+qa)}")
            else:
                t = XT + 8 + 4 * qa
                for r in range(4):
                    A(f"v_accvgpr_read_b32 {v(t+r)}, {R(o+r)}")
                for r in range(4):
                    A(f"v_mul_f32 {v(t+r)}, {v(t+r)}, {v(AL+qa)}")
                for r in range(4):
                    A(f"v_accvgpr_write_b32 {R(o+r)}, {v(t+r)}")
    for x in softmax_ops(p):
        A(x)
    A("s_nop 3")
    A("s_cmp_eq_u32 s44, 1")
    A(f"s_cbranch_scc1 RETT{p}")
    A(f"s_branch RETL{p}")

def gen_mega():
    m = M()
    A, vm, lk = m.A, m.vm, m.lk
    name = "mega_kernel"
    A(f".globl {name}\n.p2align 8\n.type {name},@function\n{name}:\n{name}_S:")
    A("s_cmp_ge_u32 s2, 256")
    A("s_cbranch_scc0 MEGA_GO")
    A("s_endpgm")
    A("MEGA_GO:")
    A.stamp_init()
    A("s_load_dwordx2 s[16:17], s[0:1], 80")
    A("s_load_dwordx2 s[4:5], s[0:1], 0")
    A("s_load_dwordx2 s[6:7], s[0:1], 64")
    A("v_lshrrev_b32 v1, 6, v0")
    A("v_and_b32 v0, 63, v0")
    A("v_readfirstlane_b32 s3, v1")
    A("v_lshlrev_b32 v1, 4, v0")
    A("s_and_b32 s28, s2, 7\ns_lshr_b32 s29, s2, 3\ns_and_b32 s30, s29, 3\ns_lshr_b32 s29, s29, 2")
    A("s_lshl_b32 s28, s28, 3\ns_add_u32 s28, s28, s29")
    A("s_lshl_b32 s31, s30, 2\ns_add_u32 s31, s31, s3")
    A(f"s_lshl_b32 s32, s28, 17\ns_add_u32 s32, s32, {L.XA - 16384}")
    for kind in range(3):
        for par in range(2):
            r = 34 + kind * 2 + par
            A(f"s_lshl_b32 s{r}, s31, 15\ns_add_u32 s{r}, s{r}, {L.W1 + (kind*32+par)*16384}")
    g = G4(A, vm, lk, NB=10, wn=6, KS=16, kps=2, NS=4, WD=4, s_act=32, blk_stride=16384, s_w=list(range(34, 40)),
           acc0=16, fr0=256, w0=336, vl16=1, vt=2, st=50, rng=[(1, 8), (1, 8), (1, 8), (1, 8), (0, 10), (0, 10)], stamps=(1, None, 2))
    g.setup()
    A("s_waitcnt lgkmcnt(0)")
    srd(A, 20, 16, L.WS_BYTES)
    g.prefetch()
    srd(A, 8, 4, 2 * L.T * 1024)
    srd(A, 12, 6, 2 * L.T * 1024)
    A("s_mov_b32 s49, 0xffff0000")
    A(f"s_lshl_b32 s24, s28, 7\ns_add_u32 s24, s24, {L.FLAGS + 128}")
    A("s_mov_b32 s25, 0x60000")
    c0, c1 = gelu_consts()
    A(f"v_mov_b32 v6, {hex(f2u(c0))}\nv_mov_b32 v7, v6\nv_mov_b32 v8, {hex(f2u(c1))}\nv_mov_b32 v9, v8\nv_mov_b32 v10, 1.0\nv_mov_b32 v11, 1.0")
    TAz = 256 + 176
    tl = c4_tload(A, vm, TAz, 0)
    def extraA(k):
        out = [tl[k - 4]] if 4 <= k < 14 else []
        if k == 2:
            out.append(lambda: m.pf("PF_P1_END", "PF_ATT_END", 12))
        return out
    g.run(extraA)
    A("PF_P1_END:")
    A("s_barrier")
    A("s_lshr_b32 s32, s28, 5")
    A("s_mul_i32 s33, s30, 31\ns_cmp_lg_u32 s30, 0\ns_addc_u32 s33, s33, 0")
    A("s_lshl_b32 s34, s32, 7\ns_add_u32 s33, s33, s34\ns_lshl_b32 s46, s33, 15")
    A(f"s_add_u32 s46, s46, {L.XA}")
    A("s_lshl_b32 s47, s3, 12")
    A("s_and_b32 s35, s3, 1\ns_lshl_b32 s35, s35, 7")
    A(f"v_xor_b32 {v(DV0)}, s35, v1\nv_add_u32 {v(DV0)}, s47, {v(DV0)}\nv_add_u32 {v(DV1)}, 16384, {v(DV0)}")
    def kv(tile):
        for x in kv_dma_ops():
            if "buffer" in x:
                vm.issue(("KV", tile), x)
            else:
                A(x)
    tmp = list(range(224, 232, 2))
    st = 232
    for i in (18, 19, 22, 23):
        A(f"v_mov_b32 {v(st+i)}, 0")
    for b in range(10):
        gq = g.accs[(b, 4)]
        gelu_pk(A, list(range(gq, gq + 8, 2)), tmp)
        s1, s2 = st + (b >> 2) * 8 + (b & 3), st + (b >> 2) * 8 + 4 + (b & 3)
        A(f"v_pk_add_f32 v[12:13], {v(gq,2)}, {v(gq+2,2)}\nv_pk_mul_f32 v[14:15], {v(gq,2)}, {v(gq,2)}")
        A(f"v_pk_add_f32 v[12:13], v[12:13], {v(gq+4,2)}\nv_pk_fma_f32 v[14:15], {v(gq+2,2)}, {v(gq+2,2)}, v[14:15]")
        A(f"v_pk_add_f32 v[12:13], v[12:13], {v(gq+6,2)}\nv_pk_fma_f32 v[14:15], {v(gq+4,2)}, {v(gq+4,2)}, v[14:15]")
        A(f"v_add_f32 {v(s1)}, v12, v13\nv_pk_fma_f32 v[14:15], {v(gq+6,2)}, {v(gq+6,2)}, v[14:15]")
        A(f"v_add_f32 {v(s2)}, v14, v15")
    A(f"s_lshl_b32 s37, s28, 4\ns_add_u32 s37, s37, s31\ns_mul_i32 s37, s37, 1536\ns_add_u32 s37, s37, {L.GST}")
    A("v_lshlrev_b32 v12, 3, v0")
    for h in range(3):
        for o in (0, 4):
            x = st + h * 8 + o
            A(f"v_permlane32_swap_b32 {v(x)}, {v(x+2)}")
            A(f"v_permlane32_swap_b32 {v(x+1)}, {v(x+3)}")
            A(f"v_add_f32 {v(x)}, {v(x)}, {v(x+2)}")
            A(f"v_add_f32 {v(x+1)}, {v(x+1)}, {v(x+3)}")
            A(f"v_permlane16_swap_b32 {v(x)}, {v(x+1)}")
            A(f"v_add_f32 {v(x)}, {v(x)}, {v(x+1)}")
        x = st + h * 8
        A(f"v_mov_b32 {v(x+1)}, {v(x+4)}")
        vm.issue("sS", f"buffer_store_dwordx2 {v(x,2)}, v12, s[20:23], s37 offen offset:{h*512}{SC}")
    A("s_lshl_b32 s40, s28, 17\ns_lshl_b32 s41, s31, 10\ns_add_u32 s40, s40, s41")
    A(f"s_add_u32 s41, s40, {L.QP}")
    for b in range(1, 9):
        q = g.accs[(b, 0)]
        for i in range(4):
            A(f"v_cvt_pk_bf16_f32 {v(q+i)}, {v(q+2*i)}, {v(q+2*i+1)}")
        vm.issue("sQ", f"buffer_store_dwordx4 {v(q,4)}, v1, s[20:23], s41 offen{SC}")
        A("s_add_u32 s41, s41, 16384")
    kv(0)
    kv(1)
    UR = 80
    for b in range(1, 9):
        u = g.accs[(b, 2)]
        gelu_pk(A, list(range(u, u + 8, 2)), tmp)
        for i in range(4):
            A(f"v_cvt_pk_bf16_f32 {v(UR+4*(b-1)+i)}, {v(u+2*i)}, {v(u+2*i+1)}")
        if b == 2:
            m.signal(F_S, "sS", 12)
        if b == 5:
            m.signal(F_Q, "sQ", 12)
        if b == 7:
            m.poll_issue(F_S, False, 13)
    A.stamp(3)
    LB = 65536
    FST = LB + 4 * T4B
    STT = FST + 40960
    B0, D0, OUT, VA_ = 16, 144, 112, 224
    c4_addr(A, LB, VA_)
    A(f"s_mul_i32 s45, s3, 10240\ns_add_u32 s45, s45, {FST}\nv_add_u32 v228, s45, v1")
    A("v_lshrrev_b32 v229, 2, v0\nv_lshlrev_b32 v229, 4, v229\nv_and_b32 v12, 3, v0\nv_lshl_add_u32 v229, v12, 8, v229\nv_add_u32 v229, s45, v229")
    A("s_lshl_b32 s42, s3, 6\nv_add_u32 v14, s42, v0\nv_lshlrev_b32 v15, 3, v14")
    A("s_lshl_b32 s42, s28, 7\ns_sub_u32 s42, s42, 16\nv_add_u32 v14, s42, v14")
    A(f"s_mul_i32 s42, s28, {16*1536}\ns_add_u32 s42, s42, {L.GST}")
    m.poll_check(F_S, False, 13)
    S0 = 16
    for i in range(16):
        vm.issue("ST", f"buffer_load_dwordx2 {v(S0+2*i,2)}, v15, s[20:23], s42 offen offset:{(i&1)*1536}{SC}")
        if i & 1:
            A("s_add_u32 s42, s42, 3072")
    m.poll_issue(F_Q, False, 13)
    A("v_and_b32 v12, 4095, v14")
    A(f"s_movk_i32 s42, {L.T}\ns_movk_i32 s43, 8192")
    A("v_cmp_gt_u32 vcc, s42, v12")
    A("v_cmp_gt_u32 s[34:35], s43, v14")
    A("s_and_b64 vcc, vcc, s[34:35]")
    A(f"v_add_u32 v15, {STT}, v15")
    vm.wait("ST")
    for i in range(1, 16):
        A(f"v_pk_add_f32 {v(S0,2)}, {v(S0,2)}, {v(S0+2*i,2)}")
    A(f"v_mul_f32 {v(S0)}, {hex(f2u(1/512))}, {v(S0)}")
    A(f"v_mul_f32 {v(S0+1)}, {hex(f2u(1/512))}, {v(S0+1)}")
    A(f"v_fma_f32 {v(S0+1)}, -{v(S0)}, {v(S0)}, {v(S0+1)}")
    A(f"v_max_f32 {v(S0+1)}, 0, {v(S0+1)}")
    A(f"v_add_f32 {v(S0+1)}, {hex(f2u(1e-5))}, {v(S0+1)}")
    A(f"v_rsq_f32 {v(S0+2)}, {v(S0+1)}")
    A(f"v_mul_f32 {v(S0+3)}, {v(S0)}, {v(S0+2)}")
    A(f"v_sub_f32 {v(S0+3)}, 0, {v(S0+3)}")
    A(f"v_cndmask_b32 {v(S0+2)}, 0, {v(S0+2)}, vcc")
    A(f"v_cndmask_b32 {v(S0+3)}, 0, {v(S0+3)}, vcc")
    A(f"ds_write_b64 v15, {v(S0+2,2)}")
    A(f"v_and_b32 v12, 15, v0\nv_lshlrev_b32 v12, 3, v12\nv_add_u32 v12, {STT}, v12")
    A("s_waitcnt lgkmcnt(0)")
    A("s_barrier")
    TB = 232
    for b in range(10):
        lk.issue(("T", b), f"ds_read_b64 {v(TB+2*b,2)}, v12 offset:{b*128}")
    m.poll_check(F_Q, False, 13)
    A(f"s_lshl_b32 s36, s28, 2\ns_add_u32 s36, s36, s3\ns_lshl_b32 s36, s36, 15\ns_add_u32 s36, s36, {L.QP}\ns_add_u32 s37, s36, 16384")
    ql = []
    for j in range(16):
        for qa in range(2):
            ql.append(lambda j=j, qa=qa: vm.issue(("Q", j), f"buffer_load_dwordx4 {R(Qr(qa,j),4)}, v1, s[20:23], s{36+qa} offen offset:{(j&3)*1024}{SC}"))
        if j % 4 == 3:
            ql.append(lambda: A("s_add_u32 s36, s36, 4096\ns_add_u32 s37, s37, 4096"))
    for b in range(10):
        lk.wait(("T", b))
        gq = g.accs[(b, 4)]
        for e in range(4):
            A(f"v_pk_fma_f32 {v(gq+2*e,2)}, {v(gq+2*e,2)}, {v(TB+2*b,2)}, {v(TB+2*b,2)} op_sel:[0,0,1] op_sel_hi:[1,0,1]")
        for e in range(4):
            A(f"v_cvt_pk_bf16_f32 {v(gq+e)}, {v(gq+2*e)}, {v(gq+2*e+1)}")
        lk.issue("wr", f"ds_write_b128 v228, {v(gq,4)} offset:{b*1024}")
        for u in range(2):
            lk.issue(("X", b), f"ds_read_b64_tr_b16 {v(B0+4*b+2*u,2)}, v229 offset:{b*1024+u*8}")
        ql.pop(0)()
        if b >= 1:
            lk.wait(("X", b - 1))
            for u in range(2):
                c4_write(lk, VA_, B0 + 4 * (b - 1) + 2 * u, b - 1, u)
    lk.wait(("X", 9))
    for u in range(2):
        c4_write(lk, VA_, B0 + 36 + 2 * u, 9, u)
    c4_core(A, lk, TAz, B0, D0, VA_, OUT, False, ql)
    A(f"s_add_u32 s41, s40, {L.Z}")
    for b in range(8):
        lk.wait(("O", b))
        t = 144 + 16 * (b & 1)
        for e in range(4):
            A(f"v_lshlrev_b32 {v(t+2*e)}, 16, {v(OUT+4*b+e)}\nv_and_b32 {v(t+2*e+1)}, s49, {v(OUT+4*b+e)}")
            A(f"v_lshlrev_b32 {v(t+8+2*e)}, 16, {v(UR+4*b+e)}\nv_and_b32 {v(t+8+2*e+1)}, s49, {v(UR+4*b+e)}")
        for e in range(4):
            A(f"v_pk_mul_f32 {v(t+2*e,2)}, {v(t+2*e,2)}, {v(t+8+2*e,2)}")
        for e in range(4):
            A(f"v_cvt_pk_bf16_f32 {v(UR+4*b+e)}, {v(t+2*e)}, {v(t+2*e+1)}")
        vm.issue("sZ", f"buffer_store_dwordx4 {v(UR+4*b,4)}, v1, s[20:23], s41 offen{SC}")
        A("s_add_u32 s41, s41, 16384")
    A.stamp(4)
    vm.wait(("KV", 1))
    A("s_barrier")
    kv(2)
    A("s_cmp_eq_u32 s30, 0\ns_addc_u32 s44, 31, 0")
    A(f"s_mov_b32 s45, {hex(f2u(THRESH))}")
    A(f"v_mov_b32 {v(KA0)}, {v(L16)}")
    A(f"v_xor_b32 {v(KA1)}, 128, {v(L16)}")
    sc = Sched(A)
    for mm_ in range(DIST):
        sc.issue(("K", mm_), kread(mm_, 0))
    A(f"v_lshrrev_b32 {v(T0)}, 2, v0")
    A(f"v_bfe_u32 {v(T0+1)}, v0, 1, 1")
    A(f"v_lshlrev_b32 {v(T0+2)}, 3, {v(T0+1)}")
    A(f"v_xor_b32 {v(T0)}, {v(T0)}, {v(T0+2)}")
    A(f"v_lshlrev_b32 {v(T0)}, 4, {v(T0)}")
    A(f"v_lshl_add_u32 {v(T0)}, {v(T0+1)}, 12, {v(T0)}")
    A(f"v_and_b32 {v(T0+1)}, 1, v0")
    A(f"v_lshl_add_u32 {v(VA)}, {v(T0+1)}, 3, {v(T0)}")
    A(f"v_xor_b32 {v(VA)}, 0x10000, {v(VA)}")
    A(f"v_mov_b32 {v(LS0)}, 0\nv_mov_b32 {v(LS1)}, 0")
    zero = [f"v_mov_b32 v{i}, 0" for i in range(128, 256)] + [f"v_accvgpr_write_b32 a{i}, 0" for i in range(128, 256)]
    for n in range(32):
        j, ka = n >> 1, n & 1
        if ka == 0:
            vm.wait(("Q", j))
            sc.wait(("K", n + 1))
        for qa in range(2):
            sr = Sreg(0, ka, qa)
            c = "0" if j == 0 else v(sr, 4)
            A(f"{MF} {v(sr,4)}, {v(ring(n),4)}, {R(Qr(qa,j),4)}, {c}")
            for _ in range(4):
                A(zero.pop(0))
        if n + DIST < 32:
            sc.issue(("K", n + DIST), kread(n + DIST, 0))
        else:
            sc.issue(("K", n + DIST - 32), kread(n + DIST - 32, 1))
    A(f"s_lshl_b32 s32, s28, 17\ns_add_u32 s32, s32, {L.Z - 16384}")
    for par in range(2):
        A(f"s_lshl_b32 s{60+par}, s31, 15\ns_add_u32 s{60+par}, s{60+par}, {L.W2 + (32+par)*16384}")
    e1 = G4(A, vm, lk, NB=10, wn=2, KS=16, kps=2, NS=4, WD=16, s_act=32, blk_stride=16384, s_w=[60, 61],
            acc0=16, fr0=128, w0=256, vl16=1, vt=116, st=50, lds0=65536, swap=True, dfl=SC, stamps=None)
    e1.setup()
    m.signal(F_Z, "sZ", T0 + 4)
    for qa in range(2):
        rowmax(A, 0, qa, T0 + qa, T0 + 2)
        for ka in range(2):
            for r in range(4):
                x = Sreg(0, ka, qa) + r
                A(f"v_sub_f32 {v(x)}, {v(x)}, {v(T0+qa)}")
        for r in range(4):
            A(f"v_sub_f32 {v(NEGM+4*qa+r)}, 0, {v(T0+qa)}")
    q0 = list(sc.q)
    A.stamp(5)
    A(".p2align 6")
    A("LOOP:")
    half(A, sc, 0, False, "L0")
    assert sc.q == q0
    A("s_sub_u32 s44, s44, 1\ns_cmp_eq_u32 s44, 1\ns_cbranch_scc1 TAIL1")
    half(A, sc, 1, False, "L1")
    assert sc.q == q0
    A("s_sub_u32 s44, s44, 1\ns_cmp_lg_u32 s44, 1\ns_cbranch_scc1 LOOP")
    def tailfill():
        vm.q = ["KVX"] * 8
        return [lambda: m.poll_issue(F_Z, True, 120), lambda: m.pf("PF_ATT_END", "PF_F_END", 122)] + e1.wlist(16)
    half(A, sc, 0, True, "T0", tailfill())
    A("s_branch EPI")
    A("TAIL1:")
    half(A, sc, 1, True, "T1", tailfill())
    A("EPI:")
    A.stamp(6)
    m.poll_check(F_Z, True, 120)
    A("s_barrier")
    for f in e1.dlist():
        f()
    for qa in range(2):
        x = LS0 + qa
        for lv in (16, 32):
            A(f"v_mov_b32 {v(T0)}, {v(x)}")
            A(f"v_permlane{lv}_swap_b32 {v(x)}, {v(T0)}")
            A(f"v_add_f32 {v(x)}, {v(x)}, {v(T0)}")
    A(f"v_and_b32 {v(T0)}, 16, v0")
    A(f"v_cmp_eq_u32 vcc, 0, {v(T0)}")
    A(f"v_cndmask_b32 {v(T0+1)}, {v(NEGM+4)}, {v(NEGM)}, vcc")
    A(f"v_cndmask_b32 {v(T0+2)}, {v(LS1)}, {v(LS0)}, vcc")
    A(f"v_sub_f32 {v(T0+1)}, 0, {v(T0+1)}")
    A(f"v_cmp_gt_u32 vcc, 32, v0")
    A(f"v_cndmask_b32 {v(T0+1)}, {v(T0+2)}, {v(T0+1)}, vcc")
    A(f"v_lshlrev_b32 {v(T0+3)}, 2, v0")
    A("s_lshl_b32 s33, s28, 2\ns_add_u32 s33, s33, s3")
    A(f"s_lshl_b32 s36, s30, 8\ns_add_u32 s36, s36, s33\ns_lshl_b32 s36, s36, 8\ns_add_u32 s36, s36, {L.PML}")
    vm.issue("sP", f"buffer_store_dword {v(T0+1)}, {v(T0+3)}, s[20:23], s36 offen{SC}")
    A(f"s_lshl_b32 s36, s30, 23\ns_lshl_b32 s37, s33, 15\ns_add_u32 s36, s36, s37\ns_add_u32 s36, s36, {L.PO}\ns_add_u32 s37, s36, 16384")
    k = 0
    for f in range(16):
        for qa in range(2):
            t = 20 + (k % 8) * 12; k += 1
            src = []
            for u in range(2):
                o = Or(2 * f + u, qa)
                if o < 256:
                    src += [o, o + 2]
                else:
                    for r in range(4):
                        A(f"v_accvgpr_read_b32 {v(t+4+4*u+r)}, {R(o+r)}")
                    src += [t + 4 + 4 * u, t + 6 + 4 * u]
            for i in range(4):
                A(f"v_cvt_pk_bf16_f32 {v(t+i)}, {v(src[i])}, {v(src[i]+1)}")
            vm.issue("sP", f"buffer_store_dwordx4 {v(t,4)}, v1, s[20:23], s{36+qa} offen offset:{(f&3)*1024}{SC}")
        if f % 4 == 3:
            A("s_add_u32 s36, s36, 4096\ns_add_u32 s37, s37, 4096")
    A("PF_ATT_END:")
    A.stamp(7)
    TA = 208
    CV = 8
    c4_addr(A, 0, CV)
    tl = c4_tload(A, vm, TA, 64)
    def extraE(k):
        out = [tl[k - 4]] if 4 <= k < 14 else []
        if k == 3:
            out.append(lambda: m.signal(F_P, "sP", 12))
        if k == 15:
            out.append(lambda: m.poll_issue(F_P, False, 13))
        return out
    e1.run(extraE)

    def conv_store(gg, half_, fill, tag):
        for b in range(10):
            for u in range(2):
                q = gg.accs[(b, u)]
                for i in range(2):
                    A(f"v_cvt_pk_bf16_f32 {v(q+i)}, {v(q+2*i)}, {v(q+2*i+1)}")
                c4_write(lk, CV, q, b, u)
            if b % 4 == 3:
                lk.wait("wr")
        vm.wait("CW")
        fl = fill() if fill else None
        c4_core(A, lk, TA, 128, 16, CV, 80, True, fl)
        A(f"s_lshl_b32 s40, s28, 18\ns_lshl_b32 s41, s31, 10\ns_add_u32 s40, s40, s41\ns_add_u32 s40, s40, {L.MM + half_*16384}")
        for b in range(8):
            lk.wait(("O", b))
            vm.issue(tag, f"buffer_store_dwordx4 {v(80+4*b,4)}, v1, s[20:23], s40 offen{SC}")
            A("s_add_u32 s40, s40, 32768")

    def comb_loads():
        m.poll_check(F_P, False, 13)
        A("s_lshl_b32 s33, s28, 2\ns_add_u32 s33, s33, s30")
        A("v_and_b32 v4, 15, v0\nv_lshlrev_b32 v4, 2, v4")
        A(f"s_lshl_b32 s34, s33, 8\ns_lshr_b32 s35, s3, 1\ns_lshl_b32 s35, s35, 6\ns_add_u32 s34, s34, s35\ns_add_u32 s34, s34, {L.PML}")
        for sp in range(4):
            vm.issue("ML", f"buffer_load_dword {v(248+sp)}, v4, s[20:23], s34 offen{SC}")
            vm.issue("ML", f"buffer_load_dword {v(252+sp)}, v4, s[20:23], s34 offen offset:128{SC}")
            A("s_add_u32 s34, s34, 65536")
        A("s_lshl_b32 s48, s33, 15\ns_lshl_b32 s35, s3, 13\ns_add_u32 s48, s48, s35")
        for sp in range(4):
            A(f"s_add_u32 s{62+2*sp}, s48, {L.PO + sp*(8<<20)}\ns_add_u32 s{63+2*sp}, s{62+2*sp}, 4096")
        out = []
        for f in range(8):
            for sp in range(4):
                out.append(lambda f=f, sp=sp: vm.issue(("P", f), f"buffer_load_dwordx4 {a_(128+16*f+4*sp,4)}, v1, s[20:23], s{62+2*sp+(f>>2)} offen offset:{(f&3)*1024}{SC}"))
        return out
    conv_store(e1, 1, comb_loads, "sML")
    A.stamp(8)
    A(f"s_lshl_b32 s32, s28, 18\ns_add_u32 s32, s32, {L.MM + 16384}")
    for par in range(2):
        A(f"s_lshl_b32 s{60+par}, s31, 16\ns_add_u32 s{60+par}, s{60+par}, {L.W3 + par*32768 + 16384}")
    gG = G4(A, vm, lk, NB=8, wn=2, KS=16, kps=2, NS=4, WD=8, s_act=32, blk_stride=32768, s_w=[60, 61],
            acc0=256 + 192, fr0=128, w0=256, vl16=1, vt=116, st=50, lds0=0, dfl=SC, stamps=None)
    gG.setup()
    wl = gG.wlist(8)
    vm.wait("ML")
    A("v_max3_f32 v24, v248, v249, v250\nv_max_f32 v24, v24, v251")
    for sp in range(4):
        A(f"v_sub_f32 {v(16+sp)}, {v(248+sp)}, v24")
    for sp in range(4):
        A(f"v_exp_f32 {v(16+sp)}, {v(16+sp)}")
    A("v_mul_f32 v25, v16, v252\nv_fmac_f32 v25, v17, v253\nv_fmac_f32 v25, v18, v254\nv_fmac_f32 v25, v19, v255")
    A("v_rcp_f32 v25, v25")
    A("s_and_b32 s34, s33, 127\ns_cmp_lt_u32 s34, 125\ns_cselect_b32 s34, 1.0, 0")
    A("v_mul_f32 v25, s34, v25")
    wr = [26, 28, 30, 32]
    for sp in range(4):
        A(f"v_mul_f32 {v(wr[sp])}, {v(16+sp)}, v25")
    A(f"s_add_u32 s34, s48, {L.AT}\ns_add_u32 s35, s34, 4096")
    for f in range(8):
        vm.wait(("P", f))
        acc, t, raw, o = 40, 48, 56, 192 + 4 * (f & 3)
        for sp in range(4):
            for e in range(4):
                A(f"v_accvgpr_read_b32 {v(raw+e)}, {a_(128+16*f+4*sp+e)}")
            for e in range(4):
                A(f"v_lshlrev_b32 {v(t+2*e)}, 16, {v(raw+e)}\nv_and_b32 {v(t+2*e+1)}, s49, {v(raw+e)}")
            for e in range(4):
                if sp == 0:
                    A(f"v_pk_mul_f32 {v(acc+2*e,2)}, {v(t+2*e,2)}, {v(wr[sp],2)} op_sel_hi:[1,0]")
                else:
                    A(f"v_pk_fma_f32 {v(acc+2*e,2)}, {v(t+2*e,2)}, {v(wr[sp],2)}, {v(acc+2*e,2)} op_sel_hi:[1,0,1]")
        for e in range(4):
            A(f"v_cvt_pk_bf16_f32 {v(o+e)}, {v(acc+2*e)}, {v(acc+2*e+1)}")
        if f == 7:
            m.signal(F_ML, "sML", 12)
        vm.issue("sAT", f"buffer_store_dwordx4 {v(o,4)}, v1, s[20:23], s{34+(f>>2)} offen offset:{(f&3)*1024}{SC}")
    for x in wl:
        x()
    m.pf("PF_F_END", "PF_END", 14)
    A("PF_F_END:")
    m.poll_issue(F_ML, False, 13)
    A.stamp(9)
    m.signal(F_AT, "sAT", 12)
    m.poll_check(F_ML, False, 13)
    A("s_barrier")
    for f in gG.dlist():
        f()
    A(f"s_lshl_b32 s32, s28, 17\ns_add_u32 s32, s32, {L.AT - 16384}")
    for par in range(2):
        A(f"s_lshl_b32 s{70+par}, s31, 15\ns_add_u32 s{70+par}, s{70+par}, {L.W2 + par*16384}")
    gH = G4(A, vm, lk, NB=10, wn=2, KS=16, kps=2, NS=4, WD=16, s_act=32, blk_stride=16384, s_w=[70, 71],
            acc0=16, fr0=128, w0=256 + 64, vl16=1, vt=120, st=62, lds0=65536, swap=True, dfl=SC, stamps=None)
    gH.setup()
    hw = gH.wlist(16)
    tl = c4_tload(A, vm, TA, 32)
    def extraG(k):
        out = hw[3 * k: 3 * k + 3] if k < 12 else []
        if 2 <= k < 12:
            out = out + [tl[k - 2]]
        if k == 11:
            out = out + [lambda: m.poll_issue(F_AT, True, 13)]
        if k == 13:
            out = out + [lambda: m.poll_check(F_AT, True, 13)] + gH.dlist()
        return out
    gG.run(extraG)
    A.stamp(10)
    A(f"s_lshl_b32 s32, s28, 18\ns_add_u32 s32, s32, {L.MM}")
    for par in range(2):
        A(f"s_lshl_b32 s{60+par}, s31, 16\ns_add_u32 s{60+par}, s{60+par}, {L.W3 + par*32768}")
    gI = G4(A, vm, lk, NB=8, wn=2, KS=16, kps=2, NS=5, WD=8, s_act=32, blk_stride=32768, s_w=[60, 61],
            acc0=256 + 192, fr0=128, w0=256, vl16=1, vt=116, st=50, lds0=65536, dfl=SC, stamps=None)
    gI.setup()
    iw = gI.wlist(8)
    gH.run(lambda k: iw[2 * k: 2 * k + 2])
    conv_store(gH, 0, None, "sMG")
    m.signal(F_MG, "sMG", 12)
    m.poll_issue(F_MG, False, 13)
    XR = 208
    A("v_and_b32 v7, 15, v0\nv_lshlrev_b32 v7, 10, v7\nv_lshrrev_b32 v6, 4, v0\nv_lshl_add_u32 v7, v6, 4, v7")
    A("s_lshr_b32 s33, s28, 5\ns_and_b32 s34, s28, 31\ns_lshl_b32 s34, s34, 7")
    A(f"s_mul_i32 s33, s33, {L.T}\ns_lshl_b32 s35, s31, 6")
    for b in range(8):
        A(f"s_add_u32 s36, s34, {16*b}\ns_add_u32 s37, s36, s33\ns_lshl_b32 s37, s37, 10\ns_add_u32 s37, s37, s35")
        A(f"s_cmp_lt_u32 s36, {L.T}\ns_cselect_b32 s{62+b}, s37, 0x40000000")
    m.poll_check(F_MG, False, 13)
    A("s_barrier")
    for f in gI.dlist():
        f()
    def extraI(k):
        if 2 <= k < 10:
            b = k - 2
            return [(("X", b), f"buffer_load_dwordx4 {v(XR+4*b,4)}, v7, s[8:11], s{62+b} offen")]
        return []
    gI.run(extraI, first_c=None)
    for b in range(8):
        vm.wait(("X", b))
        q = gI.accs[(b, 0)]
        x = XR + 4 * b
        t = 16 + 16 * (b & 1)
        for i in range(8):
            A(f"v_accvgpr_read_b32 {v(t+8+i)}, {R(q+i)}")
        for i in range(4):
            A(f"v_lshlrev_b32 {v(t+2*i)}, 16, {v(x+i)}\nv_and_b32 {v(t+2*i+1)}, s49, {v(x+i)}")
        for i in range(4):
            A(f"v_pk_add_f32 {v(t+2*i,2)}, {v(t+8+2*i,2)}, {v(t+2*i,2)}")
        for i in range(4):
            A(f"v_cvt_pk_bf16_f32 {v(x+i)}, {v(t+2*i)}, {v(t+2*i+1)}")
        vm.issue("S", f"buffer_store_dwordx4 {v(x,4)}, v7, s[12:15], s{62+b} offen")
    A.endpgm()
    A("PF_END:")
    rare(A, 0)
    rare(A, 1)
    assert A.check_branches() == 0
    return name, A.text() + "\n" + kdesc(name, 256, 256, 102), f"; @launch kernel={name} grid=(256,1,1) block=(256,1,1) lds=163840"
```

```python
from asmlib import *
import layout as L
from k0 import srd
from g4 import *
from gemm import gelu_consts, emit_gelu

IB = 4352
IG = 272
IMG = 10 * IB

def head(A, name, ptrs=()):
    A(f".globl {name}\n.p2align 8\n.type {name},@function\n{name}:\n{name}_S:")
    A("s_cmp_ge_u32 s2, 256")
    A(f"s_cbranch_scc1 {name}_END")
    A.stamp_init()
    A("s_load_dwordx2 s[16:17], s[0:1], 80")
    for (sreg, off) in ptrs:
        A(f"s_load_dwordx2 s[{sreg}:{sreg+1}], s[0:1], {off}")
    A("v_lshrrev_b32 v1, 6, v0")
    A("v_and_b32 v0, 63, v0")
    A("v_readfirstlane_b32 s3, v1")
    A("v_lshlrev_b32 v1, 4, v0")
    A("s_and_b32 s28, s2, 7\ns_lshr_b32 s29, s2, 3\ns_and_b32 s30, s29, 3\ns_lshr_b32 s29, s29, 2")
    A("s_lshl_b32 s28, s28, 3\ns_add_u32 s28, s28, s29")
    A("s_lshl_b32 s31, s30, 2\ns_add_u32 s31, s31, s3")
    A("s_mov_b32 s49, 0xffff0000")
    A("s_waitcnt lgkmcnt(0)")
    srd(A, 20, 16, L.WS_BYTES)

def tail(A, name, lds, nv=256, na=256):
    A.endpgm()
    A(f"{name}_END:")
    A("s_endpgm")
    assert A.check_branches() == 0
    return name, A.text() + "\n" + kdesc(name, nv, na, 100), f"; @launch kernel={name} grid=(256,1,1) block=(256,1,1) lds={lds}"

def phase_p1(A, vm, lk):
    A(f"s_lshl_b32 s32, s28, 17")
    if L.XA:
        A(f"s_add_u32 s32, s32, {L.XA}")
    for kind in range(3):
        for par in range(2):
            A(f"s_lshl_b32 s{34+kind*2+par}, s31, 15\ns_add_u32 s{34+kind*2+par}, s{34+kind*2+par}, {L.W1 + (kind*32+par)*16384}")
    g = G4(A, vm, lk, NB=8, wn=6, KS=16, kps=2, NS=4, WD=4, s_act=32, blk_stride=16384, s_w=list(range(34, 40)),
           acc0=16, fr0=256, w0=320, vl16=1, vt=2, st=50)
    g.setup()
    g.prefetch()
    A.stamp(1)
    g.run()
    A.prefetch_code("k2_attn_kernel_S", "K2_END", 32768, 8, vm=vm)
    A("s_lshl_b32 s40, s28, 17\ns_lshl_b32 s41, s31, 10\ns_add_u32 s40, s40, s41")
    A(f"s_add_u32 s41, s40, {L.U}\ns_add_u32 s42, s40, {L.G}\ns_add_u32 s40, s40, {L.QP}")
    c0, c1 = gelu_consts()
    tmp = list(range(208, 224))
    st = 224
    A(f"v_mov_b32 v6, {hex(f2u(c0))}\ns_mov_b32 s43, {hex(f2u(c1))}")
    for b in range(8):
        q = g.accs[(b, 0)]
        for i in range(4):
            A(f"v_cvt_pk_bf16_f32 {v(q+i)}, {v(q+2*i)}, {v(q+2*i+1)}")
        vm.issue("S", f"buffer_store_dwordx4 {v(q,4)}, v1, s[20:23], s40 offen")
        A("s_add_u32 s40, s40, 16384")
    for b in range(8):
        u, gq = g.accs[(b, 2)], g.accs[(b, 4)]
        emit_gelu(A, list(range(u, u + 8)) + list(range(gq, gq + 8)), tmp, 6, 43)
        for i in range(4):
            A(f"v_cvt_pk_bf16_f32 {v(u+i)}, {v(u+2*i)}, {v(u+2*i+1)}")
        vm.issue("S", f"buffer_store_dwordx4 {v(u,4)}, v1, s[20:23], s41 offen")
        for i in range(4):
            A(f"v_cvt_pk_bf16_f32 {v(u+4+i)}, {v(gq+2*i)}, {v(gq+2*i+1)}")
        vm.issue("S", f"buffer_store_dwordx4 {v(u+4,4)}, v1, s[20:23], s42 offen")
        A("s_add_u32 s41, s41, 16384\ns_add_u32 s42, s42, 16384")
        s1, s2 = st + (b >> 2) * 8 + (b & 3), st + (b >> 2) * 8 + 4 + (b & 3)
        A(f"v_add_f32 {v(s1)}, {v(gq)}, {v(gq+1)}")
        A(f"v_mul_f32 {v(s2)}, {v(gq)}, {v(gq)}")
        for i in range(1, 8):
            if i >= 2:
                A(f"v_add_f32 {v(s1)}, {v(s1)}, {v(gq+i)}")
            A(f"v_fmac_f32 {v(s2)}, {v(gq+i)}, {v(gq+i)}")
    A("s_lshl_b32 s37, s28, 5\ns_add_u32 s37, s37, s31\ns_lshl_b32 s37, s37, 9")
    A(f"s_add_u32 s37, s37, {L.GST}\ns_add_u32 s38, s37, 8192")
    A("v_lshlrev_b32 v7, 3, v0")
    for h in range(2):
        for o in (0, 4):
            x = st + h * 8 + o
            A(f"v_permlane32_swap_b32 {v(x)}, {v(x+2)}")
            A(f"v_permlane32_swap_b32 {v(x+1)}, {v(x+3)}")
            A(f"v_add_f32 {v(x)}, {v(x)}, {v(x+2)}")
            A(f"v_add_f32 {v(x+1)}, {v(x+1)}, {v(x+3)}")
            A(f"v_permlane16_swap_b32 {v(x)}, {v(x+1)}")
            A(f"v_add_f32 {v(x)}, {v(x)}, {v(x+1)}")
        x = st + h * 8
        A(f"v_mov_b32 {v(x+1)}, {v(x+4)}")
        vm.issue("S", f"buffer_store_dwordx2 {v(x,2)}, v7, s[20:23], s{37+h} offen")

def gen_k1n():
    A = Asm(); name = "k1_gemm_kernel"
    head(A, name)
    vm, lk = Q(A, "vmcnt", 63), Q(A, "lgkmcnt", 15)
    phase_p1(A, vm, lk)
    return tail(A, name, 65536, 256, 160)

RS = 336
T4B = 32 * RS
M4 = "v_mfma_f32_4x4x4_16b_bf16"

def c4_tload(A, vm, TA, grp0, tag="CW", sr=42):
    A(f"s_mul_i32 s{sr}, s31, 10240\ns_add_u32 s{sr}, s{sr}, {L.TT + grp0*5120}\ns_add_u32 s{sr+1}, s{sr}, 4096\ns_add_u32 s{sr+2}, s{sr}, 8192")
    return [(tag, f"buffer_load_dwordx4 {R(TA+4*i,4)}, v1, s[20:23], s{sr+(i>>2)} offen offset:{(i&3)*1024}") for i in range(10)]

def c4_addr(A, base, VA_):
    A(f"s_mul_i32 s45, s3, {T4B}\ns_add_u32 s45, s45, {base}")
    A(f"v_and_b32 {v(VA_)}, 15, v0\nv_mul_u32_u24 {v(VA_)}, {RS}, {v(VA_)}\nv_lshrrev_b32 {v(VA_+1)}, 4, v0")
    A(f"v_lshl_add_u32 {v(VA_)}, {v(VA_+1)}, 3, {v(VA_)}\nv_add_u32 {v(VA_)}, s45, {v(VA_)}")
    A(f"v_lshrrev_b32 {v(VA_+1)}, 2, v0\nv_mul_u32_u24 {v(VA_+1)}, {RS}, {v(VA_+1)}\nv_add_u32 {v(VA_+1)}, s45, {v(VA_+1)}")
    A(f"v_and_b32 {v(VA_+3)}, 3, v0")
    A(f"v_lshl_add_u32 {v(VA_+2)}, {v(VA_+3)}, 3, {v(VA_+1)}")
    A(f"v_lshl_add_u32 {v(VA_+1)}, {v(VA_+3)}, 6, {v(VA_+1)}")

def c4_write(lk, VA_, reg, b, u):
    lk.issue("wr", f"ds_write_b64 {v(VA_)}, {v(reg,2)} offset:{u*16*RS + b*32}")

def c4_core(A, lk, TA, B0, D0, VA_, OUT, ident, fill=None):
    fill = list(fill or [])
    for h in range(2):
        for p in range(8):
            lk.issue(("B", h, p), f"ds_read_b128 {v(B0+32*h+4*p,4)}, {v(VA_+1)} offset:{h*16*RS + p*16}")
        if h == 0:
            lk.wait(("B", 0, 3))
    for h in range(2):
        for s_ in range(10 if ident else 9):
            if s_ < 9:
                lk.wait(("B", h, min(7, (7 + s_) >> 1)))
            for o in range(8):
                d = D0 + 32 * h + 4 * o
                un = o + (s_ if s_ < 9 else 4)
                c = "0" if s_ == 0 else v(d, 4)
                A(f"{M4} {v(d,4)}, {R(TA+20*h+2*s_,2)}, {v(B0+32*h+2*un,2)}, {c}")
                if fill and o % 2 == 1:
                    fill.pop(0)()
                if h == 1 and s_ >= 1 and s_ <= 4 and o % 2 == 0:
                    i = (s_ - 1) * 4 + o // 2
                    A(f"v_cvt_pk_bf16_f32 {v(B0+i)}, {v(D0+2*i)}, {v(D0+2*i+1)}")
            if h == 1 and s_ == 5:
                for p in range(4):
                    lk.issue("wr", f"ds_write_b128 {v(VA_+1)}, {v(B0+4*p,4)} offset:{p*16}")
    for x in fill:
        x()
    for i in range(16):
        A(f"v_cvt_pk_bf16_f32 {v(B0+32+i)}, {v(D0+32+2*i)}, {v(D0+32+2*i+1)}")
    for p in range(4):
        lk.issue("wr", f"ds_write_b128 {v(VA_+1)}, {v(B0+32+4*p,4)} offset:{16*RS + p*16}")
    for b in range(8):
        lk.issue(("O", b), f"ds_read_b64_tr_b16 {v(OUT+4*b,2)}, {v(VA_+2)} offset:{b*32}")
        lk.issue(("O", b), f"ds_read_b64_tr_b16 {v(OUT+4*b+2,2)}, {v(VA_+2)} offset:{16*RS + b*32}")
        if b == 3:
            lk.wait(("O", 1))

def phase_z(A, vm, lk, pre=None):
    TA, B0, D0, VA_ = 16, 56, 120, 8
    ACC = 120
    GR, UR = 184, 224
    FST = 4 * T4B
    STT = FST + 40960
    A("s_lshl_b32 s47, s3, 6\nv_add_u32 v13, s47, v0")
    A("s_lshl_b32 s47, s28, 7\ns_sub_u32 s47, s47, 16\nv_add_u32 v14, s47, v13")
    A("v_lshrrev_b32 v15, 6, v14\nv_and_b32 v15, 127, v15\nv_lshlrev_b32 v15, 13, v15")
    A("v_and_b32 v2, 63, v14\nv_lshl_add_u32 v15, v2, 3, v15")
    A(f"s_mov_b32 s47, {L.GST}\ns_add_u32 s48, s47, 4096")
    for i in range(16):
        vm.issue("ST", f"buffer_load_dwordx2 {v(ACC+2*i,2)}, v15, s[20:23], s{47+(i>>3)} offen offset:{(i&7)*512}")
    A(f"s_lshl_b32 s40, s28, 17\ns_lshl_b32 s41, s31, 10\ns_add_u32 s40, s40, s41")
    A(f"s_add_u32 s41, s40, {L.G - 16384}")
    for b in range(10):
        vm.issue(("G", b), f"buffer_load_dwordx4 {v(GR+4*b,4)}, v1, s[20:23], s41 offen")
        A("s_add_u32 s41, s41, 16384")
    for t, x in c4_tload(A, vm, TA, 0):
        vm.issue(t, x)
    A(f"s_add_u32 s41, s40, {L.U}")
    for b in range(8):
        vm.issue(("U", b), f"buffer_load_dwordx4 {v(UR+4*b,4)}, v1, s[20:23], s41 offen")
        A("s_add_u32 s41, s41, 16384")
    c4_addr(A, 0, VA_)
    A(f"s_mul_i32 s45, s3, 10240\ns_add_u32 s45, s45, {FST}\nv_add_u32 v3, s45, v1")
    A("v_lshrrev_b32 v12, 2, v0\nv_lshlrev_b32 v12, 4, v12\nv_and_b32 v2, 3, v0\nv_lshl_add_u32 v12, v2, 8, v12\nv_add_u32 v12, s45, v12")
    vm.wait("ST")
    for i in range(1, 16):
        A(f"v_pk_add_f32 {v(ACC,2)}, {v(ACC,2)}, {v(ACC+2*i,2)}")
    A(f"v_mul_f32 {v(ACC)}, {hex(f2u(1/512))}, {v(ACC)}")
    A(f"v_mul_f32 {v(ACC+1)}, {hex(f2u(1/512))}, {v(ACC+1)}")
    A(f"v_fma_f32 {v(ACC+1)}, -{v(ACC)}, {v(ACC)}, {v(ACC+1)}")
    A(f"v_max_f32 {v(ACC+1)}, 0, {v(ACC+1)}")
    A(f"v_add_f32 {v(ACC+1)}, {hex(f2u(1e-5))}, {v(ACC+1)}")
    A(f"v_rsq_f32 {v(ACC+2)}, {v(ACC+1)}")
    A(f"v_mul_f32 {v(ACC+3)}, {v(ACC)}, {v(ACC+2)}")
    A(f"v_sub_f32 {v(ACC+3)}, 0, {v(ACC+3)}")
    A("v_and_b32 v2, 4095, v14")
    A(f"s_movk_i32 s47, {L.T}\ns_movk_i32 s48, 8192")
    A("v_cmp_gt_u32 vcc, s47, v2")
    A("v_cmp_gt_u32 s[50:51], s48, v14")
    A("s_and_b64 vcc, vcc, s[50:51]")
    A("s_nop 1")
    A(f"v_cndmask_b32 {v(ACC+2)}, 0, {v(ACC+2)}, vcc")
    A(f"v_cndmask_b32 {v(ACC+3)}, 0, {v(ACC+3)}, vcc")
    A(f"v_lshlrev_b32 v2, 3, v13\nv_add_u32 v2, {STT}, v2")
    A(f"ds_write_b64 v2, {v(ACC+2,2)}")
    A("s_waitcnt lgkmcnt(0)")
    A("s_barrier")
    A(f"v_and_b32 v2, 15, v0\nv_lshlrev_b32 v2, 3, v2\nv_add_u32 v2, {STT}, v2")
    for b in range(10):
        lk.issue(("T", b), f"ds_read_b64 {v(ACC+2*b,2)}, v2 offset:{b*128}")
    for b in range(10):
        waits(A, vm, [("G", b)], lk, [("T", b)])
        t = ACC + 24 + 8 * (b & 1)
        for e in range(4):
            A(f"v_lshlrev_b32 {v(t+2*e)}, 16, {v(GR+4*b+e)}\nv_and_b32 {v(t+2*e+1)}, s49, {v(GR+4*b+e)}")
        for e in range(4):
            A(f"v_pk_fma_f32 {v(t+2*e,2)}, {v(t+2*e,2)}, {v(ACC+2*b,2)}, {v(ACC+2*b,2)} op_sel:[0,0,1] op_sel_hi:[1,0,1]")
        for e in range(4):
            A(f"v_cvt_pk_bf16_f32 {v(GR+4*b+e)}, {v(t+2*e)}, {v(t+2*e+1)}")
        lk.issue("wr", f"ds_write_b128 v3, {v(GR+4*b,4)} offset:{b*1024}")
        for u in range(2):
            lk.issue(("X", b), f"ds_read_b64_tr_b16 {v(B0+4*b+2*u,2)}, v12 offset:{b*1024+u*8}")
        if b >= 1:
            lk.wait(("X", b - 1))
            for u in range(2):
                c4_write(lk, VA_, B0 + 4 * (b - 1) + 2 * u, b - 1, u)
    lk.wait(("X", 9))
    for u in range(2):
        c4_write(lk, VA_, B0 + 36 + 2 * u, 9, u)
    vm.wait("CW")
    A.stamp(2)
    c4_core(A, lk, TA, B0, D0, VA_, GR, False, pre() if pre else None)
    A.stamp(3)
    A(f"s_add_u32 s41, s40, {L.Z}")
    for b in range(8):
        waits(A, vm, [("U", b)], lk, [("O", b)])
        t = ACC + 16 * (b & 1)
        for e in range(4):
            A(f"v_lshlrev_b32 {v(t+2*e)}, 16, {v(GR+4*b+e)}\nv_and_b32 {v(t+2*e+1)}, s49, {v(GR+4*b+e)}")
            A(f"v_lshlrev_b32 {v(t+8+2*e)}, 16, {v(UR+4*b+e)}\nv_and_b32 {v(t+8+2*e+1)}, s49, {v(UR+4*b+e)}")
        for e in range(4):
            A(f"v_pk_mul_f32 {v(t+2*e,2)}, {v(t+2*e,2)}, {v(t+8+2*e,2)}")
        for e in range(4):
            A(f"v_cvt_pk_bf16_f32 {v(GR+4*b+e)}, {v(t+2*e)}, {v(t+2*e+1)}")
        vm.issue("S", f"buffer_store_dwordx4 {v(GR+4*b,4)}, v1, s[20:23], s41 offen")
        A("s_add_u32 s41, s41, 16384")
    return STT + 2048

def comb_loads(A, vm):
    A("s_lshl_b32 s52, s28, 2\ns_add_u32 s52, s52, s30")
    A("v_and_b32 v4, 15, v0\nv_lshlrev_b32 v4, 2, v4")
    A(f"s_lshl_b32 s53, s52, 8\ns_lshr_b32 s54, s3, 1\ns_lshl_b32 s54, s54, 6\ns_add_u32 s53, s53, s54\ns_add_u32 s53, s53, {L.PML}")
    for sp in range(4):
        vm.issue("ML", f"buffer_load_dword {a_(128+sp)}, v4, s[20:23], s53 offen")
        vm.issue("ML", f"buffer_load_dword {a_(132+sp)}, v4, s[20:23], s53 offen offset:128")
        A("s_add_u32 s53, s53, 65536")
    A("s_lshl_b32 s55, s52, 15\ns_lshl_b32 s54, s3, 13\ns_add_u32 s55, s55, s54")
    for sp in range(4):
        A(f"s_add_u32 s{56+2*sp}, s55, {L.PO + sp*(8<<20)}\ns_add_u32 s{57+2*sp}, s{56+2*sp}, 4096")
    out = []
    for f in range(8):
        for sp in range(4):
            out.append(lambda f=f, sp=sp: vm.issue(("P", f), f"buffer_load_dwordx4 {a_(16*f+4*sp,4)}, v1, s[20:23], s{56+2*sp+(f>>2)} offen offset:{(f&3)*1024}"))
    return out

def phase_comb(A, vm, lk):
    vm.wait("ML")
    for i in range(8):
        A(f"v_accvgpr_read_b32 {v(16+i)}, {a_(128+i)}")
    A("v_max3_f32 v24, v16, v17, v18\nv_max_f32 v24, v24, v19")
    for sp in range(4):
        A(f"v_sub_f32 {v(16+sp)}, {v(16+sp)}, v24")
    for sp in range(4):
        A(f"v_exp_f32 {v(16+sp)}, {v(16+sp)}")
    A("v_mul_f32 v25, v16, v20\nv_fmac_f32 v25, v17, v21\nv_fmac_f32 v25, v18, v22\nv_fmac_f32 v25, v19, v23")
    A("v_rcp_f32 v25, v25")
    A("s_and_b32 s53, s52, 127\ns_cmp_lt_u32 s53, 125\ns_cselect_b32 s53, 1.0, 0")
    A("v_mul_f32 v25, s53, v25")
    wr = [26, 28, 30, 32]
    for sp in range(4):
        A(f"v_mul_f32 {v(wr[sp])}, {v(16+sp)}, v25")
    A(f"s_add_u32 s44, s55, {L.AT}\ns_add_u32 s45, s44, 4096")
    for f in range(8):
        vm.wait(("P", f))
        acc, t, raw, o = 40, 48, 56, 64 + 4 * f
        for sp in range(4):
            for e in range(4):
                A(f"v_accvgpr_read_b32 {v(raw+e)}, {a_(16*f+4*sp+e)}")
            for e in range(4):
                A(f"v_lshlrev_b32 {v(t+2*e)}, 16, {v(raw+e)}\nv_and_b32 {v(t+2*e+1)}, s49, {v(raw+e)}")
            for e in range(4):
                if sp == 0:
                    A(f"v_pk_mul_f32 {v(acc+2*e,2)}, {v(t+2*e,2)}, {v(wr[sp],2)} op_sel_hi:[1,0]")
                else:
                    A(f"v_pk_fma_f32 {v(acc+2*e,2)}, {v(t+2*e,2)}, {v(wr[sp],2)}, {v(acc+2*e,2)} op_sel_hi:[1,0,1]")
        for e in range(4):
            A(f"v_cvt_pk_bf16_f32 {v(o+e)}, {v(acc+2*e)}, {v(acc+2*e+1)}")
        vm.issue("S", f"buffer_store_dwordx4 {v(o,4)}, v1, s[20:23], s{44+(f>>2)} offen offset:{(f&3)*1024}")

def gen_k3n():
    A = Asm(); name = "k3_comb_kernel"
    head(A, name)
    vm, lk = Q(A, "vmcnt", 63), Q(A, "lgkmcnt", 15)
    lds = phase_z(A, vm, lk, pre=lambda: comb_loads(A, vm))
    A.stamp(4)
    A.prefetch_code("k4_gemm_kernel_S", "k4_gemm_kernel_END", 32768, 2, vm=vm)
    phase_comb(A, vm, lk)
    return tail(A, name, lds, 256, 136)

def p4_make(A, vm, lk, half, w0, st, vt):
    src = L.Z if half else L.AT
    A(f"s_lshl_b32 s32, s28, 17\ns_add_u32 s32, s32, {src - 16384}")
    sw = [60 + 2 * half, 61 + 2 * half]
    for par in range(2):
        A(f"s_lshl_b32 s{sw[par]}, s31, 15\ns_add_u32 s{sw[par]}, s{sw[par]}, {L.W2 + (half*32+par)*16384}")
    g = G4(A, vm, lk, NB=10, wn=2, KS=16, kps=2, NS=4, WD=8, s_act=32, blk_stride=16384, s_w=sw,
           acc0=16, fr0=96, w0=w0, vl16=1, vt=vt, st=st, swap=True)
    g.setup()
    return g

def p4_finish(A, vm, lk, g, half, TA, fill=None):
    B0, D0, VA_ = 96, 160, 240
    for b in range(10):
        for u in range(2):
            q = g.accs[(b, u)]
            for i in range(2):
                A(f"v_cvt_pk_bf16_f32 {v(q+i)}, {v(q+2*i)}, {v(q+2*i+1)}")
            c4_write(lk, VA_, q, b, u)
        if b % 4 == 3:
            lk.wait("wr")
    vm.wait("CW")
    c4_core(A, lk, TA, B0, D0, VA_, 16, True, fill)
    A(f"s_lshl_b32 s40, s28, 18\ns_lshl_b32 s41, s31, 10\ns_add_u32 s40, s40, s41\ns_add_u32 s40, s40, {L.MM + half*16384}")
    for b in range(8):
        lk.wait(("O", b))
        vm.issue("S", f"buffer_store_dwordx4 {v(16+4*b,4)}, v1, s[20:23], s40 offen")
        A("s_add_u32 s40, s40, 32768")

def gen_k4n():
    A = Asm(); name = "k4_gemm_kernel"
    head(A, name)
    vm, lk = Q(A, "vmcnt", 63), Q(A, "lgkmcnt", 15)
    img = 81920
    g1 = p4_make(A, vm, lk, 1, 256, 50, 2)
    g1.prefetch()
    c4_addr(A, img, 240)
    A.stamp(1)
    tl = c4_tload(A, vm, 256 + 128, 64)
    g1.run(lambda k: [tl[k - 4]] if 4 <= k < 14 else [])
    A("s_barrier")
    g0 = p4_make(A, vm, lk, 0, 256 + 64, 66, 8)
    p4_finish(A, vm, lk, g1, 1, 256 + 128, g0.prefetch_list())
    A.stamp(5)
    A.prefetch_code("k5_gemm_kernel_S", "k5_gemm_kernel_END", 32768, 12, vm=vm)
    tl = c4_tload(A, vm, 256 + 128, 32)
    g0.run(lambda k: [tl[k - 4]] if 4 <= k < 14 else [])
    p4_finish(A, vm, lk, g0, 0, 256 + 128)
    return tail(A, name, img + 4 * T4B, 256, 168)

def gen_k5n():
    A = Asm(); name = "k5_gemm_kernel"
    head(A, name, [(4, 0), (6, 64)])
    srd(A, 8, 4, 2 * L.T * 1024)
    srd(A, 12, 6, 2 * L.T * 1024)
    vm, lk = Q(A, "vmcnt", 63), Q(A, "lgkmcnt", 15)
    A(f"s_lshl_b32 s32, s28, 18\ns_add_u32 s32, s32, {L.MM}")
    for par in range(2):
        A(f"s_lshl_b32 s{34+par}, s31, 16\ns_add_u32 s{34+par}, s{34+par}, {L.W3 + par*32768}")
    g = G4(A, vm, lk, NB=8, wn=2, KS=32, kps=2, NS=8, WD=16, s_act=32, blk_stride=32768, s_w=[34, 35],
           acc0=16, fr0=80, w0=256, vl16=1, vt=2, st=50)
    g.setup()
    g.prefetch(nw=12)
    XR = 144
    A("v_and_b32 v7, 15, v0\nv_lshlrev_b32 v7, 10, v7\nv_lshrrev_b32 v8, 4, v0\nv_lshl_add_u32 v7, v8, 4, v7")
    A("s_lshr_b32 s60, s28, 5\ns_and_b32 s61, s28, 31\ns_lshl_b32 s61, s61, 7")
    A(f"s_mul_i32 s60, s60, {L.T}\ns_lshl_b32 s62, s31, 6")
    for b in range(8):
        A(f"s_add_u32 s63, s61, {16*b}\ns_add_u32 s64, s63, s60\ns_lshl_b32 s64, s64, 10\ns_add_u32 s64, s64, s62")
        A(f"s_cmp_lt_u32 s63, {L.T}\ns_cselect_b32 s{66+b}, s64, 0x40000000")
    def extra(k):
        if 20 <= k < 28:
            b = k - 20
            return [(("X", b), f"buffer_load_dwordx4 {v(XR+4*b,4)}, v7, s[8:11], s{66+b} offen")]
        return []
    A.stamp(1)
    g.run(extra)
    for b in range(8):
        vm.wait(("X", b))
        q = g.accs[(b, 0)]
        x = XR + 4 * b
        t = 80 + 8 * (b & 1)
        for i in range(4):
            A(f"v_lshlrev_b32 {v(t+2*i)}, 16, {v(x+i)}\nv_and_b32 {v(t+2*i+1)}, s49, {v(x+i)}")
        for i in range(4):
            A(f"v_pk_add_f32 {v(q+2*i,2)}, {v(q+2*i,2)}, {v(t+2*i,2)}")
        for i in range(4):
            A(f"v_cvt_pk_bf16_f32 {v(x+i)}, {v(q+2*i)}, {v(q+2*i+1)}")
        vm.issue("S", f"buffer_store_dwordx4 {v(x,4)}, v7, s[12:15], s{66+b} offen")
    return tail(A, name, 131072, 256, 128)
```

```python
import re

TRANS = ("v_exp_f32", "v_log_f32", "v_rcp_f32", "v_rsq_f32", "v_sqrt_f32", "v_sin_f32", "v_cos_f32")

_reg_re = re.compile(r"^(-|abs\(|\|)?([vas])(\d+)\)?\|?$")
_rng_re = re.compile(r"^(-|abs\(|\|)?([vas])\[(\d+):(\d+)\]\)?\|?$")


def regs_of(op):
    op = op.strip()
    m = _reg_re.match(op)
    if m:
        return [(m.group(2), int(m.group(3)))]
    m = _rng_re.match(op)
    if m:
        return [(m.group(2), i) for i in range(int(m.group(3)), int(m.group(4)) + 1)]
    if op == "vcc":
        return [("s", "vcc")]
    if op == "exec":
        return [("s", "exec")]
    if op == "m0":
        return [("s", "m0")]
    return []


def split_ops(s):
    out, cur, depth = [], "", 0
    for ch in s:
        if ch == "[":
            depth += 1
        if ch == "]":
            depth -= 1
        if ch == "," and depth == 0:
            out.append(cur.strip())
            cur = ""
        else:
            cur += ch
    if cur.strip():
        out.append(cur.strip())
    return out


class Ins:
    __slots__ = ("text", "mn", "cls", "w", "r", "ws", "passes", "srcc", "dst", "ab", "data", "lds", "dpp")

    def __init__(self, text):
        self.text = text
        t = text.split(";")[0].strip()
        self.w, self.r = set(), set()
        self.ws = 1
        self.passes = 0
        self.srcc, self.dst, self.ab, self.data = [], [], [], []
        self.lds = False
        self.dpp = False
        if not t or t.endswith(":") or t.startswith("."):
            self.mn, self.cls, self.ws = "", "label", 0
            return
        parts = t.split(None, 1)
        mn = parts[0]
        self.mn = mn
        rest = parts[1] if len(parts) > 1 else ""
        ops = split_ops(rest)
        mods = ""
        if ops:
            sp = ops[-1].split(None, 1)
            if len(sp) > 1 and not ops[-1].startswith("abs("):
                ops[-1], mods = sp[0], sp[1]
        R = [regs_of(o) for o in ops]
        if mn == "s_nop":
            self.cls, self.ws = "nop", int(ops[0], 0) + 1
        elif mn.startswith("v_mfma"):
            self.cls = "mfma"
            self.passes = 8 if "32x32" in mn else (2 if "4x4x4" in mn else 4)
            self.dst, self.ab, self.srcc = R[0], R[1] + R[2], R[3]
            self.w |= set(R[0])
            self.r |= set(R[1] + R[2] + R[3])
        elif mn.startswith("v_"):
            self.cls = "trans" if mn.replace("_e32", "").replace("_e64", "") in TRANS else "valu"
            if "dpp" in mn or "row_" in mods or "quad_perm" in mods:
                self.dpp = True
            if mn.startswith("v_cmp"):
                self.w |= set(R[0])
                for x in R[1:]:
                    self.r |= set(x)
            elif mn.startswith("v_permlane") and "swap" in mn:
                self.w |= set(R[0] + R[1])
                self.r |= set(R[0] + R[1])
            elif mn.startswith(("v_add_co", "v_sub_co", "v_addc_co", "v_subb_co")):
                self.w |= set(R[0] + R[1])
                for x in R[2:]:
                    self.r |= set(x)
            else:
                self.w |= set(R[0])
                for x in R[1:]:
                    self.r |= set(x)
                if mn.startswith(("v_fmac", "v_dot2c", "v_pk_fmac", "v_writelane")) or self.dpp:
                    self.r |= set(R[0])
                if mn.startswith("v_cndmask") and len(ops) == 3:
                    self.r.add(("s", "vcc"))
        elif mn.startswith("ds_"):
            self.cls = "ds"
            if mn.startswith(("ds_read", "ds_bpermute", "ds_permute", "ds_swizzle")):
                self.w |= set(R[0])
                for x in R[1:]:
                    self.r |= set(x)
            else:
                for x in R:
                    self.r |= set(x)
        elif mn.startswith(("buffer_", "global_")):
            self.cls = "vmem"
            if " lds" in (" " + mods) :
                self.lds = True
                for x in R:
                    self.r |= set(x)
                self.r.add(("s", "m0"))
            elif "load" in mn:
                self.w |= set(R[0])
                for x in R[1:]:
                    self.r |= set(x)
                if "d16" in mn:
                    self.r |= set(R[0])
            else:
                for x in R:
                    self.r |= set(x)
                d = R[0] if mn.startswith("buffer_") else R[1]
                if mn.endswith(("x3", "x4")):
                    self.data = d
        elif mn.startswith("s_"):
            self.cls = "salu"
            if mn.startswith(("s_cmp", "s_cbranch", "s_branch", "s_waitcnt", "s_barrier", "s_endpgm", "s_setprio", "s_sleep")):
                for x in R:
                    self.r |= set(x)
            else:
                if R:
                    self.w |= set(R[0])
                for x in R[1:]:
                    self.r |= set(x)
                if "saveexec" in mn:
                    self.w.add(("s", "exec"))
        else:
            raise ValueError("unknown instr " + text)


def need(p, c):
    n = 0
    pv = p.cls in ("valu", "trans")
    cv = c.cls in ("valu", "trans")
    if pv:
        wv = {x for x in p.w if x[0] != "s"}
        wsg = {x for x in p.w if x[0] == "s"}
        if c.cls == "mfma" and wv & c.r:
            n = max(n, 2)
        if wsg & c.r:
            if c.cls == "vmem":
                n = max(n, 5)
            if cv:
                n = max(n, 4 if c.mn.startswith(("v_readlane", "v_writelane")) else 2)
        if cv and wv & c.r:
            if c.mn.startswith(("v_readfirstlane", "v_readlane")):
                n = max(n, 1)
            if c.mn.startswith("v_permlane") or c.dpp:
                n = max(n, 2)
            if p.cls == "trans" and c.cls != "trans":
                n = max(n, 1)
    if p.cls == "mfma":
        ix = {2: 0, 4: 1, 8: 2}[p.passes]
        if c.cls == "mfma":
            if p.w & set(c.ab):
                n = max(n, (5, 8, 12)[ix])
            if p.w & set(c.srcc):
                if not (p.dst == c.srcc and p.passes == c.passes):
                    n = max(n, (4, 6, 10)[ix])
                elif p.passes == 2:
                    n = max(n, 2)
        elif c.cls in ("valu", "trans", "ds", "vmem"):
            if p.w & (c.r | c.w):
                n = max(n, (5, 8, 12)[ix])
            if cv and set(p.srcc) & c.w:
                n = max(n, (1, 3, 7)[ix])
    if p.cls == "salu" and ("s", "m0") in p.w and c.lds:
        n = max(n, 1)
    if p.cls == "vmem" and p.data and set(p.data) & c.w:
        n = max(n, 2 if cv else 1)
    return n


import os
STAMPS = bool(os.environ.get("STAMPS"))
STAMPSET = os.environ.get("STAMPS", "").split(",")[:10]
TS_BASE = 120 << 20
_kidx = [0]
SB = 72
TIMER = "s_memtime" if os.environ.get("CYC") else "s_memrealtime"
NST = 12

class Asm:
    def stamp(self, n):
        if isinstance(n, str):
            if n not in STAMPSET:
                return
            n = 1 + STAMPSET.index(n)
        if STAMPS:
            self(f"{TIMER} s[{SB+2*n}:{SB+1+2*n}]")

    def stamp_init(self):
        if STAMPS:
            self.kidx = _kidx[0]; _kidx[0] += 1
            for n in range(1, NST):
                self(f"s_mov_b32 s{SB+2*n}, 0")
            self.stamp(0)

    def endpgm(self):
        if STAMPS:
            lb = self.label("NOSTAMP%d" % self.kidx)
            self("s_waitcnt vmcnt(0)")
            self.stamp(NST - 1)
            self("s_waitcnt lgkmcnt(0)")
            for n in range(NST):
                self(f"v_mov_b32 v{4+n}, s{SB+2*n}")
            self(f"s_lshl_b32 s{SB}, s2, 3\ns_add_u32 s{SB}, s{SB}, s3\ns_lshl_b32 s{SB}, s{SB}, 6\ns_add_u32 s{SB}, s{SB}, {TS_BASE + self.kidx * 524288}")
            self("v_mov_b32 v0, 0\ns_mov_b64 exec, 1")
            for n in range(NST // 4):
                self(f"buffer_store_dwordx4 v[{4+4*n}:{7+4*n}], v0, s[20:23], s{SB} offen offset:{16*n}")
        self("s_endpgm")

    def prefetch_code(self, start, end, nbytes, vt, nwaves=4, sr=96, vm=None):
        lb = self.label("PC" + start)
        self(f"s_getpc_b64 s[{sr}:{sr+1}]")
        self(f"{lb}:")
        self(f"s_add_u32 s{sr}, s{sr}, {start}-{lb}")
        self(f"s_addc_u32 s{sr+1}, s{sr+1}, ({start}-{lb})>>32")
        self(f"s_and_b32 s{sr+1}, s{sr+1}, 0xffff")
        self(f"s_mov_b32 s{sr+2}, {end}-{start}")
        self(f"s_mov_b32 s{sr+3}, 0x20000")
        self(f"s_lshl_b32 s{sr+4}, s3, 13")
        self(f"v_lshlrev_b32 v{vt}, 7, v0")
        n = (nbytes + nwaves * 8192 - 1) // (nwaves * 8192)
        for i in range(n):
            t = f"buffer_load_dword v{vt+1}, v{vt}, s[{sr}:{sr+3}], s{sr+4} offen"
            if vm is not None:
                vm.issue("PC", t)
            else:
                self(t)
            if i + 1 < n:
                self(f"s_add_u32 s{sr+4}, s{sr+4}, {nwaves*8192}")
        return n

    def __init__(self):
        self.lines = []
        self.auto = True
        self.nlabel = 0
        self.inserted = 0

    def __call__(self, text):
        for ln in text.split("\n"):
            ln = ln.strip()
            if not ln:
                continue
            ins = Ins(ln)
            if self.auto and ins.cls not in ("label", "nop"):
                d = 0
                req = 0
                for p in reversed(self.lines):
                    if d >= 20:
                        break
                    if p.cls not in ("label", "nop"):
                        req = max(req, need(p, ins) - d)
                    d += p.ws
                if req > 0:
                    self.lines.append(Ins(f"s_nop {req - 1}"))
                    self.inserted += 1
            self.lines.append(ins)

    def label(self, prefix="L"):
        self.nlabel += 1
        return f"{prefix}_{self.nlabel}"

    def check_branches(self):
        pos = {}
        for i, x in enumerate(self.lines):
            t = x.text.split(";")[0].strip()
            if x.cls == "label" and t.endswith(":"):
                pos[t[:-1]] = i
        bad = 0
        for i, x in enumerate(self.lines):
            if x.mn.startswith(("s_cbranch", "s_branch")):
                tgt = x.text.split(";")[0].split()[1]
                if tgt not in pos:
                    continue
                j = pos[tgt]
                dc = 0
                for c in self.lines[j:j + 40]:
                    if dc >= 20:
                        break
                    if c.cls not in ("label", "nop"):
                        d = dc
                        for p in reversed(self.lines[max(0, i - 40):i + 1]):
                            if d >= 20:
                                break
                            if p.cls not in ("label", "nop") and need(p, c) > d:
                                print(f"HAZARD across branch {x.text}: '{p.text}' -> '{c.text}' need {need(p,c)} have {d}")
                                bad += 1
                            d += p.ws
                    dc += c.ws
                    if c.mn in ("s_branch", "s_endpgm"):
                        break
        return bad

    def text(self):
        out = []
        for x in self.lines:
            out.append(x.text if x.cls == "label" else "  " + x.text)
        return "\n".join(out)


def v(a, n=1):
    return f"v{a}" if n == 1 else f"v[{a}:{a+n-1}]"


def a_(a, n=1):
    return f"a{a}" if n == 1 else f"a[{a}:{a+n-1}]"


def s(a, n=1):
    return f"s{a}" if n == 1 else f"s[{a}:{a+n-1}]"


def f2u(x):
    import struct
    return struct.unpack("<I", struct.pack("<f", x))[0]


def kdesc(name, vgpr, agpr, sgpr=102):
    sgpr = 102
    acc = (vgpr + 3) // 4 * 4
    tot = acc + agpr if agpr else vgpr
    return f""".section .rodata,"a"
.p2align 6
.amdhsa_kernel {name}
  .amdhsa_next_free_vgpr {tot}
  .amdhsa_next_free_sgpr {sgpr}
  .amdhsa_accum_offset {acc}
  .amdhsa_group_segment_fixed_size 0
  .amdhsa_kernarg_size 88
  .amdhsa_user_sgpr_count 2
  .amdhsa_user_sgpr_kernarg_segment_ptr 1
  .amdhsa_system_sgpr_workgroup_id_x 1
  .amdhsa_float_denorm_mode_32 3
.end_amdhsa_kernel
.text"""
```

```python
from asmlib import *
import layout as L
from k0 import srd

LANE, L16, DV0, DV1, KA0, KA1, VA, LS0, LS1 = 0, 1, 2, 3, 4, 5, 6, 7, 8
BS0, BS1 = 9, 10
T0 = 12
NEGM = 20
PP = 28
SS = 36
RING = 68
XT = 100
QQ = 128
NR = 8
DIST = 7
THRESH = 2.0 ** 30

def Sreg(p, ka, qa): return SS + p * 16 + (ka * 2 + qa) * 4
def Q(qa, j): return QQ + (qa * 16 + j) * 4
def O(dt, qa): return (dt * 2 + qa) * 4
def ring(n): return RING + (n % NR) * 4
MF = "v_mfma_f32_16x16x32_bf16"

def kread(n, odd, slot_reg=None):
    j, ka = n >> 1, n & 1
    base = KA1 if (j >> 2) & 1 else KA0
    return [f"ds_read_b128 {v(ring(n),4)}, {v(base)} offset:{odd*32768 + ka*16384 + j*1024}"]

def vread(dt, odd):
    j3, j10, gp = dt >> 4, (dt >> 2) & 3, dt & 3
    off = odd * 32768 + (8 * j3 + j10) * 1024 + gp * 256
    r = ring(dt)
    return [f"ds_read_b64_tr_b16 {v(r,2)}, {v(VA)} offset:{off}",
            f"ds_read_b64_tr_b16 {v(r+2,2)}, {v(VA)} offset:{off+16384}"]

def softmax_ops(p):
    out = []
    t = 0
    for qa in range(2):
        bs = BS0 + qa
        for ka in range(2):
            sr = Sreg(p, ka, qa)
            tt = T0 + 4 * (t & 1); t += 1
            for r in range(4):
                out.append(f"v_exp_f32 {v(tt+r)}, {v(sr+r)}")
            if ka == 0:
                out.append(f"v_add_f32 {v(bs)}, {v(tt)}, {v(tt+1)}")
            else:
                out.append(f"v_add_f32 {v(bs)}, {v(bs)}, {v(tt)}")
                out.append(f"v_add_f32 {v(bs)}, {v(bs)}, {v(tt+1)}")
            out.append(f"v_cvt_pk_bf16_f32 {v(PP+qa*4+ka*2)}, {v(tt)}, {v(tt+1)}")
            out.append(f"v_add_f32 {v(bs)}, {v(bs)}, {v(tt+2)}")
            out.append(f"v_add_f32 {v(bs)}, {v(bs)}, {v(tt+3)}")
            out.append(f"v_cvt_pk_bf16_f32 {v(PP+qa*4+ka*2+1)}, {v(tt+2)}, {v(tt+3)}")
    return out

def check_ops():
    return [f"v_max_f32 {v(11)}, {v(BS0)}, {v(BS1)}",
            f"v_cmp_lt_f32 vcc, s45, {v(11)}"]

def dma_ops():
    out = ["s_mov_b32 m0, s47"]
    for i in range(4):
        out.append(f"buffer_load_dwordx4 {v(DV0)}, s[20:23], s46 offen offset:{i*1024} lds")
    out.append("s_add_u32 m0, s47, 16384")
    for i in range(4):
        out.append(f"buffer_load_dwordx4 {v(DV1)}, s[20:23], s46 offen offset:{i*1024} lds")
    out.append("s_add_u32 s46, s46, 32768")
    out.append("s_add_u32 s47, s47, 32768")
    out.append("s_and_b32 s47, s47, 0x1ffff")
    return out

def xmax(A, x, t):
    for lv in (16, 32):
        A(f"v_mov_b32 {v(t)}, {v(x)}")
        A(f"v_permlane{lv}_swap_b32 {v(x)}, {v(t)}")
        A(f"v_max_f32 {v(x)}, {v(x)}, {v(t)}")

def rowmax(A, p, qa, dst, t):
    a, b = Sreg(p, 0, qa), Sreg(p, 1, qa)
    A(f"v_max3_f32 {v(dst)}, {v(a)}, {v(a+1)}, {v(a+2)}")
    A(f"v_max3_f32 {v(dst)}, {v(dst)}, {v(a+3)}, {v(b)}")
    A(f"v_max3_f32 {v(dst)}, {v(dst)}, {v(b+1)}, {v(b+2)}")
    A(f"v_max_f32 {v(dst)}, {v(dst)}, {v(b+3)}")
    xmax(A, dst, t)

class Sched:
    def __init__(self, A):
        self.A = A
        self.q = []
    def issue(self, fid, instrs):
        for x in instrs:
            self.A(x); self.q.append(fid)
    def wait(self, fid, pre=""):
        if fid not in self.q:
            assert not pre
            return
        last = max(i for i, f in enumerate(self.q) if f == fid)
        n = len(self.q) - 1 - last
        self.A(f"s_waitcnt {pre}lgkmcnt({n})")
        self.q = self.q[last + 1:]

def spread(fill, nslots, start=0, end=None):
    end = nslots if end is None else end
    d = {}
    n = end - start
    for i, x in enumerate(fill):
        d.setdefault(start + i * n // len(fill), []).append(x)
    return d

def half(A, sc, p, tail, tag):
    if not tail:
        fill = spread(softmax_ops(p) + check_ops(), 64, 1, 56)
        for n in range(32):
            j, ka = n >> 1, n & 1
            if n % 2 == 0:
                sc.wait(("K", n + 1))
            for qa in range(2):
                sr = Sreg(p ^ 1, ka, qa)
                c = v(NEGM + 4 * qa, 4) if j == 0 else v(sr, 4)
                A(f"{MF} {v(sr,4)}, {v(ring(n),4)}, {v(Q(qa,j),4)}, {c}")
                if qa == 1:
                    m = n + DIST
                    if m < 32:
                        sc.issue(("K", m), kread(m, p ^ 1))
                    else:
                        if m == 32 and p == 0:
                            A(f"v_xor_b32 {v(VA)}, 0x10000, {v(VA)}")
                        sc.issue(("V", m - 32), vread(m - 32, p))
                for x in fill.get(2 * n + qa, []):
                    A(x)
    else:
        A("s_waitcnt lgkmcnt(0)")
        sc.q = []
        if p == 0:
            A(f"v_xor_b32 {v(VA)}, 0x10000, {v(VA)}")
        for m in range(DIST):
            sc.issue(("V", m), vread(m, p))
        for x in softmax_ops(p) + check_ops():
            A(x)
    A(f"s_cbranch_vccnz RARE{p}")
    A(f"RET{tag}:")
    fill = [f"v_add_f32 {v(LS0)}, {v(LS0)}, {v(BS0)}", f"v_add_f32 {v(LS1)}, {v(LS1)}, {v(BS1)}"]
    if not tail:
        A("s_waitcnt vmcnt(0)")
        A("s_barrier")
        fill = dma_ops() + fill
    fill = spread(fill, 64, 1, 40)
    for dt in range(32):
        if dt % 2 == 0:
            sc.wait(("V", dt + 1))
        for qa in range(2):
            A(f"{MF} {a_(O(dt,qa),4)}, {v(ring(dt),4)}, {v(PP+4*qa,4)}, {a_(O(dt,qa),4)}")
            if qa == 1:
                m = dt + DIST
                if m < 32:
                    sc.issue(("V", m), vread(m, p))
                elif not tail:
                    if m == 32 and p == 0:
                        A(f"v_xor_b32 {v(KA0)}, 0x10000, {v(KA0)}")
                        A(f"v_xor_b32 {v(KA1)}, 0x10000, {v(KA1)}")
                    sc.issue(("K", m - 32), kread(m - 32, p))
            for x in fill.get(2 * dt + qa, []):
                A(x)

def rare(A, p):
    A(f"RARE{p}:")
    A("s_nop 15")
    D0, AL = XT, XT + 2
    for qa in range(2):
        rowmax(A, p, qa, D0 + qa, XT + 4)
        A(f"v_max_f32 {v(D0+qa)}, 0, {v(D0+qa)}")
        A(f"v_sub_f32 {v(AL+qa)}, 0, {v(D0+qa)}")
        A(f"v_exp_f32 {v(AL+qa)}, {v(AL+qa)}")
        for pp in range(2):
            for ka in range(2):
                for r in range(4):
                    x = Sreg(pp, ka, qa) + r
                    A(f"v_sub_f32 {v(x)}, {v(x)}, {v(D0+qa)}")
        for r in range(4):
            A(f"v_sub_f32 {v(NEGM+4*qa+r)}, {v(NEGM+4*qa+r)}, {v(D0+qa)}")
        A(f"v_mul_f32 {v(LS0+qa)}, {v(LS0+qa)}, {v(AL+qa)}")
    for dt in range(32):
        for qa in range(2):
            t = XT + 8 + 4 * qa
            for r in range(4):
                A(f"v_accvgpr_read_b32 {v(t+r)}, {a_(O(dt,qa)+r)}")
            for r in range(4):
                A(f"v_mul_f32 {v(t+r)}, {v(t+r)}, {v(AL+qa)}")
            for r in range(4):
                A(f"v_accvgpr_write_b32 {a_(O(dt,qa)+r)}, {v(t+r)}")
    for x in softmax_ops(p):
        A(x)
    A("s_nop 3")
    A("s_cmp_eq_u32 s44, 1")
    A(f"s_cbranch_scc1 RETT{p}")
    A(f"s_branch RETL{p}")

def gen_k2():
    A = Asm()
    name = "k2_attn_kernel"
    A(f".globl {name}\n.p2align 8\n.type {name},@function\n{name}:\n{name}_S:")
    A("s_cmp_ge_u32 s2, 256")
    A("s_cbranch_scc1 K2_END")
    A.stamp_init()
    A("s_load_dwordx2 s[16:17], s[0:1], 80")
    A("v_lshrrev_b32 v1, 6, v0")
    A("v_and_b32 v0, 63, v0")
    A("v_readfirstlane_b32 s3, v1")
    A(f"v_lshlrev_b32 {v(L16)}, 4, v0")
    A("s_and_b32 s28, s2, 7")
    A("s_lshr_b32 s29, s2, 3")
    A("s_and_b32 s30, s29, 3")
    A("s_lshr_b32 s29, s29, 2")
    A("s_lshl_b32 s31, s28, 3")
    A("s_add_u32 s31, s31, s29")
    A("s_lshl_b32 s31, s31, 2")
    A("s_add_u32 s31, s31, s3")
    A("s_lshr_b32 s32, s28, 2")
    A("s_mul_i32 s33, s30, 31")
    A("s_cmp_lg_u32 s30, 0")
    A("s_addc_u32 s33, s33, 0")
    A("s_cmp_eq_u32 s30, 0")
    A("s_addc_u32 s44, 31, 0")
    A("s_lshl_b32 s34, s32, 7")
    A("s_add_u32 s33, s33, s34")
    A("s_lshl_b32 s46, s33, 15")
    if L.XA:
        A(f"s_add_u32 s46, s46, {L.XA}")
    A("s_lshl_b32 s47, s3, 12")
    A(f"s_mov_b32 s45, {hex(f2u(THRESH))}")
    A("s_and_b32 s35, s3, 1")
    A("s_lshl_b32 s35, s35, 7")
    A(f"v_xor_b32 {v(DV0)}, s35, {v(L16)}")
    A(f"v_add_u32 {v(DV0)}, s47, {v(DV0)}")
    A(f"v_add_u32 {v(DV1)}, 16384, {v(DV0)}")
    A("s_lshl_b32 s36, s31, 15")
    A(f"s_add_u32 s36, s36, {L.QP}")
    A("s_waitcnt lgkmcnt(0)")
    srd(A, 20, 16, L.WS_BYTES)
    for x in dma_ops():
        A(x)
    A("s_add_u32 s37, s36, 16384")
    for j in range(16):
        for qa in range(2):
            A(f"buffer_load_dwordx4 {v(Q(qa,j),4)}, {v(L16)}, s[20:23], s{36+qa} offen offset:{(j&3)*1024}")
        if j % 4 == 3:
            A("s_add_u32 s36, s36, 4096\ns_add_u32 s37, s37, 4096")
    for _ in range(2):
        for x in dma_ops():
            A(x)
    A(f"v_mov_b32 {v(KA0)}, {v(L16)}")
    A(f"v_xor_b32 {v(KA1)}, 128, {v(L16)}")
    A(f"v_lshrrev_b32 {v(T0)}, 2, v0")
    A(f"v_bfe_u32 {v(T0+1)}, v0, 1, 1")
    A(f"v_lshlrev_b32 {v(T0+2)}, 3, {v(T0+1)}")
    A(f"v_xor_b32 {v(T0)}, {v(T0)}, {v(T0+2)}")
    A(f"v_lshlrev_b32 {v(T0)}, 4, {v(T0)}")
    A(f"v_lshl_add_u32 {v(T0)}, {v(T0+1)}, 12, {v(T0)}")
    A(f"v_and_b32 {v(T0+1)}, 1, v0")
    A(f"v_lshl_add_u32 {v(VA)}, {v(T0+1)}, 3, {v(T0)}")
    A(f"v_xor_b32 {v(VA)}, 0x10000, {v(VA)}")
    A(f"v_mov_b32 {v(LS0)}, 0\nv_mov_b32 {v(LS1)}, 0")
    for i in range(256):
        A(f"v_accvgpr_write_b32 a{i}, 0")
    A.stamp(1)
    A("s_waitcnt vmcnt(48)")
    A("s_barrier")
    A.stamp(2)
    sc = Sched(A)
    for m in range(DIST):
        sc.issue(("K", m), kread(m, 0))
    for n in range(32):
        j, ka = n >> 1, n & 1
        if ka == 0:
            A(f"s_waitcnt vmcnt({16 + 2*(15-j)})")
            sc.wait(("K", n + 1))
        for qa in range(2):
            sr = Sreg(0, ka, qa)
            c = "0" if j == 0 else v(sr, 4)
            A(f"{MF} {v(sr,4)}, {v(ring(n),4)}, {v(Q(qa,j),4)}, {c}")
        if n + DIST < 32:
            sc.issue(("K", n + DIST), kread(n + DIST, 0))
    A("s_waitcnt vmcnt(8)")
    A("s_barrier")
    for m in range(DIST):
        sc.issue(("K", m), kread(m, 1))
    for qa in range(2):
        rowmax(A, 0, qa, T0 + qa, T0 + 2)
        for ka in range(2):
            for r in range(4):
                x = Sreg(0, ka, qa) + r
                A(f"v_sub_f32 {v(x)}, {v(x)}, {v(T0+qa)}")
        for r in range(4):
            A(f"v_sub_f32 {v(NEGM+4*qa+r)}, 0, {v(T0+qa)}")
    q0 = list(sc.q)
    A.stamp(3)
    A(".p2align 6")
    A("LOOP:")
    half(A, sc, 0, False, "L0")
    assert sc.q == q0
    A("s_sub_u32 s44, s44, 1")
    A("s_cmp_eq_u32 s44, 1")
    A("s_cbranch_scc1 TAIL1")
    half(A, sc, 1, False, "L1")
    assert sc.q == q0
    A("s_sub_u32 s44, s44, 1")
    A("s_cmp_lg_u32 s44, 1")
    A("s_cbranch_scc1 LOOP")
    half(A, sc, 0, True, "T0")
    A("s_branch EPI")
    A("TAIL1:")
    half(A, sc, 1, True, "T1")
    A("EPI:")
    A.stamp(4)
    A.prefetch_code("k3_comb_kernel_S", "k3_comb_kernel_END", 32768, XT)
    for qa in range(2):
        x = LS0 + qa
        for lv in (16, 32):
            A(f"v_mov_b32 {v(T0)}, {v(x)}")
            A(f"v_permlane{lv}_swap_b32 {v(x)}, {v(T0)}")
            A(f"v_add_f32 {v(x)}, {v(x)}, {v(T0)}")
    A(f"v_and_b32 {v(T0)}, 16, v0")
    A(f"v_cmp_eq_u32 vcc, 0, {v(T0)}")
    A(f"v_cndmask_b32 {v(T0+1)}, {v(NEGM+4)}, {v(NEGM)}, vcc")
    A(f"v_cndmask_b32 {v(T0+2)}, {v(LS1)}, {v(LS0)}, vcc")
    A(f"v_sub_f32 {v(T0+1)}, 0, {v(T0+1)}")
    A(f"v_cmp_gt_u32 vcc, 32, v0")
    A(f"v_cndmask_b32 {v(T0+1)}, {v(T0+2)}, {v(T0+1)}, vcc")
    A(f"v_lshlrev_b32 {v(T0+3)}, 2, v0")
    A("s_lshl_b32 s36, s30, 8\ns_add_u32 s36, s36, s31\ns_lshl_b32 s36, s36, 8")
    A(f"s_add_u32 s36, s36, {L.PML}")
    A(f"buffer_store_dword {v(T0+1)}, {v(T0+3)}, s[20:23], s36 offen")
    A("s_lshl_b32 s36, s30, 23\ns_lshl_b32 s37, s31, 15\ns_add_u32 s36, s36, s37")
    A(f"s_add_u32 s36, s36, {L.PO}")
    A("s_add_u32 s37, s36, 16384")
    k = 0
    for f in range(16):
        for qa in range(2):
            t = QQ + (k % 8) * 12; k += 1
            for u in range(2):
                for r in range(4):
                    A(f"v_accvgpr_read_b32 {v(t+4+4*u+r)}, {a_(O(2*f+u,qa)+r)}")
            for i in range(4):
                A(f"v_cvt_pk_bf16_f32 {v(t+i)}, {v(t+4+2*i)}, {v(t+5+2*i)}")
            A(f"buffer_store_dwordx4 {v(t,4)}, {v(L16)}, s[20:23], s{36+qa} offen offset:{(f&3)*1024}")
        if f % 4 == 3:
            A("s_add_u32 s36, s36, 4096\ns_add_u32 s37, s37, 4096")
    A.endpgm()
    A("K2_END:")
    A("s_endpgm")
    rare(A, 0)
    rare(A, 1)
    assert A.check_branches() == 0
    return name, A.text() + "\n" + kdesc(name, 256, 256, 64), f"; @launch kernel={name} grid=(256,1,1) block=(256,1,1) lds=131072"
```

```python
from asmlib import *
import layout as L
import math

MF = "v_mfma_f32_16x16x32_bf16"

def R(x, n=1):
    if x >= 256:
        return a_(x - 256, n)
    assert x + n <= 256
    return v(x, n)

class Q:
    def __init__(self, A, name, mx):
        self.A, self.name, self.mx, self.q = A, name, mx, []
    def issue(self, tag, text):
        self.A(text); self.q.append(tag)
    def count_for(self, tag):
        if tag not in self.q:
            return None
        last = max(i for i, f in enumerate(self.q) if f == tag)
        n = len(self.q) - 1 - last
        self.q = self.q[last + 1:]
        return min(n, self.mx)
    def wait(self, tag):
        n = self.count_for(tag)
        if n is not None:
            self.A(f"s_waitcnt {self.name}({n})")

def waits(A, vm, vtags, lk, ltags):
    parts = []
    n = None
    for t in vtags:
        c = vm.count_for(t)
        if c is not None:
            n = c
    if n is not None:
        parts.append(f"vmcnt({n})")
    n = None
    for t in ltags:
        c = lk.count_for(t)
        if c is not None:
            n = c
    if n is not None:
        parts.append(f"lgkmcnt({n})")
    if parts:
        A("s_waitcnt " + " ".join(parts))

class G4:
    def __init__(self, A, vm, lk, NB, wn, KS, kps, NS, WD, s_act, blk_stride, s_w, acc0, fr0, w0, vl16, vt, st, lds0=0, rng=None, swap=False, dfl='', stamps=(2, 3, 4), halo=False):
        self.__dict__.update(locals())
        self.rng = rng or [(0, NB)] * wn
        self.nst = KS // kps
        self.ppw = NB * kps // 4
        assert NB * kps % 4 == 0
        self.slot = NB * kps * 1024
        self.accs = {}
        a = acc0
        for n in range(0, wn, 2):
            f, c = self.rng[n]
            for b in range(f, f + c):
                self.accs[(b, n)] = a; self.accs[(b, n + 1)] = a + 4; a += 8
        self.acc_end = a

    def setup(self):
        A, st, vt = self.A, self.st, self.vt
        for i in range(self.ppw):
            A(f"s_mul_i32 s{st}, s3, {self.ppw}\ns_add_u32 s{st}, s{st}, {i}")
            sh = int(math.log2(self.kps))
            A(f"s_lshr_b32 s{st+1}, s{st}, {sh}")
            if self.halo:
                A(f"s_lshl_b32 s29, s28, 3\ns_add_u32 s29, s29, s{st+1}\ns_sub_u32 s29, s29, 1")
            A(f"s_mul_i32 s{st+1}, s{st+1}, {self.blk_stride}")
            A(f"s_and_b32 s{st}, s{st}, {self.kps-1}\ns_lshl_b32 s{st}, s{st}, 10")
            A(f"s_add_u32 s{st+1}, s{st+1}, s{st}\ns_add_u32 s{st+2+i}, s{st+1}, s{self.s_act}")
            if self.halo:
                A(f"s_cmp_lt_u32 s29, 512\ns_cselect_b32 s{st+2+i}, s{st+2+i}, 0x7f000000")
        A(f"s_mul_i32 s{st}, s3, {self.ppw*1024}")
        if self.lds0:
            A(f"s_add_u32 s{st}, s{st}, {self.lds0}")
        A(f"v_mov_b32 {v(vt)}, {v(self.vl16)}")
        A(f"v_mov_b32 {v(vt+1)}, {v(self.vl16)}")
        A(f"v_add_u32 {v(vt+2)}, 0x10000, {v(self.vl16)}")
        A(f"v_add_u32 {v(vt+3)}, 0x20000, {v(self.vl16)}")

    def dma(self, stage):
        out = []
        sl = stage % self.NS
        for i in range(self.ppw):
            out.append((None, f"s_add_u32 m0, s{self.st}, {sl*self.slot + i*1024}"))
            out.append((("D", id(self), stage), f"buffer_load_dwordx4 {v(self.vt)}, s[20:23], s{self.st+2+i} offen{self.dfl} lds"))
        out.append((None, f"v_add_u32 {v(self.vt)}, {self.kps*1024}, {v(self.vt)}"))
        return out

    def wreg(self, n, k):
        return self.w0 + ((k % self.WD) * self.wn + n) * 4

    def wload(self, k):
        out = []
        for n in range(self.wn):
            out.append((("W", id(self), k), f"buffer_load_dwordx4 {R(self.wreg(n,k),4)}, {v(self.vt+1)}, s[20:23], s{self.s_w[n]} offen offset:{(k&3)*1024}"))
        if k & 3 == 3:
            out.append((None, f"v_add_u32 {v(self.vt+1)}, 4096, {v(self.vt+1)}"))
        return out

    def freg(self, b, k):
        return self.fr0 + ((k & 1) * self.NB + b) * 4

    def reads(self, k):
        out = []
        stage, kk = k // self.kps, k % self.kps
        for b in range(self.NB):
            off = self.lds0 + (stage % self.NS) * self.slot + (b * self.kps + kk) * 1024
            w = off >> 16
            base = self.vl16 if w == 0 else self.vt + 1 + w
            out.append((("F", k, b), f"ds_read_b128 {R(self.freg(b,k),4)}, {v(base)} offset:{off & 0xffff}"))
        return out

    def emit(self, item):
        if callable(item):
            return item()
        tag, text = item
        if tag is None:
            self.A(text)
        elif tag[0] == "F":
            self.lk.issue(tag, text)
        else:
            self.vm.issue(tag, text)

    def prefetch_list(self, nw=None):
        nw = min(self.WD, self.KS) if nw is None else nw
        ns = min(self.NS, self.nst)
        wk = 0
        items = []
        for s_ in range(ns):
            items += self.dma(s_)
            while wk < nw and wk < (s_ + 1) * self.kps:
                items += self.wload(wk)
                wk += 1
        while wk < nw:
            items += self.wload(wk)
            wk += 1
        self.w_issued = nw
        self.d_issued = ns
        return [(lambda x=x: self.emit(x)) for x in items]

    def wlist(self, nw):
        items = []
        for k in range(nw):
            items += self.wload(k)
        self.w_issued = nw
        return [(lambda x=x: self.emit(x)) for x in items]

    def dlist(self):
        ns = min(self.NS, self.nst)
        items = []
        for s_ in range(ns):
            items += self.dma(s_)
        self.d_issued = ns
        return [(lambda x=x: self.emit(x)) for x in items]

    def prefetch(self, nw=None):
        for f in self.prefetch_list(nw):
            f()

    border = None
    def after_mid(self, k):
        return []

    def run(self, extra=None, first_c="0", start=True):
        A = self.A
        bo = self.border or list(range(self.NB))
        if start:
            self.vm.wait(("D", id(self), 0))
            A("s_barrier")
        if self.stamps: A.stamp(self.stamps[0])
        for x in self.reads(0):
            self.emit(x)
        carry = []
        def chk(tags):
            for y in carry:
                assert callable(y) or y[0] not in tags, ("pending", y)
        for k in range(self.KS):
            stage, kk = k // self.kps, k % self.kps
            fill = []
            last_in_stage = kk == self.kps - 1 and k + 1 < self.KS
            if last_in_stage:
                tg = [("W", id(self), k), ("D", id(self), stage + 1)]
                chk(tg)
                waits(A, self.vm, tg, self.lk, [("F", k, bo[-1])])
                A("s_barrier")
            else:
                chk([("W", id(self), k)])
                waits(A, self.vm, [("W", id(self), k)], self.lk, [("F", k, bo[self.NB // 2 - 1])])
            dsl = self.reads(k + 1) if k + 1 < self.KS else []
            oth = carry
            if self.w_issued < self.KS and self.w_issued < k + self.WD:
                oth += self.wload(self.w_issued); self.w_issued += 1
            if last_in_stage and self.d_issued < self.nst:
                oth += self.dma(self.d_issued); self.d_issued += 1
            if extra:
                oth += extra(k)
            mm = []
            for bi, b in enumerate(bo):
                for n in range(self.wn):
                    if (b, n) in self.accs:
                        acc = self.accs[(b, n)]
                        c = first_c if k == 0 and first_c is not None else R(acc, 4)
                        x, y = R(self.wreg(n, k), 4), R(self.freg(b, k), 4)
                        if self.swap:
                            x, y = y, x
                        mm.append((bi, f"{MF} {R(acc,4)}, {x}, {y}, {c}"))
            n = len(mm)
            mid = next(i for i, (b, _) in enumerate(mm) if b >= self.NB // 2)
            nds = len(dsl)
            span = max(nds, min(n - 2, max(n * 3 // 4, 2 * nds - 1)))
            dsg = {i * span // nds for i in range(nds)} if nds else set()
            for i, (b, x) in enumerate(mm):
                A(x)
                slots = 2
                if i == mid - 1 or i >= n - 1:
                    slots -= 1
                if i == n - 1 and (k + 1) % self.kps == self.kps - 1:
                    slots -= 1
                mem = False
                if dsl and i in dsg:
                    self.emit(dsl.pop(0)); slots -= 1
                    mem = True
                while oth and slots > 0:
                    isvm = callable(oth[0]) or oth[0][0] is not None
                    if isvm and mem:
                        break
                    y = oth.pop(0)
                    self.emit(y); slots -= 1
                    mem = mem or isvm
                    if not isvm and "m0" in y[1]:
                        break
                if i == mid - 1:
                    self.lk.wait(("F", k, bo[-1]))
                    oth = self.after_mid(k) + oth
            for x in dsl:
                self.emit(x)
            carry = oth
            if k == self.KS // 2 - 1:
                if self.stamps and self.stamps[1]: A.stamp(self.stamps[1])
        for x in carry:
            self.emit(x)
        if self.stamps: A.stamp(self.stamps[2])


class GU(G4):
    SLOT = 53248
    def __init__(self, A, vm, lk):
        G4.__init__(self, A, vm, lk, NB=10, wn=4, KS=16, kps=2, NS=3, WD=2, s_act=None, blk_stride=0, s_w=None,
                    acc0=16, fr0=256, w0=256 + 80, vl16=1, vt=2, st=50, rng=[(0, 9), (0, 9), (0, 10), (0, 10)], stamps=('U0', 'U1', 'Ux'))
        self.border = list(range(1, 10)) + [0]
        self.w_issued = 99
        self.d_issued = 0
        self.F0 = 232
        self.RA, self.RW = 240, 244

    def setup(self):
        A = self.A
        A("v_and_b32 v4, 7, v0\nv_lshrrev_b32 v5, 3, v0\nv_lshlrev_b32 v2, 10, v4\nv_lshl_add_u32 v2, v5, 4, v2")
        A("v_lshrrev_b32 v12, 4, v0\nv_and_b32 v13, 15, v0\nv_lshlrev_b32 v3, 2, v12\nv_xor_b32 v3, v3, v13\nv_lshlrev_b32 v3, 4, v3\nv_lshl_add_u32 v3, v12, 11, v3")
        A(f"s_and_b32 s32, s28, 31\ns_lshl_b32 s32, s32, 7\ns_sub_u32 s32, s32, 16\ns_mul_i32 s33, s3, 40\ns_add_u32 s32, s32, s33")
        A(f"s_lshr_b32 s33, s28, 5\ns_mul_i32 s33, s33, {L.T}")
        for i in range(5):
            A(f"s_add_u32 s34, s32, {8*i}\ns_add_u32 s35, s34, s33\ns_lshl_b32 s35, s35, 10")
            A(f"s_cmp_lt_u32 s34, {L.T}\ns_cselect_b32 s{self.st+2+i}, s35, 0x7f000000")
        A("s_mul_i32 s50, s3, 5120")
        A("s_lshl_b32 s51, s3, 13\ns_add_u32 s51, s51, 20480")
        A("s_lshr_b32 s34, s3, 1\ns_lshl_b32 s34, s34, 10\ns_lshl_b32 s35, s30, 8\ns_add_u32 s34, s34, s35\ns_and_b32 s35, s3, 1\ns_lshl_b32 s35, s35, 16\ns_add_u32 s57, s34, s35")

    def skew(self):
        A = self.A
        A("s_lshl_b32 s33, s30, 1\ns_add_u32 s33, s33, s28\ns_and_b32 s33, s33, 7\ns_lshl_b32 s34, s33, 7\nv_add_u32 v2, s34, v2")
        A("s_lshl_b32 s34, s33, 17\ns_add_u32 s57, s57, s34\ns_movk_i32 s29, 0x380")

    def setup2(self):
        A = self.A
        RA, RW = self.RA, self.RW
        A(f"v_bfe_u32 v12, v0, 3, 1\nv_lshlrev_b32 v12, 10, v12\nv_lshrrev_b32 v13, 4, v0\nv_lshl_add_u32 v12, v13, 7, v12\nv_and_b32 v14, 7, v0\nv_lshl_add_u32 {v(RA)}, v14, 4, v12")
        A(f"v_bfe_u32 v12, v0, 2, 2\nv_lshl_add_u32 v14, v13, 3, v12\nv_xor_b32 v12, s3, v12\nv_lshlrev_b32 v12, 6, v12\nv_lshl_add_u32 v12, v14, 8, v12")
        A(f"v_and_b32 v14, 3, v0\nv_lshl_add_u32 v12, v14, 4, v12\nv_add_u32 {v(RW)}, 20480, v12")
        for i in (1, 2):
            A(f"v_add_u32 {v(RA+i)}, {i*self.SLOT}, {v(RA)}\nv_add_u32 {v(RW+i)}, {i*self.SLOT}, {v(RW)}")
        A("v_and_b32 v12, 15, v0\nv_cmp_eq_u32 s[58:59], 0, v12\nv_mov_b32 v243, 0x3f803f80")

    def dma(self, stage):
        out = []
        sl = (stage % 3) * self.SLOT
        tag = ("D", id(self), stage)
        for i in range(5):
            out.append((None, f"s_add_u32 m0, s50, {sl + i*1024}"))
            out.append((tag, f"buffer_load_dwordx4 v2, s[8:11], s{52+i} offen lds"))
        out.append((None, "v_add_u32 v247, 128, v2"))
        out.append((None, "v_bfi_b32 v2, s29, v247, v2"))
        for i in range(8):
            out.append((None, f"s_add_u32 m0, s51, {sl + i*1024}"))
            out.append((tag, "buffer_load_dwordx4 v3, s[40:43], s57 offen lds"))
            out.append((None, f"s_add_u32 s57, s57, {8192 if i < 7 else 131072 - 7*8192}"))
        out.append((None, "s_and_b32 s57, s57, 0xfffff"))
        return out

    def issue_stage(self):
        for x in self.dma(self.d_issued):
            self.emit(x)
        self.d_issued += 1

    def freg(self, b, k):
        if b == 0:
            return self.F0 + (k & 1) * 4
        return G4.freg(self, b, k)

    def reads(self, k):
        out = []
        stage, kk = k >> 1, k & 1
        sl = stage % 3
        for n in range(4):
            o = (n >> 1) * 16384 + kk * 8192 + (n & 1) * 8
            r = self.wreg(n, k)
            out.append((("F", k, -1), f"ds_read_b64_tr_b16 {R(r,2)}, {v(self.RW+sl)} offset:{o}"))
            out.append((("F", k, -1), f"ds_read_b64_tr_b16 {R(r+2,2)}, {v(self.RW+sl)} offset:{o+1024}"))
        for b in self.border:
            out.append((("F", k, b), f"ds_read_b128 {R(self.freg(b,k),4)}, {v(self.RA+sl)} offset:{b*2048 + kk*512}"))
        return out

    def after_mid(self, k):
        r = self.freg(0, k)
        return [(None, f"v_cndmask_b32 {v(r+i)}, {v(r+i)}, v243, s[58:59]") for i in range(4)]
```

```python
from asmlib import *
import layout as L
import math

def srd(A, d, lo, nbytes):
    A(f"s_mov_b32 s{d}, s{lo}")
    A(f"s_and_b32 s{d+1}, s{lo+1}, 0xffff")
    A(f"s_mov_b32 s{d+2}, {nbytes}")
    A(f"s_mov_b32 s{d+3}, 0x20000")

def xlane_sum(A, x, t, levels):
    for lv in levels:
        if lv == 8:
            A(f"v_add_f32_dpp {v(x)}, {v(x)}, {v(x)} row_ror:8 row_mask:0xf bank_mask:0xf")
        else:
            A(f"v_mov_b32 {v(t)}, {v(x)}")
            A(f"v_permlane{lv}_swap_b32 {v(x)}, {v(t)}")
            A(f"v_add_f32 {v(x)}, {v(x)}, {v(t)}")

def chan_lane(A, dst, m, tmp):
    A(f"v_lshrrev_b32 {v(tmp)}, 2, {v(m)}")
    A(f"v_and_b32 {v(dst)}, 3, {v(m)}")
    A(f"v_lshl_add_u32 {v(dst)}, {v(tmp)}, 3, {v(dst)}")

NWG_K0 = 256 + 64 + 64 + 80 + 24 + 8

def gen_k0():
    A = Asm()
    name = "k0_prep_kernel"
    A(f".globl {name}\n.p2align 8\n.type {name},@function\n{name}:\n{name}_S:")
    A(f"s_cmp_ge_u32 s2, {NWG_K0}")
    A("s_cbranch_scc1 K0_END")
    A.stamp_init()
    A("s_load_dwordx4 s[4:7], s[0:1], 0")
    A("s_load_dwordx4 s[8:11], s[0:1], 16")
    A("s_load_dwordx2 s[12:13], s[0:1], 40")
    A("s_load_dwordx2 s[14:15], s[0:1], 56")
    A("s_load_dwordx2 s[16:17], s[0:1], 80")
    A("s_load_dwordx2 s[52:53], s[0:1], 32")
    A("s_load_dwordx2 s[54:55], s[0:1], 48")
    A("v_lshrrev_b32 v1, 6, v0")
    A("v_and_b32 v0, 63, v0")
    A("v_readfirstlane_b32 s3, v1")
    A("v_and_b32 v2, 15, v0")
    A("v_lshrrev_b32 v3, 4, v0")
    A("s_waitcnt lgkmcnt(0)")
    srd(A, 20, 16, L.WS_BYTES)
    A.prefetch_code("k0_prep_kernel_S", "PF_P1_END", 32768, 208)
    A.stamp(5)
    A("s_cmp_ge_u32 s2, 488")
    A("s_cbranch_scc1 K0_ZR")
    A("s_cmp_ge_u32 s2, 464")
    A("s_cbranch_scc1 K0_TP")
    A("s_cmp_ge_u32 s2, 384")
    A("s_cbranch_scc1 K0_TR")
    A("s_cmp_ge_u32 s2, 256")
    A("s_cbranch_scc1 K0_WW")
    srd(A, 24, 4, 2 * L.T * 1024)
    A("s_and_b32 s28, s2, 7")
    A("s_lshr_b32 s29, s2, 3")
    A("s_lshr_b32 s30, s28, 2")
    A("s_and_b32 s28, s28, 3")
    A("s_lshl_b32 s28, s28, 10")
    A("s_lshl_b32 s29, s29, 5")
    A("s_add_u32 s28, s28, s29")
    A("s_lshl_b32 s29, s3, 3")
    A("s_add_u32 s28, s28, s29")
    A(f"s_cmp_lt_u32 s28, {L.T}")
    A("s_cselect_b32 s26, s26, 0")
    A(f"s_mul_i32 s29, s30, {L.T}")
    A("s_add_u32 s29, s29, s28")
    A("s_lshl_b32 s29, s29, 10")
    A("v_and_b32 v4, 7, v0")
    A("v_lshrrev_b32 v5, 3, v0")
    A("v_lshlrev_b32 v6, 10, v4")
    A("v_lshl_add_u32 v6, v5, 4, v6")
    P = 8
    Uq = 40
    for jj in range(8):
        A(f"buffer_load_dwordx4 {v(P+4*jj,4)}, v6, s[24:27], s29 offen offset:{jj*128}")
    A(f"s_lshl_b32 s31, s30, 12")
    A("s_add_u32 s31, s31, s28")
    A("s_lshr_b32 s32, s31, 4")
    A("s_lshl_b32 s32, s32, 14")
    A("s_and_b32 s31, s31, 15")
    A("s_lshl_b32 s31, s31, 4")
    A("s_add_u32 s32, s32, s31")
    if L.XA:
        A(f"s_add_u32 s32, s32, {L.XA}")
    A("v_lshlrev_b32 v7, 4, v4")
    A("v_lshl_add_u32 v7, v5, 8, v7")
    A("s_mov_b32 s33, 0xffff0000")
    for jj in range(8):
        A(f"s_waitcnt vmcnt({7-jj})")
        for i in range(4):
            r = P + 4 * jj + i
            u = Uq + 2 * (4 * jj + i)
            A(f"v_lshlrev_b32 {v(u)}, 16, {v(r)}")
            A(f"v_and_b32 {v(u+1)}, s33, {v(r)}")
    A.stamp(1)
    acc = 104
    A(f"v_pk_add_f32 {v(acc,2)}, {v(Uq,2)}, {v(Uq+2,2)}")
    A(f"v_pk_add_f32 {v(acc+2,2)}, {v(Uq+4,2)}, {v(Uq+6,2)}")
    for i in range(4, 32):
        a = acc + 2 * (i & 1)
        A(f"v_pk_add_f32 {v(a,2)}, {v(a,2)}, {v(Uq+2*i,2)}")
    A(f"v_pk_add_f32 {v(acc,2)}, {v(acc,2)}, {v(acc+2,2)}")
    A(f"v_add_f32 {v(acc)}, {v(acc)}, {v(acc+1)}")
    xlane_sum(A, acc, acc + 1, (8, 16, 32))
    A(f"v_mul_f32 {v(acc)}, {hex(f2u(-1.0/512))}, {v(acc)}")
    for i in range(32):
        A(f"v_pk_add_f32 {v(Uq+2*i,2)}, {v(Uq+2*i,2)}, {v(acc,2)} op_sel_hi:[1,0]")
    q = 108
    A(f"v_pk_mul_f32 {v(q,2)}, {v(Uq,2)}, {v(Uq,2)}")
    A(f"v_pk_mul_f32 {v(q+2,2)}, {v(Uq+2,2)}, {v(Uq+2,2)}")
    for i in range(2, 32):
        a = q + 2 * (i & 1)
        A(f"v_pk_fma_f32 {v(a,2)}, {v(Uq+2*i,2)}, {v(Uq+2*i,2)}, {v(a,2)}")
    A(f"v_pk_add_f32 {v(q,2)}, {v(q,2)}, {v(q+2,2)}")
    A(f"v_add_f32 {v(q)}, {v(q)}, {v(q+1)}")
    xlane_sum(A, q, q + 1, (8, 16, 32))
    A(f"v_mov_b32 {v(q+1)}, {hex(f2u(1e-5))}")
    A(f"v_fmac_f32 {v(q+1)}, {hex(f2u(1.0/512))}, {v(q)}")
    A(f"v_rsq_f32 {v(q)}, {v(q+1)}")
    A.stamp(2)
    for jj in range(8):
        for i in range(4):
            u = Uq + 2 * (4 * jj + i)
            A(f"v_pk_mul_f32 {v(u,2)}, {v(u,2)}, {v(q,2)} op_sel_hi:[1,0]")
        for i in range(4):
            u = Uq + 2 * (4 * jj + i)
            A(f"v_cvt_pk_bf16_f32 {v(P+4*jj+i)}, {v(u)}, {v(u+1)}")
        if jj % 2 == 0 and jj:
            A("s_add_u32 s32, s32, 4096")
        A(f"buffer_store_dwordx4 {v(P+4*jj,4)}, v7, s[20:23], s32 offen offset:{(jj&1)*2048}")
    A.endpgm()
    A("K0_WW:")
    srd(A, 24, 6, 512 * 3072)
    srd(A, 28, 8, 512 * 1024)
    A("s_and_b32 s32, s2, 63")
    A("s_lshr_b32 s33, s32, 3")
    A("s_and_b32 s34, s32, 7")
    chan_lane(A, 4, 2, 5)
    A("s_movk_i32 s37, 3072")
    A("v_lshlrev_b32 v9, 4, v0")
    A("s_lshl_b32 s36, s3, 8")
    AF, BF, AC = 16, 80, 144
    A("s_cmp_ge_u32 s2, 320")
    A("s_cbranch_scc1 K0_VO")
    A("v_mul_lo_u32 v6, v4, s37")
    A("v_lshl_add_u32 v6, v3, 4, v6")
    A(f"s_mul_i32 s38, s34, {64*3072}\ns_add_u32 s38, s38, s36")
    A(f"s_mul_i32 s39, s33, {64*3072}\ns_add_u32 s39, s39, s36\ns_add_u32 s39, s39, 1024")
    for t in range(4):
        o = ((t >> 1) * 32 + (t & 1) * 4) * 3072
        A(f"s_add_u32 s{40+t}, s38, {o}\ns_add_u32 s{44+t}, s39, {o}")
    for ks in range(4):
        for t in range(4):
            A(f"buffer_load_dwordx4 {v(AF+(t*4+ks)*4,4)}, v6, s[24:27], s{40+t} offen offset:{ks*64}")
            A(f"buffer_load_dwordx4 {v(BF+(t*4+ks)*4,4)}, v6, s[24:27], s{44+t} offen offset:{ks*64}")
    c = 512 ** -0.5 * math.log2(math.e)
    A(f"s_mov_b32 s48, {hex(f2u(c))}")
    A(f"s_mov_b32 s49, {L.W1}")
    A.stamp(1)
    A("s_waitcnt vmcnt(0)")
    A("s_branch K0_MM")
    A("K0_VO:")
    A("v_lshrrev_b32 v5, 3, v2")
    A("v_and_b32 v6, 7, v2")
    A("v_lshl_add_u32 v6, v5, 7, v6")
    A("v_mul_lo_u32 v6, v6, s37")
    A("v_lshl_add_u32 v6, v3, 4, v6")
    A("v_lshrrev_b32 v7, 3, v0\nv_lshlrev_b32 v7, 10, v7\nv_and_b32 v8, 7, v0\nv_lshl_add_u32 v7, v8, 4, v7")
    A("s_lshl_b32 s39, s3, 17\ns_lshl_b32 s38, s33, 7\ns_add_u32 s39, s39, s38")
    A("s_lshl_b32 s50, s3, 14")
    for i in range(16):
        A(f"s_add_u32 m0, s50, {i*1024}")
        A("buffer_load_dwordx4 v7, s[28:31], s39 offen lds")
        A("s_add_u32 s39, s39, 8192")
    A("s_lshr_b32 s38, s34, 2\ns_lshl_b32 s38, s38, 8\ns_and_b32 s39, s34, 3\ns_lshl_b32 s39, s39, 5\ns_add_u32 s38, s38, s39")
    A("s_mul_i32 s38, s38, 3072\ns_add_u32 s38, s38, s36\ns_add_u32 s38, s38, 2048")
    for t in range(4):
        A(f"s_add_u32 s{40+t}, s38, {t*8*3072}")
    for ks in range(4):
        for t in range(4):
            A(f"buffer_load_dwordx4 {v(AF+(t*4+ks)*4,4)}, v6, s[24:27], s{40+t} offen offset:{ks*64}")
    A("v_bfe_u32 v7, v0, 2, 2\nv_lshl_add_u32 v7, v3, 3, v7\nv_lshlrev_b32 v7, 7, v7\nv_and_b32 v8, 3, v0\nv_lshl_add_u32 v7, v8, 4, v7")
    A("v_add_u32 v7, s50, v7")
    A("s_waitcnt vmcnt(16)")
    for ks in range(4):
        for t in range(4):
            o = ks * 4096 + (t >> 1) * 64 + (t & 1) * 8
            r = BF + (t * 4 + ks) * 4
            A(f"ds_read_b64_tr_b16 {v(r,2)}, v7 offset:{o}")
            A(f"ds_read_b64_tr_b16 {v(r+2,2)}, v7 offset:{o+512}")
        A("s_waitcnt lgkmcnt(0)")
    A("s_mov_b32 s48, 1.0")
    A(f"s_mov_b32 s49, {L.W2}")
    A("s_waitcnt vmcnt(0)")
    A("K0_MM:")
    A.stamp(2)
    for ks in range(4):
        for a in range(4):
            for b in range(4):
                ac = AC + (b * 4 + a) * 4
                cc = "0" if ks == 0 else v(ac, 4)
                A(f"v_mfma_f32_16x16x32_bf16 {v(ac,4)}, {v(AF+(a*4+ks)*4,4)}, {v(BF+(b*4+ks)*4,4)}, {cc}")
    A("s_lshl_b32 s50, s3, 14\nv_add_u32 v7, s50, v9")
    for i in range(16):
        A(f"ds_write_b128 v7, {v(AC+4*i,4)} offset:{i*1024}")
    A("s_waitcnt lgkmcnt(0)")
    A("s_barrier")
    A.stamp(3)
    A("s_lshl_b32 s50, s3, 12\nv_add_u32 v7, s50, v9")
    for src in range(4):
        for a in range(4):
            A(f"ds_read_b128 {v(AF+(src*4+a)*4,4)}, v7 offset:{src*16384+a*1024}")
        if src == 1:
            A("s_waitcnt lgkmcnt(0)")
    A("s_waitcnt lgkmcnt(0)")
    for src in range(1, 4):
        for i in range(8):
            A(f"v_pk_add_f32 {v(AF+2*i,2)}, {v(AF+2*i,2)}, {v(AF+src*16+2*i,2)}")
    for i in range(16):
        A(f"v_mul_f32 {v(AF+i)}, s48, {v(AF+i)}")
    for i in range(8):
        A(f"v_cvt_pk_bf16_f32 {v(BF+i)}, {v(AF+2*i)}, {v(AF+2*i+1)}")
    A.stamp(4)
    A("s_lshl_b32 s42, s33, 2\ns_add_u32 s42, s42, s3\ns_lshl_b32 s42, s42, 14\ns_lshl_b32 s43, s34, 11\ns_add_u32 s42, s42, s43\ns_add_u32 s42, s42, s49")
    A(f"buffer_store_dwordx4 {v(BF,4)}, v9, s[20:23], s42 offen")
    A(f"buffer_store_dwordx4 {v(BF+4,4)}, v9, s[20:23], s42 offen offset:1024")
    A.endpgm()
    A("K0_TR:")
    A("s_sub_u32 s32, s2, 384")
    A("s_lshl_b32 s32, s32, 2")
    A("s_add_u32 s32, s32, s3")
    A("s_mov_b32 s27, 0x20000")
    A("s_cmp_lt_u32 s32, 128")
    A("s_cbranch_scc0 K0_T2")
    A("s_mov_b32 s24, s10\ns_and_b32 s25, s11, 0xffff\ns_mov_b32 s26, 0x100000")
    A("s_lshr_b32 s33, s32, 3\ns_and_b32 s34, s32, 7\ns_mov_b32 s37, 11\ns_mov_b32 s36, 14")
    A(f"s_mov_b32 s42, {L.W1 + 32*16*1024}")
    A("s_branch K0_T9")
    A("K0_T2:")
    A("s_cmp_lt_u32 s32, 192")
    A("s_cbranch_scc0 K0_T3")
    A("s_sub_u32 s32, s32, 128")
    A("s_mov_b32 s24, s12\ns_and_b32 s25, s13, 0xffff\ns_mov_b32 s26, 0x80000")
    A("s_lshr_b32 s33, s32, 2\ns_and_b32 s34, s32, 3\ns_mov_b32 s37, 10\ns_mov_b32 s36, 14")
    A(f"s_mov_b32 s42, {L.W2 + 32*16*1024}")
    A("s_branch K0_T9")
    A("K0_T3:")
    A("s_sub_u32 s32, s32, 192")
    A("s_mov_b32 s24, s14\ns_and_b32 s25, s15, 0xffff\ns_mov_b32 s26, 0x100000")
    A("s_lshr_b32 s33, s32, 2\ns_and_b32 s34, s32, 3\ns_mov_b32 s37, 10\ns_mov_b32 s36, 15")
    A(f"s_mov_b32 s42, {L.W3}")
    A("K0_T9:")
    A("v_lshlrev_b32 v5, s37, v3\nv_lshl_add_u32 v5, v2, 4, v5")
    A("s_lshl_b32 s38, s33, 5\ns_lshl_b32 s38, s38, s37\ns_lshl_b32 s39, s34, 8\ns_add_u32 s38, s38, s39")
    A("s_lshl_b32 s39, 4, s37")
    A("s_lshl_b32 s50, s3, 13")
    for i in range(8):
        A(f"s_add_u32 m0, s50, {i*1024}")
        A("buffer_load_dwordx4 v5, s[24:27], s38 offen lds")
        A("s_add_u32 s38, s38, s39")
    A("v_bfe_u32 v7, v0, 2, 2\nv_lshl_add_u32 v7, v3, 3, v7\nv_lshlrev_b32 v7, 8, v7\nv_and_b32 v8, 3, v0\nv_lshl_add_u32 v7, v8, 4, v7")
    A("v_add_u32 v7, s50, v7")
    A("v_lshlrev_b32 v9, 4, v0")
    A("s_lshl_b32 s43, s34, 3\ns_lshl_b32 s43, s43, s36\ns_add_u32 s42, s42, s43\ns_lshl_b32 s43, s33, 10\ns_add_u32 s42, s42, s43")
    A("s_lshl_b32 s43, 1, s36")
    A("s_waitcnt vmcnt(0)")
    for h in range(2):
        for t in range(4 * h, 4 * h + 4):
            o = (t >> 1) * 64 + (t & 1) * 8
            A(f"ds_read_b64_tr_b16 {v(16+4*t,2)}, v7 offset:{o}")
            A(f"ds_read_b64_tr_b16 {v(18+4*t,2)}, v7 offset:{o+1024}")
        A("s_waitcnt lgkmcnt(0)")
        for t in range(4 * h, 4 * h + 4):
            A(f"buffer_store_dwordx4 {v(16+4*t,4)}, v9, s[20:23], s42 offen")
            A("s_add_u32 s42, s42, s43")
    A.endpgm()
    A("K0_TP:")
    A("s_sub_u32 s32, s2, 464\ns_lshl_b32 s32, s32, 2\ns_add_u32 s32, s32, s3")
    A("s_mov_b32 s27, 0x20000")
    A("s_cmp_lt_u32 s32, 32")
    A("s_cselect_b32 s24, s52, s54\ns_cselect_b32 s25, s53, s55\ns_and_b32 s25, s25, 0xffff")
    A("s_cmp_lt_u32 s32, 32")
    A("s_cselect_b32 s37, 10, 11\ns_cselect_b32 s33, 0, 32\ns_sub_u32 s33, s32, s33")
    A("s_lshl_b32 s39, 1, s37\ns_mul_i32 s26, s39, 31")
    A("v_lshrrev_b32 v2, 2, v0\nv_and_b32 v3, 3, v0")
    chan_lane(A, 4, 2, 5)
    A("s_lshr_b32 s35, s33, 1\ns_lshl_b32 s35, s35, 5\ns_and_b32 s36, s33, 1\ns_lshl_b32 s36, s36, 2\ns_add_u32 s35, s35, s36")
    A("v_add_u32 v4, s35, v4\nv_lshlrev_b32 v4, 1, v4")
    A("v_sub_u32 v5, 3, v3\nv_lshlrev_b32 v5, s37, v5\nv_add_u32 v5, v5, v4")
    A("s_mov_b32 s38, 0")
    for kk in range(4, 36):
        A(f"buffer_load_ushort {v(16+kk)}, v5, s[24:27], s38 offen")
        A("s_add_u32 s38, s38, s39")
    A("v_mov_b32 v16, 0")
    A("v_bfrev_b32 v8, -2")
    for kk in range(1, 4):
        A(f"v_sub_u32 v6, {kk-1}, v3\nv_cmp_gt_i32 vcc, 0, v6\nv_lshlrev_b32 v6, s37, v6\nv_add_u32 v6, v6, v4")
        A(f"v_cndmask_b32 {v(9+kk)}, v6, v8, vcc")
        A(f"buffer_load_ushort {v(16+kk)}, {v(9+kk)}, s[24:27], 0 offen")
    A("v_and_b32 v6, 1, v3\nv_lshlrev_b32 v6, 4, v6\nv_mov_b32 v7, 0x3f80\nv_lshlrev_b32 v7, v6, v7")
    A("v_cmp_gt_u32 vcc, 2, v3")
    A("v_cndmask_b32 v82, 0, v7, vcc\nv_cndmask_b32 v83, v7, 0, vcc")
    A("v_lshlrev_b32 v9, 4, v0")
    A(f"s_mul_i32 s42, s32, 5120\ns_add_u32 s42, s42, {L.TT}\ns_add_u32 s43, s42, 4096")
    A("s_waitcnt vmcnt(0)")
    for i in range(18):
        A(f"v_lshl_or_b32 {v(64+i)}, {v(17+2*i)}, 16, {v(16+2*i)}")
    for i in range(5):
        A(f"buffer_store_dwordx4 {v(64+4*i,4)}, v9, s[20:23], s{42+(i>>2)} offen offset:{(i&3)*1024}")
    A.endpgm()
    A("K0_ZR:")
    A("s_sub_u32 s32, s2, 488")
    for i in range(4):
        A(f"v_mov_b32 {v(16+i)}, 0")
    A("v_lshlrev_b32 v9, 4, v0")
    A(f"s_lshr_b32 s33, s32, 1\ns_mul_i32 s33, s33, {8*L.MB + L.GD}\ns_and_b32 s34, s32, 1\ns_mul_i32 s34, s34, {8*L.MB + 16384}")
    A(f"s_add_u32 s33, s33, s34\ns_add_u32 s33, s33, {L.XA - 16384}\ns_lshl_b32 s34, s3, 12\ns_add_u32 s33, s33, s34")
    A("s_cmp_lt_u32 s32, 6\ns_cselect_b32 s33, s33, 0x7f000000")
    for i in range(4):
        A(f"buffer_store_dwordx4 v[16:19], v9, s[20:23], s33 offen offset:{i*1024}")
    A("s_lshl_b32 s34, s3, 6\nv_add_u32 v4, s34, v0")
    A("s_movk_i32 s35, 65\nv_cmp_eq_u32 vcc, 0, v4\nv_cmp_eq_u32 s[36:37], s35, v4")
    A("s_or_b64 vcc, vcc, s[36:37]\ns_nop 1")
    A("v_cndmask_b32 v5, 0, 16, vcc")
    A("v_lshlrev_b32 v6, 7, v4")
    A("v_bfrev_b32 v8, -2\nv_cmp_gt_u32 vcc, 0x42, v4\ns_nop 1\nv_cndmask_b32 v6, v8, v6, vcc")
    A(f"s_mul_i32 s33, s32, {66*128}\ns_add_u32 s33, s33, {L.FLAGS}")
    A("buffer_store_dword v5, v6, s[20:23], s33 offen")
    A.endpgm()
    A("K0_END:")
    A("s_endpgm")
    assert A.check_branches() == 0
    return name, A.text() + "\n" + kdesc(name, 212, 0, 48), f"; @launch kernel={name} grid=({NWG_K0},1,1) block=(256,1,1) lds=65536"
```

```python
MB = 1 << 20
GD = 65536
XA = GD
Z = XA + 8 * MB + GD
AT = Z + 8 * MB + GD
QP = AT + 8 * MB + GD
MM = QP + 8 * MB
PO = MM + 16 * MB
W1 = PO + 32 * MB
W2 = W1 + 3 * MB // 2
W3 = W2 + MB
TT = W3 + MB
GST = TT + MB // 2
PML = GST + 3 * MB // 2
FLAGS = PML + MB // 4
FK = 64 * 128
NFLAG = 16 * FK
RS = FLAGS + NFLAG
GF = RS + 65536
G = 96 * MB
U = 104 * MB
WS_BYTES = 268435456
T = 4000
TP = 4096
assert FLAGS + NFLAG < 96 * MB
```

```python
from asmlib import *
import layout as L
from k0 import srd
from g4 import *
from gemm import gelu_consts
from p0 import *
from ph import c4_tload, c4_addr, c4_write, c4_core, RS, T4B
import attn as AT_
from attn import Sreg, ring, kread, vread, softmax_ops, check_ops, rowmax, Sched, spread, DIST, THRESH
from attn import L16, DV0, DV1, KA0, KA1, VA, LS0, LS1, BS0, BS1, T0, NEGM, PP, XT

import os
EXP = os.environ.get("EXP", "").split(",")
SC = " sc1"
LL = "" if "pl" in EXP else SC
SL = "" if "local" in EXP else SC
F_S, F_Q, F_Z, F_P, F_ML, F_AT, F_MG = range(7)
FK = L.FK
OOB = 0x7f000000

def Qr(qa, j): return 256 + (qa * 16 + j) * 4
def Or(dt, qa):
    i = (dt * 2 + qa) * 4
    return 128 + i if i < 128 else 256 + i

class M:
    def __init__(self):
        self.A = Asm()
        self.vm = Q(self.A, "vmcnt", 63)
        self.lk = Q(self.A, "lgkmcnt", 15)

    def signal(self, kind, tag, vt):
        A = self.A
        A(f"v_mov_b32 {v(vt)}, 1\ns_add_u32 s26, s24, {kind*FK}")
        self.vm.wait(tag)
        A("s_mov_b64 exec, 1")
        self.vm.issue("SIG", f"buffer_atomic_add {v(vt)}, off, s[20:23], s26 sc1")
        A("s_mov_b64 exec, -1")
        A.stamp("sg%d" % kind)

    def _poll_text(self, nbr, vt, sreg):
        if nbr:
            return f"buffer_load_dword {v(vt)}, {v(vt+1)}, s[20:23], s{sreg} offen sc1"
        return f"buffer_load_dword {v(vt)}, off, s[20:23], s{sreg} sc1"

    def poll_issue(self, kind, nbr, vt, sreg=27):
        A = self.A
        if nbr:
            A(f"s_mov_b32 s{sreg}, {L.FLAGS + kind*FK}\ns_sub_u32 s26, s28, 1")
            A(f"v_min_u32 {v(vt+1)}, 2, v0\nv_add_u32 {v(vt+1)}, s26, {v(vt+1)}\nv_med3_i32 {v(vt+1)}, {v(vt+1)}, 0, 63\nv_lshlrev_b32 {v(vt+1)}, 7, {v(vt+1)}")
        else:
            A(f"s_add_u32 s{sreg}, s24, {kind*FK}")
        self.vm.issue(("POLL", kind), self._poll_text(nbr, vt, sreg))

    def poll_check(self, kind, nbr, vt, sreg=27):
        A = self.A
        ok, lp = A.label("POK"), A.label("PLP")
        A.stamp("pb%d" % kind)
        self.vm.wait(("POLL", kind))
        A(f"{lp}:")
        A(f"v_cmp_le_u32 vcc, 16, {v(vt)}")
        A("s_cmp_eq_u64 vcc, -1")
        A(f"s_cbranch_scc1 {ok}")
        A("s_sleep 1")
        A(self._poll_text(nbr, vt, sreg))
        A("s_sub_u32 s25, s25, 1")
        A("s_waitcnt vmcnt(0)")
        A(f"s_cbranch_scc0 {lp}")
        A("s_endpgm")
        A(f"{ok}:")
        A.stamp("pc%d" % kind)

    def gsignal(self, val, vt):
        A = self.A
        A(f"v_mov_b32 {v(vt)}, {val}\ns_cmp_eq_u32 s3, 0\ns_cselect_b32 s26, s2, {OOB}\ns_mov_b64 exec, 1")
        self.vm.issue("SIG", f"buffer_store_byte {v(vt)}, off, s[16:19], s26 sc1")
        A("s_mov_b64 exec, -1")

    def gpoll_issue(self, vt):
        self.A(f"v_lshlrev_b32 {v(vt+1)}, 2, v0")
        self.vm.issue("GPOLL", f"buffer_load_dword {v(vt)}, {v(vt+1)}, s[16:19], 0 offen sc1")

    def gpoll_check(self, bit, vt):
        A = self.A
        ok, lp = A.label("GOK"), A.label("GLP")
        msk = 0x01010101 * bit
        A(f"s_mov_b32 s26, {hex(msk)}")
        self.vm.wait("GPOLL")
        A(f"{lp}:")
        A(f"v_and_b32 {v(vt)}, s26, {v(vt)}")
        A(f"v_cmp_eq_u32 vcc, s26, {v(vt)}")
        A("s_cmp_eq_u64 vcc, -1")
        A(f"s_cbranch_scc1 {ok}")
        A("s_sleep 1")
        A(f"buffer_load_dword {v(vt)}, {v(vt+1)}, s[16:19], 0 offen sc1")
        A("s_sub_u32 s25, s25, 1")
        A("s_waitcnt vmcnt(0)")
        A(f"s_cbranch_scc0 {lp}")
        A("s_endpgm")
        A(f"{ok}:")
        A.stamp("gp%d" % bit)

    def pf(self, a, b, vt):
        self.A.prefetch_code(a, b, 32768, vt, vm=self.vm)

def gelu_pk(A, regs, tmp):
    for x, t in zip(regs, tmp):
        A(f"v_pk_mul_f32 {v(t,2)}, {v(x,2)}, {v(x,2)}")
    for x, t in zip(regs, tmp):
        A(f"v_pk_fma_f32 {v(t,2)}, {v(t,2)}, v[8:9], v[6:7]")
    for x, t in zip(regs, tmp):
        A(f"v_pk_mul_f32 {v(t,2)}, {v(t,2)}, {v(x,2)}")
    for x, t in zip(regs, tmp):
        A(f"v_exp_f32 {v(t)}, {v(t)}\nv_exp_f32 {v(t+1)}, {v(t+1)}")
    for x, t in zip(regs, tmp):
        A(f"v_pk_add_f32 {v(t,2)}, {v(t,2)}, v[10:11]")
    for x, t in zip(regs, tmp):
        A(f"v_rcp_f32 {v(t)}, {v(t)}\nv_rcp_f32 {v(t+1)}, {v(t+1)}")
    for x, t in zip(regs, tmp):
        A(f"v_pk_mul_f32 {v(x,2)}, {v(x,2)}, {v(t,2)}")

def kv_dma_ops():
    out = ["s_mov_b32 m0, s47"]
    for i in range(4):
        out.append(f"buffer_load_dwordx4 {v(DV0)}, s[20:23], s46 offen offset:{i*1024} lds")
    out.append("s_add_u32 m0, s47, 16384")
    for i in range(4):
        out.append(f"buffer_load_dwordx4 {v(DV1)}, s[20:23], s46 offen offset:{i*1024} lds")
    out += ["s_add_u32 s46, s46, 32768", "s_add_u32 s47, s47, 32768", "s_and_b32 s47, s47, 0x1ffff"]
    return out

IT, FW, FR, FV = 124, 125, 126, 127
FLG = 163840 - 1024

def cost(x):
    if callable(x):
        return 1
    return 2 if x.startswith("v_exp") else 1

def place(free, ops, g0, g1, table):
    g = g0
    prev_trans = None
    for x in ops:
        c = cost(x)
        while g <= g1 and free[g] < c:
            g += 1
        assert g <= g1, ("no room", x)
        table[g].append(x)
        free[g] -= c
    return g

def softmax_sched(p):
    grp = []
    t = 0
    for qa in range(2):
        bs = BS0 + qa
        for ka in range(2):
            sr = Sreg(p, ka, qa)
            tt = T0 + 4 * (t & 1); t += 1
            ex = [f"v_exp_f32 {v(tt+r)}, {v(sr+r)}" for r in range(4)]
            if ka == 0:
                a = [f"v_add_f32 {v(bs)}, {v(tt)}, {v(tt+1)}"]
            else:
                a = [f"v_add_f32 {v(bs)}, {v(bs)}, {v(tt)}", f"v_add_f32 {v(bs)}, {v(bs)}, {v(tt+1)}"]
            a += [f"v_cvt_pk_bf16_f32 {v(PP+qa*4+ka*2)}, {v(tt)}, {v(tt+1)}",
                  f"v_add_f32 {v(bs)}, {v(bs)}, {v(tt+2)}", f"v_add_f32 {v(bs)}, {v(bs)}, {v(tt+3)}",
                  f"v_cvt_pk_bf16_f32 {v(PP+qa*4+ka*2+1)}, {v(tt+2)}, {v(tt+3)}"]
            grp.append((ex, a))
    return grp

def half(A, sc, p, tail, tag, loopctl=None, tailfill=None, first=False):
    ds = {}
    for f in range(8, 72):
        g = 2 * f - 15
        if f < 32:
            ds[g] = (("K", f), kread(f, p ^ 1)[0])
        elif f < 64:
            r = vread(f - 32, p)
            ds[g] = (("V", f - 32), r[0]); ds[g + 1] = (("V", f - 32), r[1])
        elif not tail:
            ds[g] = (("K", f - 64), kread(f - 64, p)[0])
    wt = {}
    for f in range(2, 66, 2):
        g = 2 * f - 1
        t = ("K", f + 1) if f < 32 else (("V", f + 1 - 32) if f < 64 else ("K", 1))
        if f == 64:
            if tail:
                continue
            g = 126
        wt[g] = t
    free = [2 - (g in ds) - (g in wt) for g in range(128)]
    tb = [[] for _ in range(128)]
    ladd = [f"v_add_f32 {v(LS0)}, {v(LS0)}, {v(BS0)}", f"v_add_f32 {v(LS1)}, {v(LS1)}, {v(BS1)}"]
    if not tail:
        dm = kv_dma_ops()
        place(free, [dm[9]], 0, 0, tb)
        place(free, [dm[10]], 0, 1, tb)
        grp = softmax_sched(p)
        ge = 2
        gc = 3
        for k in range(4):
            ge = place(free, grp[k][0], max(ge, gc if k >= 2 else 0), 60, tb)
            if k >= 1:
                gc = place(free, grp[k - 1][1], gprev + 1, 60, tb)
            gprev = ge
        gc = place(free, grp[3][1] + check_ops(), gprev + 1, 60, tb)
        if not first:
            place(free, [f"s_cbranch_vccnz RARE{p}\nRET{tag}:"], gc + 1, 62, tb)
        if p == 0:
            place(free, [f"v_xor_b32 {v(VA)}, 0x10000, {v(VA)}"], 1, 48, tb)
        g = place(free, ladd + dm[11:13], 64, 100, tb)
        if p == 0:
            place(free, [f"v_xor_b32 {v(KA0)}, 0x10000, {v(KA0)}", f"v_xor_b32 {v(KA1)}, 0x10000, {v(KA1)}"], g, 110, tb)
        place(free, [f"v_add_u32 {v(IT)}, 1, {v(IT)}"], 66, 74, tb)
        place(free, [lambda: sc.issue("fw", [f"ds_write_b32 {v(FW)}, {v(IT)}"])], 76, 76, tb)
        place(free, [lambda: sc.issue("fr", [f"ds_read_b32 {v(FV)}, {v(FR)}"])], 94, 94, tb)
        def chk():
            assert "fr" not in sc.q
            A(f"v_cmp_gt_u32 vcc, {v(IT)}, {v(FV)}")
        place(free, [chk], 110, 110, tb)
        if "l2pf" in EXP:
            place(free, ["s_sub_u32 s33, s44, 3", "s_lshl_b32 s33, s33, 20", "buffer_load_dword v123, v122, s[4:7], s33 offen"], 77, 93, tb)
        place(free, [f"s_cbranch_vccnz SPIN{tag}\nSRET{tag}:"], 112, 112, tb)
        SPINS.append(tag)
        place(free, [dm[0]], 113, 113, tb)
        for i, g in enumerate((114, 116, 118, 120)):
            place(free, [dm[1 + i]], g, g, tb)
        place(free, [dm[5]], 121, 121, tb)
        for i, g in enumerate((122, 124, 126)):
            place(free, [dm[6 + i]], g, g, tb)
        place(free, loopctl[:2], 122, 125, tb)
        place(free, loopctl[2:], 127, 127, tb)
    else:
        dm = kv_dma_ops()
        A(dm[9])
        A("s_waitcnt lgkmcnt(0)")
        sc.q = []
        if p == 0:
            A(f"v_xor_b32 {v(VA)}, 0x10000, {v(VA)}")
        for g in range(49, 64):
            sc.issue(ds[g][0], [ds[g][1]])
        for x in softmax_ops(p) + check_ops():
            A(x)
        A(f"s_cbranch_vccnz RARE{p}")
        A(f"RET{tag}:")
        sc.wait(("V", 1))
        place(free, ladd + list(tailfill or []), 64, 127, tb)
    for g in range(64 if tail else 0, 128):
        if g < 64:
            n, qa = g >> 1, g & 1
            j, ka = n >> 1, n & 1
            sr = Sreg(p ^ 1, ka, qa)
            c = v(NEGM + 4 * qa, 4) if j == 0 else v(sr, 4)
            A(f"{MF} {v(sr,4)}, {v(ring(n),4)}, {R(Qr(qa,j),4)}, {c}")
        else:
            dt, qa = (g - 64) >> 1, g & 1
            o = R(Or(dt, qa), 4)
            A(f"{MF} {o}, {v(ring(dt),4)}, {v(PP+4*qa,4)}, {'0' if first else o}")
        if g in ds:
            sc.issue(ds[g][0], [ds[g][1]])
        last = [x for x in tb[g] if not callable(x) and "branch" in x]
        for x in tb[g]:
            if x in last:
                continue
            if callable(x):
                x()
            else:
                A(x)
        if g in wt and "nolg" in EXP and not tail and g != 111:
            A.auto = True
            sv = A.lines; A.lines = []
            sc.wait(wt[g]); A.lines = sv
        elif g in wt:
            sc.wait(wt[g], "vmcnt(0) " if (g == 75 and not tail) else "")
        for x in last:
            A(x)

SPINS = []
def spin(A, tag):
    A(f"SPIN{tag}:")
    A(f"ds_read_b32 {v(FV)}, {v(FR)}")
    A("s_waitcnt lgkmcnt(0)")
    A(f"v_cmp_gt_u32 vcc, {v(IT)}, {v(FV)}")
    A(f"s_cbranch_vccz SRET{tag}")
    A("s_sub_u32 s25, s25, 1")
    A(f"s_cbranch_scc0 SPIN{tag}")
    A("s_endpgm")

def rare(A, p):
    A(f"RARE{p}:")
    A("s_nop 15")
    D0, AL = XT, XT + 2
    for qa in range(2):
        rowmax(A, p, qa, D0 + qa, XT + 4)
        A(f"v_max_f32 {v(D0+qa)}, 0, {v(D0+qa)}")
        A(f"v_sub_f32 {v(AL+qa)}, 0, {v(D0+qa)}")
        A(f"v_exp_f32 {v(AL+qa)}, {v(AL+qa)}")
        for pp in range(2):
            for ka in range(2):
                for r in range(4):
                    x = Sreg(pp, ka, qa) + r
                    A(f"v_sub_f32 {v(x)}, {v(x)}, {v(D0+qa)}")
        for r in range(4):
            A(f"v_sub_f32 {v(NEGM+4*qa+r)}, {v(NEGM+4*qa+r)}, {v(D0+qa)}")
        A(f"v_mul_f32 {v(LS0+qa)}, {v(LS0+qa)}, {v(AL+qa)}")
    for dt in range(32):
        for qa in range(2):
            o = Or(dt, qa)
            if o < 256:
                for r in range(4):
                    A(f"v_mul_f32 {v(o+r)}, {v(o+r)}, {v(AL+qa)}")
            else:
                t = XT + 8 + 4 * qa
                for r in range(4):
                    A(f"v_accvgpr_read_b32 {v(t+r)}, {R(o+r)}")
                for r in range(4):
                    A(f"v_mul_f32 {v(t+r)}, {v(t+r)}, {v(AL+qa)}")
                for r in range(4):
                    A(f"v_accvgpr_write_b32 {R(o+r)}, {v(t+r)}")
    for x in softmax_ops(p):
        A(x)
    A("s_nop 3")
    A("s_cmp_eq_u32 s44, 1")
    A(f"s_cbranch_scc1 RETT{p}")
    A(f"s_branch RETL{p}")

def gen_mega():
    m = M()
    A, vm, lk = m.A, m.vm, m.lk
    name = "mega_kernel"
    A(f".globl {name}\n.p2align 8\n.type {name},@function\n{name}:\n{name}_S:")
    A("s_cmp_ge_u32 s2, 256")
    A("s_cbranch_scc0 MEGA_GO")
    A("s_endpgm")
    A("MEGA_GO:")
    A.stamp_init()
    ldptr(A, 8, 0); ldptr(A, 40, 3); ldptr(A, 44, 1); ldptr(A, 20, 10)
    ldptr(A, 60, 4); ldptr(A, 62, 6); ldptr(A, 12, 8); ldptr(A, 16, 9)
    A("v_lshrrev_b32 v1, 6, v0")
    A("v_and_b32 v0, 63, v0")
    A("v_readfirstlane_b32 s3, v1")
    A("v_lshlrev_b32 v1, 4, v0")
    A("s_and_b32 s28, s2, 7\ns_lshr_b32 s29, s2, 3\ns_and_b32 s30, s29, 3\ns_lshr_b32 s29, s29, 2")
    A("s_lshl_b32 s28, s28, 3\ns_add_u32 s28, s28, s29")
    A("s_lshl_b32 s31, s30, 2\ns_add_u32 s31, s31, s3")
    A("s_mov_b32 s49, 0xffff0000")
    A(f"s_lshl_b32 s24, s28, 7\ns_add_u32 s24, s24, {L.FLAGS}")
    A("s_mov_b32 s25, 0x60000")
    A("s_waitcnt lgkmcnt(0)")
    fix_srd(A, 8, 2 * L.T * 1024); fix_srd(A, 40, 0x100000); fix_srd(A, 44, 512 * 3072); fix_srd(A, 20, L.WS_BYTES)
    fix_srd(A, 12, 2 * L.T * 1024); fix_srd(A, 16, 256)
    A("PF_P0:")
    gu = GU(A, vm, lk)
    phase_p0(m, gu)
    c0, c1 = gelu_consts()
    A(f"v_mov_b32 v6, {hex(f2u(c0))}\nv_mov_b32 v7, v6\nv_mov_b32 v8, {hex(f2u(c1))}\nv_mov_b32 v9, v8\nv_mov_b32 v10, 1.0\nv_mov_b32 v11, 1.0")
    A(f"s_lshl_b32 s32, s28, 17\ns_add_u32 s32, s32, {L.XA}")
    for par in range(2):
        A(f"s_lshl_b32 s{66+par}, s31, 15\ns_add_u32 s{66+par}, s{66+par}, {L.W1 + par*16384}")
    gq_ = G4(A, vm, lk, NB=8, wn=2, KS=16, kps=2, NS=3, WD=8, s_act=32, blk_stride=16384, s_w=[66, 67],
             acc0=168, fr0=256, w0=256 + 112, vl16=1, vt=248, st=60, lds0=2 * GU.SLOT, stamps=('A0', 'A1', 'A2'))
    gq_.setup()
    RSR = 168
    A(f"v_and_b32 v252, 15, v0\nv_lshlrev_b32 v252, 3, v252")
    A(f"s_lshl_b32 s48, s28, 10\ns_add_u32 s48, s48, {L.RS - 128}")
    A(f"s_cmp_eq_u32 s28, 0\ns_cselect_b32 s38, {OOB}, s48\ns_cmp_eq_u32 s28, 63\ns_cselect_b32 s39, {OOB}, s48")
    def rsl():
        return [("RS", f"buffer_load_dwordx2 {v(RSR+2*b,2)}, v252, s[20:23], s{38 if b == 0 else (39 if b == 9 else 48)} offen offset:{b*128}{LL}") for b in range(10)]
    def extraU(k):
        out = []
        if k == 3:
            out.append(lambda: m.gsignal(1, 14))
        if k == 4:
            out.append(lambda: m.pf("PF_U_END", "PF_ATT_END", 12))
        if k == 11:
            out.append(lambda: m.gpoll_issue(14))
        if k == 13:
            out += [lambda: m.gpoll_check(1, 14)] + rsl() + gq_.prefetch_list()
        return out
    gu.run(extraU, start=False)
    A("PF_U_END:")
    A("s_barrier")
    lat = late_issue(m, 232)
    TAz = 256 + 176
    tl = c4_tload(A, vm, TAz, 0, sr=68)
    SU, SG = gu.accs[(0, 0)], 188
    for i in range(8):
        A(f"v_mov_b32_dpp {v(SU+i)}, {v(SU+i)} row_newbcast:0 row_mask:0xf bank_mask:0xf")
        A(f"v_mov_b32_dpp {v(SG+i)}, {v(gu.accs[(0,2)]+i)} row_newbcast:0 row_mask:0xf bank_mask:0xf")
    def fold(x, sn, b):
        rs = v(RSR + 2 * b, 2)
        for e in range(4):
            A(f"v_pk_fma_f32 {v(x+2*e,2)}, {v(sn+2*e,2)}, {rs}, {v(x+2*e,2)} op_sel:[0,1,0] op_sel_hi:[1,1,1]")
        for e in range(4):
            A(f"v_pk_mul_f32 {v(x+2*e,2)}, {v(x+2*e,2)}, {rs} op_sel_hi:[1,0]")
    tmp = list(range(196, 204, 2))
    st = 204
    for i in (18, 19, 22, 23):
        A(f"v_mov_b32 {v(st+i)}, 0")
    vm.wait("RS")
    for b in range(10):
        gq = gu.accs[(b, 2)]
        fold(gq, SG, b)
        gelu_pk(A, list(range(gq, gq + 8, 2)), tmp)
        s1, s2 = st + (b >> 2) * 8 + (b & 3), st + (b >> 2) * 8 + 4 + (b & 3)
        A(f"v_pk_add_f32 v[12:13], {v(gq,2)}, {v(gq+2,2)}\nv_pk_mul_f32 v[14:15], {v(gq,2)}, {v(gq,2)}")
        A(f"v_pk_add_f32 v[12:13], v[12:13], {v(gq+4,2)}\nv_pk_fma_f32 v[14:15], {v(gq+2,2)}, {v(gq+2,2)}, v[14:15]")
        A(f"v_pk_add_f32 v[12:13], v[12:13], {v(gq+6,2)}\nv_pk_fma_f32 v[14:15], {v(gq+4,2)}, {v(gq+4,2)}, v[14:15]")
        A(f"v_add_f32 {v(s1)}, v12, v13\nv_pk_fma_f32 v[14:15], {v(gq+6,2)}, {v(gq+6,2)}, v[14:15]")
        A(f"v_add_f32 {v(s2)}, v14, v15")
    A(f"s_lshl_b32 s33, s28, 4\ns_add_u32 s33, s33, s31\ns_mul_i32 s33, s33, 1536\ns_add_u32 s33, s33, {L.GST}")
    A("v_lshlrev_b32 v12, 3, v0")
    for h in range(3):
        for o in (0, 4):
            x = st + h * 8 + o
            A(f"v_permlane32_swap_b32 {v(x)}, {v(x+2)}")
            A(f"v_permlane32_swap_b32 {v(x+1)}, {v(x+3)}")
            A(f"v_add_f32 {v(x)}, {v(x)}, {v(x+2)}")
            A(f"v_add_f32 {v(x+1)}, {v(x+1)}, {v(x+3)}")
            A(f"v_permlane16_swap_b32 {v(x)}, {v(x+1)}")
            A(f"v_add_f32 {v(x)}, {v(x)}, {v(x+1)}")
        x = st + h * 8
        A(f"v_mov_b32 {v(x+1)}, {v(x+4)}")
        vm.issue("sS", f"buffer_store_dwordx2 {v(x,2)}, v12, s[20:23], s33 offen offset:{h*512}{SL}")
    for b in range(1, 9):
        fold(gu.accs[(b, 0)], SU, b)
    A.stamp('g')
    def extraA(k):
        out = []
        if k == 3:
            out.append(lambda: m.signal(F_S, "sS", 12))
        if k >= 9:
            out += lat[:9]; del lat[:9]
            out += tl[:2]; del tl[:2]
        return out
    gq_.run(extraA)
    assert not lat and not tl
    A("s_lshl_b32 s48, s28, 17\ns_lshl_b32 s33, s31, 10\ns_add_u32 s48, s48, s33")
    A(f"s_add_u32 s33, s48, {L.QP}")
    for b in range(8):
        q = gq_.accs[(b, 0)]
        for i in range(4):
            A(f"v_cvt_pk_bf16_f32 {v(q+i)}, {v(q+2*i)}, {v(q+2*i+1)}")
        vm.issue("sQ", f"buffer_store_dwordx4 {v(q,4)}, v1, s[20:23], s33 offen{SL}")
        A("s_add_u32 s33, s33, 16384")
    m.poll_issue(F_S, False, 13)
    UR = 16
    tmp = list(range(240, 248, 2))
    for b in range(1, 9):
        u = gu.accs[(b, 0)]
        gelu_pk(A, list(range(u, u + 8, 2)), tmp)
        for i in range(4):
            A(f"v_cvt_pk_bf16_f32 {v(UR+4*(b-1)+i)}, {v(u+2*i)}, {v(u+2*i+1)}")
        if b == 5:
            m.signal(F_Q, "sQ", 12)
    A.stamp('u')
    def kv(tile):
        for x in kv_dma_ops():
            if "buffer" in x:
                vm.issue(("KV", tile), x)
            else:
                A(x)
    LB = 65536
    FST = LB + 4 * T4B
    STT = FST + 40960
    B0, D0, OUT, VA_ = 168, 88, 48, 80
    S0 = 48
    A("s_lshl_b32 s33, s3, 6\nv_add_u32 v14, s33, v0\nv_lshlrev_b32 v15, 3, v14")
    A("s_lshl_b32 s33, s28, 7\ns_sub_u32 s33, s33, 16\nv_add_u32 v14, s33, v14")
    A(f"s_mul_i32 s33, s28, {16*1536}\ns_add_u32 s33, s33, {L.GST}")
    m.poll_check(F_S, False, 13)
    for i in range(16):
        vm.issue("ST", f"buffer_load_dwordx2 {v(S0+2*i,2)}, v15, s[20:23], s33 offen offset:{(i&1)*1536}{LL}")
        if i & 1:
            A("s_add_u32 s33, s33, 3072")
    late_compute(m, 168, 200, 240, 232)
    m.poll_issue(F_Q, False, 13)
    c4_addr(A, LB, VA_)
    A(f"s_mul_i32 s45, s3, 10240\ns_add_u32 s45, s45, {FST}\nv_add_u32 v84, s45, v1")
    A("v_lshrrev_b32 v85, 2, v0\nv_lshlrev_b32 v85, 4, v85\nv_and_b32 v12, 3, v0\nv_lshl_add_u32 v85, v12, 8, v85\nv_add_u32 v85, s45, v85")
    A("s_lshr_b32 s32, s28, 5")
    A("s_mul_i32 s33, s30, 31\ns_cmp_lg_u32 s30, 0\ns_addc_u32 s33, s33, 0")
    A("s_lshl_b32 s34, s32, 7\ns_add_u32 s33, s33, s34\ns_lshl_b32 s46, s33, 15")
    A(f"s_add_u32 s46, s46, {L.XA}")
    A("s_lshl_b32 s47, s3, 12")
    A("s_and_b32 s35, s3, 1\ns_lshl_b32 s35, s35, 7")
    A(f"v_xor_b32 {v(DV0)}, s35, v1\nv_add_u32 {v(DV0)}, s47, {v(DV0)}\nv_add_u32 {v(DV1)}, 16384, {v(DV0)}")
    kv(0)
    kv(1)
    A("v_and_b32 v12, 4095, v14")
    A(f"s_movk_i32 s42, {L.T}\ns_movk_i32 s43, 8192")
    A("v_cmp_gt_u32 vcc, s42, v12")
    A("v_cmp_gt_u32 s[34:35], s43, v14")
    A("s_and_b64 vcc, vcc, s[34:35]")
    A(f"v_add_u32 v15, {STT}, v15")
    vm.wait("ST")
    for i in range(1, 16):
        A(f"v_pk_add_f32 {v(S0,2)}, {v(S0,2)}, {v(S0+2*i,2)}")
    A(f"v_mul_f32 {v(S0)}, {hex(f2u(1/512))}, {v(S0)}")
    A(f"v_mul_f32 {v(S0+1)}, {hex(f2u(1/512))}, {v(S0+1)}")
    A(f"v_fma_f32 {v(S0+1)}, -{v(S0)}, {v(S0)}, {v(S0+1)}")
    A(f"v_max_f32 {v(S0+1)}, 0, {v(S0+1)}")
    A(f"v_add_f32 {v(S0+1)}, {hex(f2u(1e-5))}, {v(S0+1)}")
    A(f"v_rsq_f32 {v(S0+2)}, {v(S0+1)}")
    A(f"v_mul_f32 {v(S0+3)}, {v(S0)}, {v(S0+2)}")
    A(f"v_sub_f32 {v(S0+3)}, 0, {v(S0+3)}")
    A(f"v_cndmask_b32 {v(S0+2)}, 0, {v(S0+2)}, vcc")
    A(f"v_cndmask_b32 {v(S0+3)}, 0, {v(S0+3)}, vcc")
    A(f"ds_write_b64 v15, {v(S0+2,2)}")
    A(f"v_and_b32 v12, 15, v0\nv_lshlrev_b32 v12, 3, v12\nv_add_u32 v12, {STT}, v12")
    A("s_waitcnt lgkmcnt(0)")
    A("s_barrier")
    TB = 232
    for b in range(10):
        lk.issue(("T", b), f"ds_read_b64 {v(TB+2*b,2)}, v12 offset:{b*128}")
    m.poll_check(F_Q, False, 13)
    A(f"s_lshl_b32 s36, s28, 2\ns_add_u32 s36, s36, s3\ns_lshl_b32 s36, s36, 15\ns_add_u32 s36, s36, {L.QP}\ns_add_u32 s37, s36, 16384")
    ql = []
    for j in range(16):
        for qa in range(2):
            ql.append(lambda j=j, qa=qa: vm.issue(("Q", j), f"buffer_load_dwordx4 {R(Qr(qa,j),4)}, v1, s[20:23], s{36+qa} offen offset:{(j&3)*1024}{LL}"))
        if j % 4 == 3:
            ql.append(lambda: A("s_add_u32 s36, s36, 4096\ns_add_u32 s37, s37, 4096"))
    for b in range(10):
        lk.wait(("T", b))
        gq = gu.accs[(b, 2)]
        for e in range(4):
            A(f"v_pk_fma_f32 {v(gq+2*e,2)}, {v(gq+2*e,2)}, {v(TB+2*b,2)}, {v(TB+2*b,2)} op_sel:[0,0,1] op_sel_hi:[1,0,1]")
        for e in range(4):
            A(f"v_cvt_pk_bf16_f32 {v(gq+e)}, {v(gq+2*e)}, {v(gq+2*e+1)}")
        lk.issue("wr", f"ds_write_b128 v84, {v(gq,4)} offset:{b*1024}")
        for u in range(2):
            lk.issue(("X", b), f"ds_read_b64_tr_b16 {v(B0+4*b+2*u,2)}, v85 offset:{b*1024+u*8}")
        ql.pop(0)()
        if b >= 1:
            lk.wait(("X", b - 1))
            for u in range(2):
                c4_write(lk, VA_, B0 + 4 * (b - 1) + 2 * u, b - 1, u)
    lk.wait(("X", 9))
    for u in range(2):
        c4_write(lk, VA_, B0 + 36 + 2 * u, 9, u)
    A.stamp('zc0')
    c4_core(A, lk, TAz, B0, D0, VA_, OUT, False, ql)
    A.stamp('zc1')
    A(f"s_add_u32 s41, s48, {L.Z}")
    for b in range(8):
        lk.wait(("O", b))
        t = 88 + 16 * (b & 1)
        for e in range(4):
            A(f"v_lshlrev_b32 {v(t+2*e)}, 16, {v(OUT+4*b+e)}\nv_and_b32 {v(t+2*e+1)}, s49, {v(OUT+4*b+e)}")
            A(f"v_lshlrev_b32 {v(t+8+2*e)}, 16, {v(UR+4*b+e)}\nv_and_b32 {v(t+8+2*e+1)}, s49, {v(UR+4*b+e)}")
        for e in range(4):
            A(f"v_pk_mul_f32 {v(t+2*e,2)}, {v(t+2*e,2)}, {v(t+8+2*e,2)}")
        for e in range(4):
            A(f"v_cvt_pk_bf16_f32 {v(128+4*b+e)}, {v(t+2*e)}, {v(t+2*e+1)}")
        vm.issue("sZ", f"buffer_store_dwordx4 {v(128+4*b,4)}, v1, s[20:23], s41 offen{SC}")
        A("s_add_u32 s41, s41, 16384")
    A.stamp('z')
    A(f"v_mov_b32 {v(IT)}, 0\ns_lshl_b32 s33, s3, 8\ns_add_u32 s33, s33, {FLG}\nv_lshlrev_b32 {v(FW)}, 2, v0\nv_add_u32 {v(FW)}, s33, {v(FW)}")
    A(f"v_and_b32 {v(FR)}, 3, v0\nv_lshlrev_b32 {v(FR)}, 8, {v(FR)}\nv_add_u32 {v(FR)}, {FLG}, {v(FR)}")
    A(f"ds_write_b32 {v(FW)}, {v(IT)}")
    A(f"s_add_u32 s4, s20, {L.W2}\ns_addc_u32 s5, s21, 0\ns_mov_b32 s6, {L.GST - L.W2}\ns_mov_b32 s7, 0x20000")
    A("s_lshr_b32 s33, s2, 3\ns_lshl_b32 s33, s33, 2\ns_add_u32 s33, s33, s3\ns_lshl_b32 s33, s33, 13")
    A("v_lshlrev_b32 v122, 7, v0\nv_add_u32 v122, s33, v122")
    vm.wait(("KV", 1))
    A("s_waitcnt lgkmcnt(0)")
    A("s_barrier")
    for x in kv_dma_ops()[:9]:
        if "buffer" in x:
            vm.issue(("KV", 2), x)
        else:
            A(x)
    A("s_cmp_eq_u32 s30, 0\ns_addc_u32 s44, 31, 0")
    A(f"s_mov_b32 s45, {hex(f2u(THRESH))}")
    A(f"v_mov_b32 {v(KA0)}, {v(L16)}")
    A(f"v_xor_b32 {v(KA1)}, 128, {v(L16)}")
    m.gsignal(3, 120)
    sc = Sched(A)
    for mm_ in range(8):
        sc.issue(("K", mm_), kread(mm_, 0))
    A(f"v_lshrrev_b32 {v(T0)}, 2, v0")
    A(f"v_bfe_u32 {v(T0+1)}, v0, 1, 1")
    A(f"v_lshlrev_b32 {v(T0+2)}, 3, {v(T0+1)}")
    A(f"v_xor_b32 {v(T0)}, {v(T0)}, {v(T0+2)}")
    A(f"v_lshlrev_b32 {v(T0)}, 4, {v(T0)}")
    A(f"v_lshl_add_u32 {v(T0)}, {v(T0+1)}, 12, {v(T0)}")
    A(f"v_and_b32 {v(T0+1)}, 1, v0")
    A(f"v_lshl_add_u32 {v(VA)}, {v(T0+1)}, 3, {v(T0)}")
    A(f"v_xor_b32 {v(VA)}, 0x10000, {v(VA)}")
    A(f"v_mov_b32 {v(LS0)}, 0\nv_mov_b32 {v(LS1)}, 0")
    A(f"s_lshl_b32 s32, s28, 17\ns_add_u32 s32, s32, {L.Z - 16384}")
    for par in range(2):
        A(f"s_lshl_b32 s{60+par}, s31, 15\ns_add_u32 s{60+par}, s{60+par}, {L.W2 + (32+par)*16384}")
    e1 = G4(A, vm, lk, NB=10, wn=2, KS=16, kps=2, NS=8, WD=16, s_act=32, blk_stride=16384, s_w=[60, 61],
            acc0=16, fr0=256 + 128, w0=256, vl16=1, vt=116, st=50, lds0=0, swap=True, dfl=LL, stamps=('E0', 'E1', 'Ex'), halo=True)
    e1.setup()
    for n in range(32):
        j, ka = n >> 1, n & 1
        if ka == 0:
            c_ = vm.count_for(("Q", j))
            sc.wait(("K", n + 1), f"vmcnt({c_}) " if c_ is not None else "")
        for qa in range(2):
            sr = Sreg(0, ka, qa)
            c = "0" if j == 0 else v(sr, 4)
            A(f"{MF} {v(sr,4)}, {v(ring(n),4)}, {R(Qr(qa,j),4)}, {c}")
        if n + 8 < 32:
            sc.issue(("K", n + 8), kread(n + 8, 0))
        else:
            sc.issue(("K", n + 8 - 32), kread(n + 8 - 32, 1))
    m.signal(F_Z, "sZ", T0 + 4)
    for qa in range(2):
        rowmax(A, 0, qa, T0 + qa, T0 + 2)
        for ka in range(2):
            for r in range(4):
                x = Sreg(0, ka, qa) + r
                A(f"v_sub_f32 {v(x)}, {v(x)}, {v(T0+qa)}")
        for r in range(4):
            A(f"v_sub_f32 {v(NEGM+4*qa+r)}, 0, {v(T0+qa)}")
    sc.wait(("K", 1))
    q0 = list(sc.q)
    A.stamp('loop')
    half(A, sc, 0, False, "F0", ["s_sub_u32 s44, s44, 1", "s_nop 0", "s_branch LOOP1"], first=True)
    assert sc.q == q0, (sc.q, q0)
    A(".p2align 6")
    A("LOOP:")
    half(A, sc, 0, False, "L0", ["s_sub_u32 s44, s44, 1", "s_cmp_eq_u32 s44, 1", "s_cbranch_scc1 TAIL1"])
    assert sc.q == q0
    A("LOOP1:")
    half(A, sc, 1, False, "L1", ["s_sub_u32 s44, s44, 1", "s_cmp_lg_u32 s44, 1", "s_cbranch_scc1 LOOP"])
    assert sc.q == q0
    def tailfill():
        vm.q = ["KVX"] * 8
        m.gpoll_issue(120)
        return [lambda: m.pf("PF_ATT_END", "PF_F_END", 114)] + ["s_nop 0"] * 6 + [lambda: m.gpoll_check(2, 120), lambda: m.poll_issue(F_Z, True, 120)] + e1.wlist(16)
    half(A, sc, 0, True, "T0", tailfill=tailfill())
    A("s_branch EPI")
    for t in SPINS:
        spin(A, t)
    A("TAIL1:")
    half(A, sc, 1, True, "T1", tailfill=tailfill())
    A("EPI:")
    A.stamp('epi')
    m.poll_check(F_Z, True, 120)
    A("s_barrier")
    dl = e1.dlist()
    def drip(n):
        for _ in range(n):
            if dl:
                dl.pop(0)()
    drip(22)
    for qa in range(2):
        x = LS0 + qa
        for lv in (16, 32):
            A(f"v_mov_b32 {v(T0)}, {v(x)}")
            A(f"v_permlane{lv}_swap_b32 {v(x)}, {v(T0)}")
            A(f"v_add_f32 {v(x)}, {v(x)}, {v(T0)}")
    A(f"v_and_b32 {v(T0)}, 16, v0")
    A(f"v_cmp_eq_u32 vcc, 0, {v(T0)}")
    A(f"v_cndmask_b32 {v(T0+1)}, {v(NEGM+4)}, {v(NEGM)}, vcc")
    A(f"v_cndmask_b32 {v(T0+2)}, {v(LS1)}, {v(LS0)}, vcc")
    A(f"v_sub_f32 {v(T0+1)}, 0, {v(T0+1)}")
    A(f"v_cmp_gt_u32 vcc, 32, v0")
    A(f"v_cndmask_b32 v112, {v(T0+2)}, {v(T0+1)}, vcc")
    A(f"v_lshlrev_b32 v113, 2, v0")
    A("s_lshl_b32 s33, s28, 2\ns_add_u32 s33, s33, s3")
    A(f"s_lshl_b32 s35, s30, 8\ns_add_u32 s35, s35, s33\ns_lshl_b32 s35, s35, 8\ns_add_u32 s35, s35, {L.PML}")
    A(f"s_lshl_b32 s36, s30, 23\ns_lshl_b32 s37, s33, 15\ns_add_u32 s36, s36, s37\ns_add_u32 s36, s36, {L.PO}\ns_add_u32 s37, s36, 16384")
    pst = [("sP", f"buffer_store_dword v112, v113, s[20:23], s35 offen{SL}")]
    for f in range(16):
        for qa in range(2):
            d = 128 + 8 * f + 4 * qa
            t = 20 + 8 * qa
            src = []
            for u in range(2):
                o = Or(2 * f + u, qa)
                if o < 256:
                    src += [o, o + 2]
                else:
                    for r in range(4):
                        A(f"v_accvgpr_read_b32 {v(t+4*u+r)}, {R(o+r)}")
                    src += [t + 4 * u, t + 2 + 4 * u]
            for i in range(4):
                A(f"v_cvt_pk_bf16_f32 {v(d+i)}, {v(src[i])}, {v(src[i]+1)}")
            drip(2 if f < 8 else 3)
            pst.append(("sP", f"buffer_store_dwordx4 {v(d,4)}, v1, s[20:23], s{36+qa} offen offset:{(f&3)*1024}{SL}"))
        if f % 4 == 3:
            pst.append((None, "s_add_u32 s36, s36, 4096"))
            pst.append((None, "s_add_u32 s37, s37, 4096"))
    drip(100)
    A("PF_ATT_END:")
    A.stamp('D')
    TA = 256 + 208
    CV = 8
    for t_, x in c4_tload(A, vm, TA, 64):
        vm.issue(t_, x)
    c4_addr(A, 0, CV)
    def extraE(k):
        out = pst[:4]
        del pst[:4]
        return out
    e1.run(extraE)
    assert not pst

    def conv_store(gg, half_, TA_, pre, tag):
        for b in range(10):
            for u in range(2):
                q = gg.accs[(b, u)]
                for i in range(2):
                    A(f"v_cvt_pk_bf16_f32 {v(q+i)}, {v(q+2*i)}, {v(q+2*i+1)}")
                c4_write(lk, CV, q, b, u)
            if b % 4 == 3:
                lk.wait("wr")
        vm.wait("CW")
        if pre:
            pre()
        c4_core(A, lk, TA_, 128, 16, CV, 80, True, None)
        A(f"s_lshl_b32 s40, s28, 18\ns_lshl_b32 s41, s31, 10\ns_add_u32 s40, s40, s41\ns_add_u32 s40, s40, {L.MM + half_*16384}")
        for b in range(8):
            lk.wait(("O", b))
            vm.issue(tag, f"buffer_store_dwordx4 {v(80+4*b,4)}, v1, s[20:23], s40 offen{SL}")
            A("s_add_u32 s40, s40, 32768")

    conv_store(e1, 1, TA, lambda: m.signal(F_P, "sP", 12), "sML")
    m.poll_issue(F_P, False, 13)
    A.stamp('E2')
    A(f"s_lshl_b32 s32, s28, 18\ns_add_u32 s32, s32, {L.MM + 16384}")
    for par in range(2):
        A(f"s_lshl_b32 s{60+par}, s31, 16\ns_add_u32 s{60+par}, s{60+par}, {L.W3 + par*32768 + 16384}")
    gG = G4(A, vm, lk, NB=8, wn=2, KS=16, kps=2, NS=8, WD=8, s_act=32, blk_stride=32768, s_w=[60, 61],
            acc0=256 + 192, fr0=128, w0=256, vl16=1, vt=116, st=50, lds0=0, dfl=LL, stamps=('G0', 'G1', 'Gx'))
    gG.setup()
    for x in gG.wlist(8):
        x()
    m.pf("PF_F_END", "PF_END", 14)
    A("s_lshl_b32 s33, s28, 2\ns_add_u32 s33, s33, s30")
    A("v_and_b32 v4, 15, v0\nv_lshlrev_b32 v4, 2, v4")
    A(f"s_lshl_b32 s34, s33, 8\ns_lshr_b32 s35, s3, 1\ns_lshl_b32 s35, s35, 6\ns_add_u32 s34, s34, s35\ns_add_u32 s34, s34, {L.PML}")
    A("s_lshl_b32 s48, s33, 15\ns_lshl_b32 s35, s3, 13\ns_add_u32 s48, s48, s35")
    for sp in range(4):
        A(f"s_add_u32 s{62+2*sp}, s48, {L.PO + sp*(8<<20)}\ns_add_u32 s{63+2*sp}, s{62+2*sp}, 4096")
    m.signal(F_ML, "sML", 12)
    m.poll_check(F_P, False, 13)
    for sp in range(4):
        vm.issue("ML", f"buffer_load_dword {v(64+sp)}, v4, s[20:23], s34 offen{LL}")
        vm.issue("ML", f"buffer_load_dword {v(68+sp)}, v4, s[20:23], s34 offen offset:128{LL}")
        A("s_add_u32 s34, s34, 65536")
    def pload(f):
        for sp in range(4):
            vm.issue(("P", f), f"buffer_load_dwordx4 {v(128+16*f+4*sp,4)}, v1, s[20:23], s{62+2*sp+(f>>2)} offen offset:{(f&3)*1024}{LL}")
    for f in range(8):
        pload(f)
        if f == 5:
            m.poll_issue(F_ML, False, 13)
    vm.wait("ML")
    A("v_max3_f32 v24, v64, v65, v66\nv_max_f32 v24, v24, v67")
    for sp in range(4):
        A(f"v_sub_f32 {v(16+sp)}, {v(64+sp)}, v24")
    for sp in range(4):
        A(f"v_exp_f32 {v(16+sp)}, {v(16+sp)}")
    A("v_mul_f32 v25, v16, v68\nv_fmac_f32 v25, v17, v69\nv_fmac_f32 v25, v18, v70\nv_fmac_f32 v25, v19, v71")
    A("v_rcp_f32 v25, v25")
    A("s_and_b32 s34, s33, 127\ns_cmp_lt_u32 s34, 125\ns_cselect_b32 s34, 1.0, 0")
    A("v_mul_f32 v25, s34, v25")
    wr = [26, 28, 30, 32]
    for sp in range(4):
        A(f"v_mul_f32 {v(wr[sp])}, {v(16+sp)}, v25")
    A(f"s_add_u32 s34, s48, {L.AT}\ns_add_u32 s35, s34, 4096")
    for f in range(8):
        vm.wait(("P", f))
        acc, t, o = 40, 48, 80 + 4 * f
        for sp in range(4):
            raw = 128 + 16 * f + 4 * sp
            for e in range(4):
                A(f"v_lshlrev_b32 {v(t+2*e)}, 16, {v(raw+e)}\nv_and_b32 {v(t+2*e+1)}, s49, {v(raw+e)}")
            for e in range(4):
                if sp == 0:
                    A(f"v_pk_mul_f32 {v(acc+2*e,2)}, {v(t+2*e,2)}, {v(wr[sp],2)} op_sel_hi:[1,0]")
                else:
                    A(f"v_pk_fma_f32 {v(acc+2*e,2)}, {v(t+2*e,2)}, {v(wr[sp],2)}, {v(acc+2*e,2)} op_sel_hi:[1,0,1]")
        for e in range(4):
            A(f"v_cvt_pk_bf16_f32 {v(o+e)}, {v(acc+2*e)}, {v(acc+2*e+1)}")
        vm.issue("sAT", f"buffer_store_dwordx4 {v(o,4)}, v1, s[20:23], s{34+(f>>2)} offen offset:{(f&3)*1024}{SL if 'atl' in EXP else SC}")
        if f == 5:
            m.poll_check(F_ML, False, 13)
            A("s_barrier")
            for x in gG.dlist():
                x()
    A("PF_F_END:")
    A.stamp('F')
    TA = 208
    A(f"s_lshl_b32 s32, s28, 17\ns_add_u32 s32, s32, {L.AT - 16384}")
    for par in range(2):
        A(f"s_lshl_b32 s{70+par}, s31, 15\ns_add_u32 s{70+par}, s{70+par}, {L.W2 + par*16384}")
    gH = G4(A, vm, lk, NB=10, wn=2, KS=16, kps=2, NS=4, WD=16, s_act=32, blk_stride=16384, s_w=[70, 71],
            acc0=16, fr0=128, w0=256 + 64, vl16=1, vt=120, st=62, lds0=0, swap=True, dfl=LL, stamps=('H0', 'H1', 'Hx'), halo=True)
    gH.setup()
    hw = gH.wlist(16)
    tl = c4_tload(A, vm, TA, 32)
    def extraG(k):
        out = hw[3 * k: 3 * k + 3] if k < 12 else []
        if 2 <= k < 12:
            out = out + [tl[k - 2]]
        if k == 2:
            out = [lambda: m.signal(F_AT, "sAT", 12)] + out
        if k == 11:
            out = out + [lambda: m.poll_issue(F_AT, True, 13)]
        if k == 13:
            out = out + [lambda: m.poll_check(F_AT, True, 13)] + gH.dlist()
        return out
    gG.run(extraG)
    A.stamp('G')
    A(f"s_lshl_b32 s32, s28, 18\ns_add_u32 s32, s32, {L.MM}")
    for par in range(2):
        A(f"s_lshl_b32 s{60+par}, s31, 16\ns_add_u32 s{60+par}, s{60+par}, {L.W3 + par*32768}")
    gI = G4(A, vm, lk, NB=8, wn=2, KS=16, kps=2, NS=8, WD=8, s_act=32, blk_stride=32768, s_w=[60, 61],
            acc0=256 + 192, fr0=128, w0=256, vl16=1, vt=116, st=50, lds0=0, dfl=LL, stamps=('I0', 'I1', 'Ix'))
    gI.setup()
    iw = gI.wlist(8)
    gH.run(lambda k: iw[2 * k: 2 * k + 2])
    c4_addr(A, 98304, CV)
    conv_store(gH, 0, TA, None, "sMG")
    A.stamp('H2')
    m.signal(F_MG, "sMG", 12)
    m.poll_issue(F_MG, False, 13)
    XR = 208
    A("v_and_b32 v7, 15, v0\nv_lshlrev_b32 v7, 10, v7\nv_lshrrev_b32 v6, 4, v0\nv_lshl_add_u32 v7, v6, 4, v7")
    A("s_lshr_b32 s33, s28, 5\ns_and_b32 s34, s28, 31\ns_lshl_b32 s34, s34, 7")
    A(f"s_mul_i32 s33, s33, {L.T}\ns_lshl_b32 s35, s31, 6")
    for b in range(8):
        A(f"s_add_u32 s36, s34, {16*b}\ns_add_u32 s37, s36, s33\ns_lshl_b32 s37, s37, 10\ns_add_u32 s37, s37, s35")
        A(f"s_cmp_lt_u32 s36, {L.T}\ns_cselect_b32 s{62+b}, s37, 0x40000000")
    m.poll_check(F_MG, False, 13)
    A("s_barrier")
    for f in gI.dlist():
        f()
    def extraI(k):
        if 2 <= k < 10:
            b = k - 2
            return [(("X", b), f"buffer_load_dwordx4 {v(XR+4*b,4)}, v7, s[8:11], s{62+b} offen")]
        return []
    gI.run(extraI, first_c=None)
    for b in range(8):
        vm.wait(("X", b))
        q = gI.accs[(b, 0)]
        x = XR + 4 * b
        t = 16 + 16 * (b & 1)
        for i in range(8):
            A(f"v_accvgpr_read_b32 {v(t+8+i)}, {R(q+i)}")
        for i in range(4):
            A(f"v_lshlrev_b32 {v(t+2*i)}, 16, {v(x+i)}\nv_and_b32 {v(t+2*i+1)}, s49, {v(x+i)}")
        for i in range(4):
            A(f"v_pk_add_f32 {v(t+2*i,2)}, {v(t+8+2*i,2)}, {v(t+2*i,2)}")
        for i in range(4):
            A(f"v_cvt_pk_bf16_f32 {v(x+i)}, {v(t+2*i)}, {v(t+2*i+1)}")
        vm.issue("S", f"buffer_store_dwordx4 {v(x,4)}, v7, s[12:15], s{62+b} offen")
    A.endpgm()
    A("PF_END:")
    rare(A, 0)
    rare(A, 1)
    assert A.check_branches() == 0
    return name, A.text() + "\n" + kdesc(name, 256, 256, 102), f"; @launch kernel={name} grid=(256,1,1) block=(256,1,1) lds=163840"
```

```python
from asmlib import *
import layout as L
from k0 import srd, xlane_sum, chan_lane
from g4 import *
import math
SC = " sc1"
OOB = 0x7f000000
import os
PFPOS = int(os.environ.get('PFPOS', '0'))
NDRIP0 = int(os.environ.get('NDRIP0', '0'))

def ldptr(A, dst, idx):
    A(f"s_load_dwordx2 s[{dst}:{dst+1}], s[0:1], {idx*8}")

def fix_srd(A, d, nbytes):
    A(f"s_and_b32 s{d+1}, s{d+1}, 0xffff\ns_mov_b32 s{d+2}, {nbytes}\ns_mov_b32 s{d+3}, 0x20000")

def ww_mm(A, AF, BF, AC, red, t0):
    for ks in range(4):
        for a in range(2):
            for b in range(2):
                ac = AC + (b * 2 + a) * 4
                A(f"{MF} {v(ac,4)}, {v(AF+(a*4+ks)*4,4)}, {v(BF+(b*4+ks)*4,4)}, {'0' if ks == 0 else v(ac,4)}")
    A(f"s_lshl_b32 s33, s3, 12\ns_add_u32 s33, s33, {red}\nv_add_u32 {v(t0)}, s33, v1")
    A(f"s_and_b32 s33, s3, 1\ns_lshl_b32 s33, s33, 11\ns_add_u32 s33, s33, {red}\nv_add_u32 {v(t0+1)}, s33, v1")
    for i in range(4):
        A(f"ds_write_b128 {v(t0)}, {v(AC+4*i,4)} offset:{i*1024}")
    A("s_waitcnt lgkmcnt(0)")
    A("s_barrier")
    for src in range(4):
        for a in range(2):
            A(f"ds_read_b128 {v(AF+(src*2+a)*4,4)}, {v(t0+1)} offset:{src*4096+a*1024}")

def ww_fin(A, vm, AF, BF, scale, base, tag):
    A(f"s_lshr_b32 s33, s2, 4\ns_lshl_b32 s33, s33, 1\ns_and_b32 s34, s3, 1\ns_add_u32 s33, s33, s34\ns_lshl_b32 s33, s33, 14")
    A(f"s_and_b32 s34, s2, 15\ns_lshl_b32 s34, s34, 10\ns_add_u32 s33, s33, s34\ns_add_u32 s33, s33, {base}")
    A("s_waitcnt lgkmcnt(0)")
    for src in range(1, 4):
        for i in range(4):
            A(f"v_pk_add_f32 {v(AF+2*i,2)}, {v(AF+2*i,2)}, {v(AF+src*8+2*i,2)}")
    if scale:
        for i in range(8):
            A(f"v_mul_f32 {v(AF+i)}, {hex(f2u(scale))}, {v(AF+i)}")
    for i in range(4):
        A(f"v_cvt_pk_bf16_f32 {v(BF+i)}, {v(AF+2*i)}, {v(AF+2*i+1)}")
    vm.issue(tag, f"buffer_store_dwordx4 {v(BF,4)}, v1, s[20:23], s33 offen{SC}")

def swz_voffs(A, d, t):
    A(f"v_lshrrev_b32 {v(t)}, 4, v0\nv_and_b32 {v(t+1)}, 15, v0\nv_mul_u32_u24 {v(t+2)}, 3072, {v(t)}")
    for c in range(4):
        A(f"v_add_u32 {v(d+c)}, {4*c}, {v(t)}\nv_xor_b32 {v(d+c)}, {v(d+c)}, {v(t+1)}\nv_lshl_add_u32 {v(d+c)}, {v(d+c)}, 4, {v(t+2)}")

def phase_p0(m, gu):
    A, vm, lk = m.A, m.vm, m.lk
    A.stamp("a0")
    gu.setup()
    A("s_and_b32 s32, s28, 31\ns_lshl_b32 s32, s32, 7\ns_lshl_b32 s33, s31, 3\ns_add_u32 s32, s32, s33")
    A(f"s_lshr_b32 s33, s28, 5\ns_mul_i32 s33, s33, {L.T}\ns_add_u32 s33, s33, s32\ns_lshl_b32 s33, s33, 10")
    A(f"s_cmp_lt_u32 s32, {L.T}\ns_cselect_b32 s33, s33, {OOB}")
    P, Uq = 16, 48
    for jj in range(8):
        vm.issue(("x", jj), f"buffer_load_dwordx4 {v(P+4*jj,4)}, v2, s[8:11], s33 offen offset:{jj*128}")
    A.stamp("a1")
    TL = int(os.environ.get('TLB', '0'))
    if TL:
        A(f"s_lshl_b32 s33, s3, {TL+6}\nv_lshlrev_b32 v142, {TL}, v0")
        vm.issue("pf", "buffer_load_dword v143, v142, s[20:23], s33 offen sc1")
        vm.issue("pf", "buffer_load_dword v143, v142, s[12:15], s33 offen sc1")
    gu.skew()
    QKB = GU.SLOT
    RED = 131072
    swz_voffs(A, 8, 12)
    A(f"s_and_b32 s34, s2, 15\ns_lshr_b32 s35, s2, 4\ns_lshl_b32 s37, s3, 8\ns_mul_i32 s38, s34, {32*3072}\ns_add_u32 s38, s38, s37")
    A(f"s_mul_i32 s39, s35, {32*3072}\ns_add_u32 s39, s39, s37\ns_add_u32 s39, s39, 1024")
    A(f"s_lshl_b32 s36, s3, 14\ns_add_u32 s36, s36, {QKB}")
    dl = []
    def wq(i):
        r = 38 + (i >> 3)
        A(f"s_add_u32 m0, s36, {i*1024}\ns_nop 0")
        vm.issue("wq", f"buffer_load_dwordx4 {v(8+(i&3))}, s[44:47], s{r} offen lds")
        A(f"s_add_u32 s{r}, s{r}, {4*3072}")
    for i in range(16):
        dl.append(lambda i=i: wq(i))
    A("s_cmp_lt_u32 s2, 32")
    A("s_cselect_b32 s68, s60, s62\ns_cselect_b32 s69, s61, s63\ns_cselect_b32 s37, 10, 11\ns_cselect_b32 s32, 0, 32")
    A("s_and_b32 s69, s69, 0xffff\ns_sub_u32 s32, s2, s32\ns_lshl_b32 s33, 1, s37\ns_mul_i32 s70, s33, 31\ns_mov_b32 s71, 0x20000")
    A("s_cmp_lt_u32 s2, 96\ns_cselect_b32 s70, s70, 0")
    A("v_lshrrev_b32 v112, 2, v0\nv_and_b32 v113, 3, v0")
    chan_lane(A, 114, 112, 115)
    A("s_lshr_b32 s33, s32, 1\ns_lshl_b32 s33, s33, 5\ns_and_b32 s34, s32, 1\ns_lshl_b32 s34, s34, 2\ns_add_u32 s33, s33, s34")
    A("v_add_u32 v114, s33, v114\nv_lshlrev_b32 v114, 1, v114")
    A("v_bfrev_b32 v116, -2")
    A("s_lshl_b32 s33, s3, 3\nv_sub_u32 v115, s33, v113")
    TP = 120
    for e in range(12):
        if e < 8:
            A(f"v_add_u32 v117, {e-1}, v115")
        else:
            A(f"v_sub_u32 v117, {23+e}, v113")
        A("v_cmp_gt_i32 vcc, 0, v117\nv_lshlrev_b32 v117, s37, v117\nv_add_u32 v117, v117, v114")
        A(f"v_cndmask_b32 {v(TP+e)}, v117, v116, vcc")
        dl.append(lambda e=e: vm.issue("tp", f"buffer_load_ushort {v(TP+e)}, {v(TP+e)}, s[68:71], 0 offen"))
    def drip(n=1):
        for _ in range(n):
            if dl:
                dl.pop(0)()
    A(f"v_mov_b32 v118, 0\nv_mul_u32_u24 v119, {L.FK}, v0\nv_cmp_gt_u32 vcc, 4, v0\ns_nop 1\nv_cndmask_b32 v119, v116, v119, vcc")
    A(f"s_mul_i32 s32, s30, {4*L.FK}\ns_add_u32 s32, s32, s24")
    dl.append(lambda: vm.issue("p0s", f"buffer_store_dword v118, v119, s[20:23], s32 offen{SC}"))
    gu.setup2()
    A(f"s_lshl_b32 s33, s28, 7\ns_lshl_b32 s34, s31, 3\ns_add_u32 s33, s33, s34")
    A(f"s_lshl_b32 s35, s33, 3\ns_add_u32 s35, s35, {L.RS}")
    A(f"s_lshr_b32 s34, s33, 4\ns_lshl_b32 s34, s34, 14\ns_and_b32 s33, s33, 15\ns_lshl_b32 s33, s33, 4\ns_add_u32 s34, s34, s33\ns_add_u32 s34, s34, {L.XA}")
    A("v_lshlrev_b32 v7, 4, v4\nv_lshl_add_u32 v7, v5, 8, v7")
    A("v_lshlrev_b32 v6, 3, v0\nv_cmp_gt_u32 vcc, 8, v0\ns_nop 1\nv_cndmask_b32 v6, v116, v6, vcc")
    A.stamp("a2")
    if PFPOS == 0: m.pf("PF_P0", "PF_U_END", 140)
    gu.issue_stage()
    if PFPOS == 1: m.pf("PF_P0", "PF_U_END", 140)
    A.stamp("i0")
    drip(NDRIP0)
    for jj in range(8):
        vm.wait(("x", jj))
        for i in range(4):
            r = P + 4 * jj + i
            u = Uq + 2 * (4 * jj + i)
            A(f"v_lshlrev_b32 {v(u)}, 16, {v(r)}")
            A(f"v_and_b32 {v(u+1)}, s49, {v(r)}")
        drip()
    A.stamp("x")
    acc = 132
    A(f"v_pk_add_f32 {v(acc,2)}, {v(Uq,2)}, {v(Uq+2,2)}")
    A(f"v_pk_add_f32 {v(acc+2,2)}, {v(Uq+4,2)}, {v(Uq+6,2)}")
    for i in range(4, 32):
        a = acc + 2 * (i & 1)
        A(f"v_pk_add_f32 {v(a,2)}, {v(a,2)}, {v(Uq+2*i,2)}")
        if i % 4 == 0: drip()
    A(f"v_pk_add_f32 {v(acc,2)}, {v(acc,2)}, {v(acc+2,2)}")
    A(f"v_add_f32 {v(acc)}, {v(acc)}, {v(acc+1)}")
    xlane_sum(A, acc, acc + 1, (8, 16, 32))
    A(f"v_mul_f32 {v(acc)}, {hex(f2u(-1.0/512))}, {v(acc)}")
    for i in range(32):
        A(f"v_pk_add_f32 {v(Uq+2*i,2)}, {v(Uq+2*i,2)}, {v(acc,2)} op_sel_hi:[1,0]")
        if i % 4 == 0: drip()
    q = 136
    A(f"v_pk_mul_f32 {v(q,2)}, {v(Uq,2)}, {v(Uq,2)}")
    A(f"v_pk_mul_f32 {v(q+2,2)}, {v(Uq+2,2)}, {v(Uq+2,2)}")
    for i in range(2, 32):
        a = q + 2 * (i & 1)
        A(f"v_pk_fma_f32 {v(a,2)}, {v(Uq+2*i,2)}, {v(Uq+2*i,2)}, {v(a,2)}")
        if i % 4 == 0: drip()
    drip(100)
    A(f"v_pk_add_f32 {v(q,2)}, {v(q,2)}, {v(q+2,2)}")
    A(f"v_add_f32 {v(q)}, {v(q)}, {v(q+1)}")
    xlane_sum(A, q, q + 1, (8, 16, 32))
    A(f"v_mov_b32 {v(q+1)}, {hex(f2u(1e-5))}")
    A(f"v_fmac_f32 {v(q+1)}, {hex(f2u(1.0/512))}, {v(q)}")
    A(f"v_rsq_f32 {v(q)}, {v(q+1)}")
    A(f"v_mov_b32 {v(q+1)}, {v(acc)}")
    vm.issue("p0s", f"buffer_store_dwordx2 {v(q,2)}, v6, s[20:23], s35 offen{SC}")
    for jj in range(8):
        for i in range(4):
            u = Uq + 2 * (4 * jj + i)
            A(f"v_pk_mul_f32 {v(u,2)}, {v(u,2)}, {v(q,2)} op_sel_hi:[1,0]")
        for i in range(4):
            u = Uq + 2 * (4 * jj + i)
            A(f"v_cvt_pk_bf16_f32 {v(P+4*jj+i)}, {v(u)}, {v(u+1)}")
        if jj % 2 == 0 and jj:
            A("s_add_u32 s34, s34, 4096")
        vm.issue("p0s", f"buffer_store_dwordx4 {v(P+4*jj,4)}, v7, s[20:23], s34 offen offset:{(jj&1)*2048}{SC}")
    A.stamp("ln")
    AF, BF, AC = 48, 80, 144
    A("v_and_b32 v14, 15, v0")
    chan_lane(A, 12, 14, 13)
    A("v_and_b32 v13, 15, v12\nv_lshrrev_b32 v14, 4, v0\nv_xor_b32 v13, v13, v14\nv_lshlrev_b32 v13, 4, v13\nv_lshl_add_u32 v13, v12, 8, v13\nv_add_u32 v160, s36, v13")
    for c in range(1, 4):
        A(f"v_xor_b32 {v(160+c)}, {64*c}, v160")
    vm.wait("tp")
    A.stamp("tp")
    for ks in range(4):
        for u in range(2):
            A(f"ds_read_b128 {v(AF+(u*4+ks)*4,4)}, {v(160+(ks^u))} offset:{1024*u}")
            A(f"ds_read_b128 {v(BF+(u*4+ks)*4,4)}, {v(160+(ks^u))} offset:{8192+1024*u}")
        if ks == 1:
            A("s_waitcnt lgkmcnt(0)")
    for i in range(6):
        A(f"v_lshl_or_b32 {v(TP+i)}, {v(TP+2*i+1)}, 16, {v(TP+2*i)}")
    A("v_and_b32 v117, 1, v113\nv_lshlrev_b32 v117, 4, v117\nv_mov_b32 v118, 0x3f80\nv_lshlrev_b32 v118, v117, v118")
    A("v_cmp_gt_u32 vcc, 2, v113\ns_nop 1")
    A(f"v_cndmask_b32 {v(TP+6)}, 0, v118, vcc\nv_cndmask_b32 {v(TP+7)}, v118, 0, vcc")
    A(f"s_mul_i32 s33, s2, 5120\ns_add_u32 s33, s33, {L.TT}\ns_cmp_lt_u32 s2, 96\ns_cselect_b32 s33, s33, {OOB}")
    A("s_add_u32 s34, s33, 4096\ns_lshl_b32 s35, s3, 10\ns_add_u32 s33, s33, s35")
    vm.issue("p0s", f"buffer_store_dwordx4 {v(TP,4)}, v1, s[20:23], s33 offen{SC}")
    vm.issue("p0s", f"buffer_store_dwordx4 {v(TP+4,4)}, v1, s[20:23], s34 offen{SC}")
    A("s_waitcnt lgkmcnt(0)")
    c = 512 ** -0.5 * math.log2(math.e)
    ww_mm(A, AF, BF, AC, RED, 12)
    A.stamp("b0")
    gu.issue_stage()
    ww_fin(A, vm, AF, BF, c, L.W1, "p0s")
    A.stamp("b1")
    A("s_barrier")
    gu.issue_stage()
    A.stamp("p0c")


def late_issue(m, t):
    A, vm = m.A, m.vm
    ldptr(A, 44, 1); ldptr(A, 40, 2); ldptr(A, 52, 7); ldptr(A, 56, 5)
    swz_voffs(A, t, t + 4)
    A(f"v_lshrrev_b32 {v(t+4)}, 2, v0\nv_and_b32 {v(t+5)}, 3, v0\nv_lshlrev_b32 {v(t+4)}, 10, {v(t+4)}\nv_lshl_add_u32 {v(t+4)}, {v(t+5)}, 4, {v(t+4)}")
    A(f"v_lshrrev_b32 {v(t+5)}, 3, v0\nv_and_b32 {v(t+6)}, 7, v0\nv_lshlrev_b32 {v(t+5)}, 10, {v(t+5)}\nv_lshl_add_u32 {v(t+5)}, {v(t+6)}, 4, {v(t+5)}")
    A("s_and_b32 s34, s2, 15\ns_lshr_b32 s38, s34, 3\ns_lshl_b32 s38, s38, 8\ns_and_b32 s39, s34, 7\ns_lshl_b32 s39, s39, 4\ns_add_u32 s38, s38, s39")
    A("s_mul_i32 s38, s38, 3072\ns_lshl_b32 s37, s3, 8\ns_add_u32 s38, s38, s37\ns_add_u32 s38, s38, 2048")
    A("s_lshr_b32 s35, s2, 4\ns_lshl_b32 s39, s3, 17\ns_lshl_b32 s35, s35, 6\ns_add_u32 s39, s39, s35")
    A("s_lshr_b32 s34, s2, 3\ns_lshl_b32 s34, s34, 5\ns_lshl_b32 s35, s3, 3\ns_add_u32 s34, s34, s35\ns_lshl_b32 s34, s34, 10\ns_and_b32 s35, s2, 7\ns_lshl_b32 s35, s35, 7\ns_add_u32 s37, s34, s35")
    A("s_lshl_b32 s36, s3, 14\ns_lshl_b32 s35, s3, 10")
    A("s_waitcnt lgkmcnt(0)")
    m.lk.q = []
    fix_srd(A, 44, 512 * 3072); fix_srd(A, 40, 0x80000); fix_srd(A, 52, 0x100000); fix_srd(A, 56, 0x80000)
    out = []
    for i in range(8):
        out.append((None, f"s_add_u32 m0, s36, {i*1024}"))
        out.append(("vo", f"buffer_load_dwordx4 {v(t+(i&3))}, s[44:47], s38 offen lds"))
        out.append((None, f"s_add_u32 s38, s38, {4*3072 if i != 3 else (128-12)*3072}"))
    for i in range(8):
        out.append((None, f"s_add_u32 m0, s36, {8192 + i*1024}"))
        out.append(("vo", f"buffer_load_dwordx4 {v(t+4)}, s[40:43], s39 offen lds"))
        out.append((None, "s_add_u32 s39, s39, 16384"))
    out.append((None, "s_add_u32 m0, s35, 65536"))
    out.append(("vo", f"buffer_load_dwordx4 {v(t+5)}, s[52:55], s37 offen lds"))
    out.append((None, f"s_add_u32 m0, s35, {65536+4096}"))
    out.append(("vo", f"buffer_load_dwordx4 {v(t+5)}, s[56:59], s37 offen lds"))
    return out


def late_compute(m, AF, BF, AC, t):
    A, vm = m.A, m.vm
    A(f"v_and_b32 {v(t+5)}, 7, v0\nv_bfe_u32 {v(t+4)}, v0, 3, 1\nv_lshl_add_u32 {v(t+4)}, {v(t+4)}, 4, {v(t+5)}\nv_lshrrev_b32 {v(t+6)}, 4, v0")
    A(f"v_xor_b32 {v(t+5)}, {v(t+5)}, {v(t+6)}\nv_lshlrev_b32 {v(t+5)}, 4, {v(t+5)}\nv_lshl_add_u32 {v(t+5)}, {v(t+4)}, 8, {v(t+5)}")
    A(f"s_lshl_b32 s36, s3, 14\nv_add_u32 {v(t)}, s36, {v(t+5)}")
    for c_ in range(1, 4):
        A(f"v_xor_b32 {v(t+c_)}, {64*c_}, {v(t)}")
    A(f"v_bfe_u32 {v(t+4)}, v0, 2, 2\nv_lshl_add_u32 {v(t+4)}, {v(t+6)}, 3, {v(t+4)}\nv_and_b32 {v(t+5)}, 3, v0\nv_lshlrev_b32 {v(t+5)}, 4, {v(t+5)}")
    A(f"v_lshl_add_u32 {v(t+6)}, {v(t+4)}, 6, {v(t+5)}\nv_add_u32 {v(t+6)}, s36, {v(t+6)}")
    A(f"s_lshr_b32 s34, s3, 1\ns_lshl_b32 s34, s34, 6\ns_and_b32 s33, s3, 1\ns_lshl_b32 s33, s33, 3\ns_add_u32 s34, s34, s33\ns_add_u32 s34, s34, 65536")
    A(f"v_lshl_add_u32 {v(t+7)}, {v(t+4)}, 7, {v(t+5)}\nv_add_u32 {v(t+7)}, s34, {v(t+7)}")
    vm.wait("vo")
    for ks in range(4):
        for u in range(2):
            A(f"ds_read_b128 {v(AF+(u*4+ks)*4,4)}, {v(t+(ks^(2*u)))} offset:{2048*u}")
            r = BF + (u * 4 + ks) * 4
            A(f"ds_read_b64_tr_b16 {v(r,2)}, {v(t+6)} offset:{8192+ks*2048+8*u}")
            A(f"ds_read_b64_tr_b16 {v(r+2,2)}, {v(t+6)} offset:{8192+ks*2048+8*u+256}")
        if ks & 1:
            A("s_waitcnt lgkmcnt(0)")
    ww_mm(A, AF, BF, AC, 73728, t)
    TR = BF + 8
    for k in range(2):
        A(f"ds_read_b64_tr_b16 {v(TR+4*k,2)}, {v(t+7)} offset:{k*4096}")
        A(f"ds_read_b64_tr_b16 {v(TR+4*k+2,2)}, {v(t+7)} offset:{k*4096+512}")
    ww_fin(A, vm, AF, BF, None, L.W2, "vos")
    A(f"s_and_b32 s35, s2, 7\ns_lshl_b32 s35, s35, 2\ns_add_u32 s35, s35, s3\ns_lshr_b32 s33, s2, 3\ns_lshl_b32 s33, s33, 10")
    A(f"s_lshl_b32 s32, s35, 15\ns_add_u32 s32, s32, s33\ns_add_u32 s32, s32, {L.W3}")
    vm.issue("vos", f"buffer_store_dwordx4 {v(TR,4)}, v1, s[20:23], s32 offen{SC}")
    A(f"s_lshl_b32 s32, s35, 14\ns_add_u32 s32, s32, s33\ns_add_u32 s32, s32, {L.W2 + 32*16384}\ns_cmp_lt_u32 s2, 128\ns_cselect_b32 s32, s32, {OOB}")
    vm.issue("vos", f"buffer_store_dwordx4 {v(TR+4,4)}, v1, s[20:23], s32 offen{SC}")
    A.stamp("vo")
```

```python
import re

TRANS = ("v_exp_f32", "v_log_f32", "v_rcp_f32", "v_rsq_f32", "v_sqrt_f32", "v_sin_f32", "v_cos_f32")

_reg_re = re.compile(r"^(-|abs\(|\|)?([vas])(\d+)\)?\|?$")
_rng_re = re.compile(r"^(-|abs\(|\|)?([vas])\[(\d+):(\d+)\]\)?\|?$")


def regs_of(op):
    op = op.strip()
    m = _reg_re.match(op)
    if m:
        return [(m.group(2), int(m.group(3)))]
    m = _rng_re.match(op)
    if m:
        return [(m.group(2), i) for i in range(int(m.group(3)), int(m.group(4)) + 1)]
    if op == "vcc":
        return [("s", "vcc")]
    if op == "exec":
        return [("s", "exec")]
    if op == "m0":
        return [("s", "m0")]
    return []


def split_ops(s):
    out, cur, depth = [], "", 0
    for ch in s:
        if ch == "[":
            depth += 1
        if ch == "]":
            depth -= 1
        if ch == "," and depth == 0:
            out.append(cur.strip())
            cur = ""
        else:
            cur += ch
    if cur.strip():
        out.append(cur.strip())
    return out


class Ins:
    __slots__ = ("text", "mn", "cls", "w", "r", "ws", "passes", "srcc", "dst", "ab", "data", "lds", "dpp")

    def __init__(self, text):
        self.text = text
        t = text.split(";")[0].strip()
        self.w, self.r = set(), set()
        self.ws = 1
        self.passes = 0
        self.srcc, self.dst, self.ab, self.data = [], [], [], []
        self.lds = False
        self.dpp = False
        if not t or t.endswith(":") or t.startswith("."):
            self.mn, self.cls, self.ws = "", "label", 0
            return
        parts = t.split(None, 1)
        mn = parts[0]
        self.mn = mn
        rest = parts[1] if len(parts) > 1 else ""
        ops = split_ops(rest)
        mods = ""
        if ops:
            sp = ops[-1].split(None, 1)
            if len(sp) > 1 and not ops[-1].startswith("abs("):
                ops[-1], mods = sp[0], sp[1]
        R = [regs_of(o) for o in ops]
        if mn == "s_nop":
            self.cls, self.ws = "nop", int(ops[0], 0) + 1
        elif mn.startswith("v_mfma"):
            self.cls = "mfma"
            self.passes = 8 if "32x32" in mn else (2 if "4x4x4" in mn else 4)
            self.dst, self.ab, self.srcc = R[0], R[1] + R[2], R[3]
            self.w |= set(R[0])
            self.r |= set(R[1] + R[2] + R[3])
        elif mn.startswith("v_"):
            self.cls = "trans" if mn.replace("_e32", "").replace("_e64", "") in TRANS else "valu"
            if "dpp" in mn or "row_" in mods or "quad_perm" in mods:
                self.dpp = True
            if mn.startswith("v_cmp"):
                self.w |= set(R[0])
                for x in R[1:]:
                    self.r |= set(x)
            elif mn.startswith("v_permlane") and "swap" in mn:
                self.w |= set(R[0] + R[1])
                self.r |= set(R[0] + R[1])
            elif mn.startswith(("v_add_co", "v_sub_co", "v_addc_co", "v_subb_co")):
                self.w |= set(R[0] + R[1])
                for x in R[2:]:
                    self.r |= set(x)
            else:
                self.w |= set(R[0])
                for x in R[1:]:
                    self.r |= set(x)
                if mn.startswith(("v_fmac", "v_dot2c", "v_pk_fmac", "v_writelane")) or self.dpp:
                    self.r |= set(R[0])
                if mn.startswith("v_cndmask") and len(ops) == 3:
                    self.r.add(("s", "vcc"))
        elif mn.startswith("ds_"):
            self.cls = "ds"
            if mn.startswith(("ds_read", "ds_bpermute", "ds_permute", "ds_swizzle")):
                self.w |= set(R[0])
                for x in R[1:]:
                    self.r |= set(x)
            else:
                for x in R:
                    self.r |= set(x)
        elif mn.startswith(("buffer_", "global_")):
            self.cls = "vmem"
            if " lds" in (" " + mods) :
                self.lds = True
                for x in R:
                    self.r |= set(x)
                self.r.add(("s", "m0"))
            elif "load" in mn:
                self.w |= set(R[0])
                for x in R[1:]:
                    self.r |= set(x)
                if "d16" in mn:
                    self.r |= set(R[0])
            else:
                for x in R:
                    self.r |= set(x)
                d = R[0] if mn.startswith("buffer_") else R[1]
                if mn.endswith(("x3", "x4")):
                    self.data = d
        elif mn.startswith("s_"):
            self.cls = "salu"
            if mn.startswith(("s_cmp", "s_cbranch", "s_branch", "s_waitcnt", "s_barrier", "s_endpgm", "s_setprio", "s_sleep")):
                for x in R:
                    self.r |= set(x)
            else:
                if R:
                    self.w |= set(R[0])
                for x in R[1:]:
                    self.r |= set(x)
                if "saveexec" in mn:
                    self.w.add(("s", "exec"))
        else:
            raise ValueError("unknown instr " + text)


def need(p, c):
    n = 0
    pv = p.cls in ("valu", "trans")
    cv = c.cls in ("valu", "trans")
    if pv:
        wv = {x for x in p.w if x[0] != "s"}
        wsg = {x for x in p.w if x[0] == "s"}
        if c.cls == "mfma" and wv & c.r:
            n = max(n, 2)
        if wsg & c.r:
            if c.cls == "vmem":
                n = max(n, 5)
            if cv:
                n = max(n, 4 if c.mn.startswith(("v_readlane", "v_writelane")) else 2)
        if cv and wv & c.r:
            if c.mn.startswith(("v_readfirstlane", "v_readlane")):
                n = max(n, 1)
            if c.mn.startswith("v_permlane") or c.dpp:
                n = max(n, 2)
            if p.cls == "trans" and c.cls != "trans":
                n = max(n, 1)
    if p.cls == "mfma":
        ix = {2: 0, 4: 1, 8: 2}[p.passes]
        if c.cls == "mfma":
            if p.w & set(c.ab):
                n = max(n, (5, 8, 12)[ix])
            if p.w & set(c.srcc):
                if not (p.dst == c.srcc and p.passes == c.passes):
                    n = max(n, (4, 6, 10)[ix])
                elif p.passes == 2:
                    n = max(n, 2)
        elif c.cls in ("valu", "trans", "ds", "vmem"):
            if p.w & (c.r | c.w):
                n = max(n, (5, 8, 12)[ix])
            if cv and set(p.srcc) & c.w:
                n = max(n, (1, 3, 7)[ix])
    if p.cls == "salu" and ("s", "m0") in p.w and c.lds:
        n = max(n, 1)
    if p.cls == "vmem" and p.data and set(p.data) & c.w:
        n = max(n, 2 if cv else 1)
    return n


import os
STAMPS = bool(os.environ.get("STAMPS"))
STAMPSET = os.environ.get("STAMPS", "").split(",")[:10]
TS_BASE = 120 << 20
_kidx = [0]
SB = 72
TIMER = "s_memtime" if os.environ.get("CYC") else "s_memrealtime"
NST = 12

class Asm:
    def stamp(self, n):
        if isinstance(n, str):
            if n not in STAMPSET:
                return
            n = 1 + STAMPSET.index(n)
        if STAMPS:
            self(f"{TIMER} s[{SB+2*n}:{SB+1+2*n}]")

    def stamp_init(self):
        if STAMPS:
            self.kidx = _kidx[0]; _kidx[0] += 1
            for n in range(1, NST):
                self(f"s_mov_b32 s{SB+2*n}, 0")
            self.stamp(0)

    def endpgm(self):
        if STAMPS:
            lb = self.label("NOSTAMP%d" % self.kidx)
            self("s_waitcnt vmcnt(0)")
            self.stamp(NST - 1)
            self("s_waitcnt lgkmcnt(0)")
            if os.environ.get("DBGOUT"):
                for n in range(1, NST):
                    r = SB + 2 * n
                    self(f"s_sub_u32 s{r}, s{r}, s{SB}\ns_mov_b32 s{r+1}, 0x03030303")
                    for f in range(4):
                        self(f"s_lshr_b32 s26, s{r}, {6*f}\ns_and_b32 s26, s26, 63\ns_lshl_b32 s26, s26, {8*f+2}\ns_or_b32 s{r+1}, s{r+1}, s26")
                    self(f"v_mov_b32 v{4+n}, s{r+1}")
                self("v_mov_b32 v4, 0x03030303")
                self("s_lshl_b32 s26, s2, 2\ns_add_u32 s26, s26, s3\ns_cmp_eq_u32 s26, 160\ns_cselect_b32 s26, 0, 0x7f000000\ns_mov_b64 exec, 1")
                for n in range(NST // 4):
                    self(f"buffer_store_dwordx4 v[{4+4*n}:{7+4*n}], off, s[16:19], s26 offset:{16*n}")
                self("s_endpgm")
                return
            for n in range(NST):
                self(f"v_mov_b32 v{4+n}, s{SB+2*n}")
            self(f"s_lshl_b32 s{SB}, s2, 3\ns_add_u32 s{SB}, s{SB}, s3\ns_lshl_b32 s{SB}, s{SB}, 6\ns_add_u32 s{SB}, s{SB}, {TS_BASE + self.kidx * 524288}")
            self("v_mov_b32 v0, 0\ns_mov_b64 exec, 1")
            for n in range(NST // 4):
                self(f"buffer_store_dwordx4 v[{4+4*n}:{7+4*n}], v0, s[20:23], s{SB} offen offset:{16*n}")
        self("s_endpgm")

    def prefetch_code(self, start, end, nbytes, vt, nwaves=4, sr=96, vm=None):
        lb = self.label("PC" + start)
        self(f"s_getpc_b64 s[{sr}:{sr+1}]")
        self(f"{lb}:")
        self(f"s_add_u32 s{sr}, s{sr}, {start}-{lb}")
        self(f"s_addc_u32 s{sr+1}, s{sr+1}, ({start}-{lb})>>32")
        self(f"s_and_b32 s{sr+1}, s{sr+1}, 0xffff")
        self(f"s_mov_b32 s{sr+2}, {end}-{start}")
        self(f"s_mov_b32 s{sr+3}, 0x20000")
        self(f"s_lshl_b32 s{sr+4}, s3, 13")
        self(f"v_lshlrev_b32 v{vt}, 7, v0")
        n = (nbytes + nwaves * 8192 - 1) // (nwaves * 8192)
        for i in range(n):
            t = f"buffer_load_dword v{vt+1}, v{vt}, s[{sr}:{sr+3}], s{sr+4} offen"
            if vm is not None:
                vm.issue("PC", t)
            else:
                self(t)
            if i + 1 < n:
                self(f"s_add_u32 s{sr+4}, s{sr+4}, {nwaves*8192}")
        return n

    def __init__(self):
        self.lines = []
        self.auto = True
        self.nlabel = 0
        self.inserted = 0

    def __call__(self, text):
        for ln in text.split("\n"):
            ln = ln.strip()
            if not ln:
                continue
            ins = Ins(ln)
            if self.auto and ins.cls not in ("label", "nop"):
                d = 0
                req = 0
                for p in reversed(self.lines):
                    if d >= 20:
                        break
                    if p.cls not in ("label", "nop"):
                        req = max(req, need(p, ins) - d)
                    d += p.ws
                if req > 0:
                    self.lines.append(Ins(f"s_nop {req - 1}"))
                    self.inserted += 1
            self.lines.append(ins)

    def label(self, prefix="L"):
        self.nlabel += 1
        return f"{prefix}_{self.nlabel}"

    def check_branches(self):
        pos = {}
        for i, x in enumerate(self.lines):
            t = x.text.split(";")[0].strip()
            if x.cls == "label" and t.endswith(":"):
                pos[t[:-1]] = i
        bad = 0
        for i, x in enumerate(self.lines):
            if x.mn.startswith(("s_cbranch", "s_branch")):
                tgt = x.text.split(";")[0].split()[1]
                if tgt not in pos:
                    continue
                j = pos[tgt]
                dc = 0
                for c in self.lines[j:j + 40]:
                    if dc >= 20:
                        break
                    if c.cls not in ("label", "nop"):
                        d = dc
                        for p in reversed(self.lines[max(0, i - 40):i + 1]):
                            if d >= 20:
                                break
                            if p.cls not in ("label", "nop") and need(p, c) > d:
                                print(f"HAZARD across branch {x.text}: '{p.text}' -> '{c.text}' need {need(p,c)} have {d}")
                                bad += 1
                            d += p.ws
                    dc += c.ws
                    if c.mn in ("s_branch", "s_endpgm"):
                        break
        return bad

    def text(self):
        out = []
        for x in self.lines:
            out.append(x.text if x.cls == "label" else "  " + x.text)
        return "\n".join(out)


def v(a, n=1):
    return f"v{a}" if n == 1 else f"v[{a}:{a+n-1}]"


def a_(a, n=1):
    return f"a{a}" if n == 1 else f"a[{a}:{a+n-1}]"


def s(a, n=1):
    return f"s{a}" if n == 1 else f"s[{a}:{a+n-1}]"


def f2u(x):
    import struct
    return struct.unpack("<I", struct.pack("<f", x))[0]


def kdesc(name, vgpr, agpr, sgpr=102):
    sgpr = 102
    acc = (vgpr + 3) // 4 * 4
    tot = acc + agpr if agpr else vgpr
    return f""".section .rodata,"a"
.p2align 6
.amdhsa_kernel {name}
  .amdhsa_next_free_vgpr {tot}
  .amdhsa_next_free_sgpr {sgpr}
  .amdhsa_accum_offset {acc}
  .amdhsa_group_segment_fixed_size 0
  .amdhsa_kernarg_size 88
  .amdhsa_user_sgpr_count 2
  .amdhsa_user_sgpr_kernarg_segment_ptr 1
  .amdhsa_system_sgpr_workgroup_id_x 1
  .amdhsa_float_denorm_mode_32 3
.end_amdhsa_kernel
.text"""
```

```python
from asmlib import *
import layout as L
import math
import os
GX = os.environ.get('GX', '').split(',')

MF = "v_mfma_f32_16x16x32_bf16"

def R(x, n=1):
    if x >= 256:
        return a_(x - 256, n)
    assert x + n <= 256
    return v(x, n)

class Q:
    def __init__(self, A, name, mx):
        self.A, self.name, self.mx, self.q = A, name, mx, []
    def issue(self, tag, text):
        self.A(text); self.q.append(tag)
    def count_for(self, tag):
        if tag not in self.q:
            return None
        last = max(i for i, f in enumerate(self.q) if f == tag)
        n = len(self.q) - 1 - last
        self.q = self.q[last + 1:]
        return min(n, self.mx)
    def wait(self, tag):
        n = self.count_for(tag)
        if n is not None:
            self.A(f"s_waitcnt {self.name}({n})")

def waits(A, vm, vtags, lk, ltags):
    parts = []
    n = None
    for t in vtags:
        c = vm.count_for(t)
        if c is not None:
            n = c
    if n is not None:
        parts.append(f"vmcnt({n})")
    n = None
    for t in ltags:
        c = lk.count_for(t)
        if c is not None:
            n = c
    if n is not None:
        parts.append(f"lgkmcnt({n})")
    if parts:
        A("s_waitcnt " + " ".join(parts))

class It(tuple):
    def __call__(self):
        return self.g.emit(tuple(self))

def Items(g, items):
    out = []
    for x in items:
        y = It(x); y.g = g
        out.append(y)
    return out

def iscall(x):
    return callable(x) and not isinstance(x, tuple)

class G4:
    def __init__(self, A, vm, lk, NB, wn, KS, kps, NS, WD, s_act, blk_stride, s_w, acc0, fr0, w0, vl16, vt, st, lds0=0, rng=None, swap=False, dfl='', stamps=(2, 3, 4), halo=False):
        self.__dict__.update(locals())
        self.rng = rng or [(0, NB)] * wn
        self.nst = KS // kps
        self.ppw = NB * kps // 4
        assert NB * kps % 4 == 0
        self.slot = NB * kps * 1024
        self.smap = [i * self.slot for i in range(NS)]
        self.accs = {}
        a = acc0
        for n in range(0, wn, 2):
            f, c = self.rng[n]
            for b in range(f, f + c):
                self.accs[(b, n)] = a; self.accs[(b, n + 1)] = a + 4; a += 8
        self.acc_end = a

    def setup(self):
        A, st, vt = self.A, self.st, self.vt
        for i in range(self.ppw):
            A(f"s_mul_i32 s{st}, s3, {self.ppw}\ns_add_u32 s{st}, s{st}, {i}")
            sh = int(math.log2(self.kps))
            A(f"s_lshr_b32 s{st+1}, s{st}, {sh}")
            if self.halo:
                A(f"s_lshl_b32 s29, s28, 3\ns_add_u32 s29, s29, s{st+1}\ns_sub_u32 s29, s29, 1")
            A(f"s_mul_i32 s{st+1}, s{st+1}, {self.blk_stride}")
            A(f"s_and_b32 s{st}, s{st}, {self.kps-1}\ns_lshl_b32 s{st}, s{st}, 10")
            A(f"s_add_u32 s{st+1}, s{st+1}, s{st}\ns_add_u32 s{st+2+i}, s{st+1}, s{self.s_act}")
            if self.halo:
                A(f"s_cmp_lt_u32 s29, 512\ns_cselect_b32 s{st+2+i}, s{st+2+i}, 0x7f000000")
        A(f"s_mul_i32 s{st}, s3, {self.ppw*1024}")
        if self.lds0:
            A(f"s_add_u32 s{st}, s{st}, {self.lds0}")
        A(f"v_mov_b32 {v(vt)}, {v(self.vl16)}")
        A(f"v_mov_b32 {v(vt+1)}, {v(self.vl16)}")
        A(f"v_add_u32 {v(vt+2)}, 0x10000, {v(self.vl16)}")
        A(f"v_add_u32 {v(vt+3)}, 0x20000, {v(self.vl16)}")

    def dma(self, stage):
        out = []
        sl = stage % self.NS
        for i in range(self.ppw):
            out.append((None, f"s_add_u32 m0, s{self.st}, {self.smap[sl] + i*1024}"))
            out.append((("D", id(self), stage), f"buffer_load_dwordx4 {v(self.vt)}, s[20:23], s{self.st+2+i} offen{self.dfl} lds"))
        out.append((None, f"v_add_u32 {v(self.vt)}, {self.kps*1024}, {v(self.vt)}"))
        return out

    def wreg(self, n, k):
        return self.w0 + ((k % self.WD) * self.wn + n) * 4

    def wload(self, k):
        out = []
        for n in range(self.wn):
            out.append((("W", id(self), k), f"buffer_load_dwordx4 {R(self.wreg(n,k),4)}, {v(self.vt+1)}, s[20:23], s{self.s_w[n]} offen offset:{(k&3)*1024}"))
        if k & 3 == 3:
            out.append((None, f"v_add_u32 {v(self.vt+1)}, 4096, {v(self.vt+1)}"))
        return out

    def freg(self, b, k):
        return self.fr0 + ((k & 1) * self.NB + b) * 4

    def reads(self, k):
        out = []
        stage, kk = k // self.kps, k % self.kps
        for b in range(self.NB):
            off = self.lds0 + self.smap[stage % self.NS] + (b * self.kps + kk) * 1024
            w = off >> 16
            base = self.vl16 if w == 0 else self.vt + 1 + w
            out.append((("F", k, b), f"ds_read_b128 {R(self.freg(b,k),4)}, {v(base)} offset:{off & 0xffff}"))
        return out

    def emit(self, item):
        if iscall(item):
            return item()
        tag, text = item
        if tag is None:
            self.A(text)
        elif tag[0] == "F":
            self.lk.issue(tag, text)
        else:
            self.vm.issue(tag, text)

    def prefetch_list(self, nw=None):
        nw = min(self.WD, self.KS) if nw is None else nw
        ns = min(self.NS, self.nst)
        wk = 0
        items = []
        for s_ in range(ns):
            items += self.dma(s_)
            while wk < nw and wk < (s_ + 1) * self.kps:
                items += self.wload(wk)
                wk += 1
        while wk < nw:
            items += self.wload(wk)
            wk += 1
        self.w_issued = nw
        self.d_issued = ns
        return Items(self, items)

    def wlist(self, nw):
        items = []
        for k in range(nw):
            items += self.wload(k)
        self.w_issued = nw
        return Items(self, items)

    def dlist(self):
        ns = min(self.NS, self.nst)
        items = []
        for s_ in range(ns):
            items += self.dma(s_)
        self.d_issued = ns
        return Items(self, items)

    def prefetch(self, nw=None):
        for f in self.prefetch_list(nw):
            f()

    border = None
    vgap = int(os.environ.get("VGAP", "4"))
    def after_mid(self, k):
        return []

    def run(self, extra=None, first_c="0", start=True, keep=False):
        A = self.A
        bo = self.border or list(range(self.NB))
        if start:
            self.vm.wait(("D", id(self), 0))
            A("s_barrier")
        if self.stamps: A.stamp(self.stamps[0])
        for x in self.reads(0):
            self.emit(x)
        carry = []
        since = 99
        def chk(tags):
            for y in carry:
                assert iscall(y) or y[0] not in tags, ("pending", y)
        for k in range(self.KS):
            stage, kk = k // self.kps, k % self.kps
            fill = []
            last_in_stage = kk == self.kps - 1 and k + 1 < self.KS
            if last_in_stage:
                tg = [("W", id(self), k), ("D", id(self), stage + 1)]
                chk(tg)
                if "novm" in GX and isinstance(self, GU):
                    for t_ in tg: self.vm.count_for(t_)
                waits(A, self.vm, tg, self.lk, [("F", k, bo[-1])])
                if not ("nobar" in GX and isinstance(self, GU)):
                    A("s_barrier")
            else:
                chk([("W", id(self), k)])
                waits(A, self.vm, [("W", id(self), k)], self.lk, [("F", k, bo[self.NB // 2 - 1])])
            dsl = self.reads(k + 1) if k + 1 < self.KS else []
            oth = carry
            if self.w_issued < self.KS and self.w_issued < k + self.WD:
                oth += self.wload(self.w_issued); self.w_issued += 1
            if last_in_stage and self.d_issued < self.nst:
                oth += self.dma(self.d_issued); self.d_issued += 1
            if extra:
                oth += extra(k)
            mm = []
            for bi, b in enumerate(bo):
                for n in range(self.wn):
                    if (b, n) in self.accs:
                        acc = self.accs[(b, n)]
                        c = first_c if k == 0 and first_c is not None else R(acc, 4)
                        x, y = R(self.wreg(n, k), 4), R(self.freg(b, k), 4)
                        if self.swap:
                            x, y = y, x
                        mm.append((bi, f"{MF} {R(acc,4)}, {x}, {y}, {c}"))
            n = len(mm)
            mid = next(i for i, (b, _) in enumerate(mm) if b >= self.NB // 2)
            nds = len(dsl)
            span = max(nds, min(n - 2, max(n * 3 // 4, 2 * nds - 1)))
            dsg = {i * span // nds for i in range(nds)} if nds else set()
            for i, (b, x) in enumerate(mm):
                A(x)
                since += 1
                slots = 2
                if i == mid - 1 or i >= n - 1:
                    slots -= 1
                if i == n - 1 and (k + 1) % self.kps == self.kps - 1:
                    slots -= 1
                mem = False
                if dsl and i in dsg:
                    self.emit(dsl.pop(0)); slots -= 1
                    mem = True
                while oth and slots > 0:
                    isvm = iscall(oth[0]) or oth[0][0] is not None
                    if isvm and (mem or since < self.vgap):
                        break
                    y = oth.pop(0)
                    self.emit(y); slots -= 1
                    mem = mem or isvm
                    if isvm:
                        since = 0
                    if not isvm and "m0" in y[1]:
                        break
                if i == mid - 1:
                    self.lk.wait(("F", k, bo[-1]))
                    oth = self.after_mid(k) + oth
            for x in dsl:
                self.emit(x)
            carry = oth
            if k == self.KS // 2 - 1:
                if self.stamps and self.stamps[1]: A.stamp(self.stamps[1])
            if self.stamps: A.stamp(self.stamps[0] + "k%d" % k)
        if self.stamps: A.stamp(self.stamps[2])
        if keep:
            return carry
        for x in carry:
            self.emit(x)


class GU(G4):
    SLOT = 53248
    def __init__(self, A, vm, lk):
        G4.__init__(self, A, vm, lk, NB=10, wn=4, KS=16, kps=2, NS=3, WD=2, s_act=None, blk_stride=0, s_w=None,
                    acc0=16, fr0=256, w0=256 + 80, vl16=1, vt=2, st=50, rng=[(0, 9), (0, 9), (0, 10), (0, 10)], stamps=('U0', 'U1', 'Ux'))
        self.border = list(range(1, 10)) + [0]
        self.w_issued = 99
        self.d_issued = 0
        self.F0 = 232
        self.RA, self.RW = 240, 244

    def setup(self):
        A = self.A
        A("v_and_b32 v4, 7, v0\nv_lshrrev_b32 v5, 3, v0\nv_xor_b32 v2, v4, v5\nv_lshlrev_b32 v2, 4, v2\nv_lshl_add_u32 v2, v5, 10, v2")
        A("v_lshrrev_b32 v12, 4, v0\nv_and_b32 v13, 15, v0\nv_lshlrev_b32 v3, 2, v12\nv_xor_b32 v3, v3, v13\nv_lshlrev_b32 v3, 4, v3\nv_lshl_add_u32 v3, v12, 11, v3")
        A(f"s_and_b32 s32, s28, 31\ns_lshl_b32 s32, s32, 7\ns_sub_u32 s32, s32, 16\ns_mul_i32 s33, s3, 40\ns_add_u32 s32, s32, s33")
        A(f"s_lshr_b32 s33, s28, 5\ns_mul_i32 s33, s33, {L.T}")
        for i in range(5):
            A(f"s_add_u32 s34, s32, {8*i}\ns_add_u32 s35, s34, s33\ns_lshl_b32 s35, s35, 10")
            A(f"s_cmp_lt_u32 s34, {L.T}\ns_cselect_b32 s{self.st+2+i}, s35, 0x7f000000")
        A("s_mul_i32 s50, s3, 5120")
        A("s_lshl_b32 s51, s3, 13\ns_add_u32 s51, s51, 20480")
        A("s_lshr_b32 s34, s3, 1\ns_lshl_b32 s34, s34, 10\ns_lshl_b32 s35, s30, 8\ns_add_u32 s34, s34, s35\ns_and_b32 s35, s3, 1\ns_lshl_b32 s35, s35, 16\ns_add_u32 s57, s34, s35")

    def skew(self):
        A = self.A
        A("s_lshl_b32 s33, s30, 1\ns_add_u32 s33, s33, s28\ns_and_b32 s33, s33, 7\ns_lshl_b32 s34, s33, 7\nv_add_u32 v2, s34, v2")
        A("s_lshl_b32 s34, s33, 17\ns_add_u32 s57, s57, s34\ns_movk_i32 s29, 0x380")

    def setup2(self):
        A = self.A
        RA, RW = self.RA, self.RW
        A(f"v_lshrrev_b32 v13, 4, v0\nv_and_b32 v14, 7, v0\nv_xor_b32 v14, v14, v13\nv_lshlrev_b32 v14, 4, v14\nv_and_b32 v12, 15, v0\nv_lshl_add_u32 {v(RA)}, v12, 7, v14")
        A(f"v_bfe_u32 v12, v0, 2, 2\nv_lshl_add_u32 v14, v13, 3, v12\nv_xor_b32 v12, s3, v12\nv_lshlrev_b32 v12, 6, v12\nv_lshl_add_u32 v12, v14, 8, v12")
        A(f"v_and_b32 v14, 3, v0\nv_lshl_add_u32 v12, v14, 4, v12\nv_add_u32 {v(RW)}, 20480, v12")
        for i in (1, 2):
            A(f"v_add_u32 {v(RA+i)}, {i*self.SLOT}, {v(RA)}\nv_add_u32 {v(RW+i)}, {i*self.SLOT}, {v(RW)}")
        for i in range(3):
            A(f"v_xor_b32 {v(253+i)}, 64, {v(RA+i)}")
        A("v_and_b32 v12, 15, v0\nv_cmp_eq_u32 s[58:59], 0, v12\nv_mov_b32 v243, 0x3f803f80")

    def dma(self, stage):
        out = []
        sl = (stage % 3) * self.SLOT
        tag = ("D", id(self), stage)
        for i in range(5):
            out.append((None, f"s_add_u32 m0, s50, {sl + i*1024}"))
            out.append((tag, f"buffer_load_dwordx4 v2, s[8:11], s{52+i} offen lds"))
        out.append((None, "v_add_u32 v247, 128, v2"))
        out.append((None, "v_bfi_b32 v2, s29, v247, v2"))
        for i in range(8):
            out.append((None, f"s_add_u32 m0, s51, {sl + i*1024}"))
            out.append((tag, "buffer_load_dwordx4 v3, s[40:43], s57 offen lds"))
            out.append((None, f"s_add_u32 s57, s57, {8192 if i < 7 else 131072 - 7*8192}"))
        out.append((None, "s_and_b32 s57, s57, 0xfffff"))
        return out

    def issue_stage(self):
        for x in self.dma(self.d_issued):
            self.emit(x)
        self.d_issued += 1

    def freg(self, b, k):
        if b == 0:
            return self.F0 + (k & 1) * 4
        return G4.freg(self, b, k)

    def reads(self, k):
        out = []
        stage, kk = k >> 1, k & 1
        sl = stage % 3
        for n in range(4):
            o = (n >> 1) * 16384 + kk * 8192 + (n & 1) * 8
            r = self.wreg(n, k)
            out.append((("F", k, -1), f"ds_read_b64_tr_b16 {R(r,2)}, {v(self.RW+sl)} offset:{o}"))
            out.append((("F", k, -1), f"ds_read_b64_tr_b16 {R(r+2,2)}, {v(self.RW+sl)} offset:{o+1024}"))
        for b in self.border:
            out.append((("F", k, b), f"ds_read_b128 {R(self.freg(b,k),4)}, {v((253 if kk else self.RA)+sl)} offset:{b*2048}"))
        return out

    def after_mid(self, k):
        r = self.freg(0, k)
        return [(None, f"v_cndmask_b32 {v(r+i)}, {v(r+i)}, v243, s[58:59]") for i in range(4)]
```

```python
from asmlib import *
import layout as L
from k0 import srd
from g4 import *
from gemm import gelu_consts
from p0 import *
from ph import c4_tload, c4_addr, c4_write, c4_core, RS, T4B
import attn as AT_
from attn import Sreg, ring, kread, vread, softmax_ops, check_ops, rowmax, Sched, spread, DIST, THRESH
from attn import L16, DV0, DV1, KA0, KA1, VA, LS0, LS1, BS0, BS1, T0, NEGM, PP, XT

import os
EXP = os.environ.get("EXP", "pl").split(",")
SC = " sc1"
LL = "" if "pl" in EXP else SC
SL = SC
SM = "" if "local" in EXP else SC
F_S, F_Q, F_Z, F_ML, F_AT, F_MG = 0, 1, 2, 4, 5, 6
F_P = 8
FK = L.FK
OOB = 0x7f000000

def Qr(qa, j): return 256 + (qa * 16 + j) * 4
def Or(dt, qa):
    i = (dt * 2 + qa) * 4
    return 128 + i if i < 128 else 256 + i

class M:
    def __init__(self):
        self.A = Asm()
        self.vm = Q(self.A, "vmcnt", 63)
        self.lk = Q(self.A, "lgkmcnt", 15)

    def signal(self, kind, tag, vt, sub=None):
        A = self.A
        A(f"v_mov_b32 {v(vt)}, 1\ns_add_u32 s26, s24, {kind*FK}")
        if sub is not None:
            A(f"s_lshl_b32 s29, s{sub}, 13\ns_add_u32 s26, s26, s29")
        self.vm.wait(tag)
        A("s_mov_b64 exec, 1")
        self.vm.issue("SIG", f"buffer_atomic_add {v(vt)}, off, s[20:23], s26 sc1")
        A("s_mov_b64 exec, -1")
        A.stamp("sg%d" % kind)

    def _poll_text(self, nbr, vt, sreg):
        if nbr:
            return f"buffer_load_dword {v(vt)}, {v(vt+1)}, s[20:23], s{sreg} offen sc1"
        return f"buffer_load_dword {v(vt)}, off, s[20:23], s{sreg} sc1"

    def poll_issue(self, kind, nbr, vt, sreg=27, sub=None):
        A = self.A
        if nbr:
            A(f"s_mov_b32 s{sreg}, {L.FLAGS + kind*FK}\ns_sub_u32 s26, s28, 1")
            A(f"v_min_u32 {v(vt+1)}, 2, v0\nv_add_u32 {v(vt+1)}, s26, {v(vt+1)}\nv_med3_i32 {v(vt+1)}, {v(vt+1)}, 0, 63\nv_lshlrev_b32 {v(vt+1)}, 7, {v(vt+1)}")
        else:
            A(f"s_add_u32 s{sreg}, s24, {kind*FK}")
            if sub is not None:
                A(f"s_lshl_b32 s29, s{sub}, 13\ns_add_u32 s{sreg}, s{sreg}, s29")
        self.vm.issue(("POLL", kind), self._poll_text(nbr, vt, sreg))

    def poll_check(self, kind, nbr, vt, sreg=27, target=16):
        A = self.A
        ok, lp = A.label("POK"), A.label("PLP")
        A.stamp("pb%d" % kind)
        self.vm.wait(("POLL", kind))
        A(f"{lp}:")
        A(f"v_cmp_le_u32 vcc, {target}, {v(vt)}")
        A("s_cmp_eq_u64 vcc, -1")
        A(f"s_cbranch_scc1 {ok}")
        A("s_sleep 1")
        A(self._poll_text(nbr, vt, sreg))
        A("s_sub_u32 s25, s25, 1")
        A("s_waitcnt vmcnt(0)")
        A(f"s_cbranch_scc0 {lp}")
        A("s_endpgm")
        A(f"{ok}:")
        A.stamp("pc%d" % kind)

    def nonce_make(self, vt):
        A = self.A
        A("s_memrealtime s[4:5]")
        A(f"s_or_b32 s26, s2, s3\ns_cmp_eq_u32 s26, 0\ns_cselect_b32 s26, 0, {OOB}")
        A("s_waitcnt lgkmcnt(0)")
        A(f"s_or_b32 s4, s4, 1\nv_mov_b32 {v(vt)}, s4\ns_mov_b64 exec, 1")
        self.vm.issue("SIG", f"buffer_store_dword {v(vt)}, off, s[16:19], s26 sc1")
        A("s_mov_b64 exec, -1")

    def nonce_issue(self, vt):
        self.A(f"s_cmp_eq_u32 s3, 0\ns_cselect_b32 s5, 0, {OOB}")
        self.vm.issue("NON", f"buffer_load_dword {v(vt)}, off, s[16:19], s5 sc1")

    def nonce_get(self, vt):
        A = self.A
        ok, lp = A.label("NOK"), A.label("NLP")
        self.vm.wait("NON")
        A(f"s_cmp_lg_u32 s3, 0\ns_cbranch_scc1 {ok}")
        A(f"{lp}:")
        A(f"v_readfirstlane_b32 s4, {v(vt)}")
        A(f"s_cmp_lg_u32 s4, 0\ns_cbranch_scc1 {ok}")
        A("s_sleep 1")
        A(f"buffer_load_dword {v(vt)}, off, s[16:19], 0 sc1")
        A("s_sub_u32 s25, s25, 1")
        A("s_waitcnt vmcnt(0)")
        A(f"s_cbranch_scc0 {lp}")
        A("s_endpgm")
        A(f"{ok}:")

    def gsignal(self, ev, vt):
        A = self.A
        A(f"v_mov_b32 {v(vt)}, s4\ns_lshr_b32 s26, s2, 3\ns_lshl_b32 s26, s26, 7\ns_and_b32 s5, s2, 7\ns_lshl_b32 s5, s5, 2\ns_add_u32 s26, s26, s5")
        A(f"s_add_u32 s26, s26, {L.GF + ev*4096}\ns_cmp_eq_u32 s3, 0\ns_cselect_b32 s26, s26, {OOB}\ns_mov_b64 exec, 1")
        self.vm.issue("SIG", f"buffer_store_dword {v(vt)}, off, s[20:23], s26 sc1")
        A("s_mov_b64 exec, -1")

    def gpoll_issue(self, ev, vt):
        A = self.A
        A(f"v_lshrrev_b32 {v(vt+4)}, 1, v0\nv_lshlrev_b32 {v(vt+4)}, 7, {v(vt+4)}\nv_and_b32 {v(vt)}, 1, v0\nv_lshl_add_u32 {v(vt+4)}, {v(vt)}, 4, {v(vt+4)}")
        A(f"s_mov_b32 s5, {L.GF + ev*4096}\ns_cmp_eq_u32 s3, 0\ns_cselect_b32 s5, s5, {OOB}")
        self.vm.issue("GPOLL", f"buffer_load_dwordx4 {v(vt,4)}, {v(vt+4)}, s[20:23], s5 offen sc1")

    def gpoll_check(self, ev, vt):
        A = self.A
        ok, lp = A.label("GOK"), A.label("GLP")
        self.vm.wait("GPOLL")
        A(f"s_cmp_lg_u32 s3, 0\ns_cbranch_scc1 {ok}")
        A(f"{lp}:")
        for i in range(4):
            A(f"v_xor_b32 {v(vt+i)}, s4, {v(vt+i)}")
        A(f"v_or3_b32 {v(vt)}, {v(vt)}, {v(vt+1)}, {v(vt+2)}\nv_or_b32 {v(vt)}, {v(vt)}, {v(vt+3)}")
        A(f"v_cmp_ne_u32 vcc, 0, {v(vt)}")
        A(f"s_cbranch_vccz {ok}")
        A("s_sleep 1")
        A(f"buffer_load_dwordx4 {v(vt,4)}, {v(vt+4)}, s[20:23], s5 offen sc1")
        A("s_sub_u32 s25, s25, 1")
        A("s_waitcnt vmcnt(0)")
        A(f"s_cbranch_scc0 {lp}")
        A("s_endpgm")
        A(f"{ok}:")
        A.stamp("gp%d" % ev)

    def pf(self, start, end, vt, sr=96):
        A = self.A
        lb = A.label("PC" + start)
        A(f"s_getpc_b64 s[{sr}:{sr+1}]")
        A(f"{lb}:")
        A(f"s_add_u32 s{sr}, s{sr}, {start}-{lb}")
        A(f"s_addc_u32 s{sr+1}, s{sr+1}, ({start}-{lb})>>32")
        A(f"s_and_b32 s{sr+1}, s{sr+1}, 0xffff")
        A(f"s_mov_b32 s{sr+2}, {end}-{start}")
        A(f"s_mov_b32 s{sr+3}, 0x20000")
        A(f"s_lshr_b32 s{sr+4}, s2, 3\ns_lshl_b32 s{sr+4}, s{sr+4}, 2\ns_add_u32 s{sr+4}, s{sr+4}, s3\ns_lshl_b32 s{sr+4}, s{sr+4}, 10")
        A(f"v_and_b32 v{vt}, 7, v0\nv_lshlrev_b32 v{vt}, 7, v{vt}")
        self.vm.issue("PC", f"buffer_load_dword v{vt+1}, v{vt}, s[{sr}:{sr+3}], s{sr+4} offen")

def gelu_pk(A, regs, tmp, hook=lambda: None):
    for x, t in zip(regs, tmp):
        A(f"v_pk_mul_f32 {v(t,2)}, {v(x,2)}, {v(x,2)}")
    for x, t in zip(regs, tmp):
        A(f"v_pk_fma_f32 {v(t,2)}, {v(t,2)}, v[8:9], v[6:7]")
    for x, t in zip(regs, tmp):
        A(f"v_pk_mul_f32 {v(t,2)}, {v(t,2)}, {v(x,2)}")
    hook()
    for x, t in zip(regs, tmp):
        A(f"v_exp_f32 {v(t)}, {v(t)}\nv_exp_f32 {v(t+1)}, {v(t+1)}")
    hook()
    for x, t in zip(regs, tmp):
        A(f"v_pk_add_f32 {v(t,2)}, {v(t,2)}, v[10:11]")
    for x, t in zip(regs, tmp):
        A(f"v_rcp_f32 {v(t)}, {v(t)}\nv_rcp_f32 {v(t+1)}, {v(t+1)}")
    hook()
    for x, t in zip(regs, tmp):
        A(f"v_pk_mul_f32 {v(x,2)}, {v(x,2)}, {v(t,2)}")

def kv_dma_ops():
    out = ["s_mov_b32 m0, s47"]
    for i in range(4):
        out.append(f"buffer_load_dwordx4 {v(DV0)}, s[20:23], s46 offen offset:{i*1024} lds")
    out.append("s_add_u32 m0, s47, 16384")
    for i in range(4):
        out.append(f"buffer_load_dwordx4 {v(DV1)}, s[20:23], s46 offen offset:{i*1024} lds")
    out += ["s_add_u32 s46, s46, 32768", "s_add_u32 s47, s47, 32768", "s_and_b32 s47, s47, 0x1ffff"]
    return out

IT, FW, FR, FV = 124, 125, 126, 127
FLG = 163840 - 1024

def cost(x):
    if callable(x):
        return 1
    return 2 if x.startswith("v_exp") else 1

def place(free, ops, g0, g1, table):
    g = g0
    prev_trans = None
    for x in ops:
        c = cost(x)
        while g <= g1 and free[g] < c:
            g += 1
        assert g <= g1, ("no room", x)
        table[g].append(x)
        free[g] -= c
    return g

def softmax_sched(p):
    grp = []
    t = 0
    for qa in range(2):
        bs = BS0 + qa
        for ka in range(2):
            sr = Sreg(p, ka, qa)
            tt = T0 + 4 * (t & 1); t += 1
            ex = [f"v_exp_f32 {v(tt+r)}, {v(sr+r)}" for r in range(4)]
            if ka == 0:
                a = [f"v_add_f32 {v(bs)}, {v(tt)}, {v(tt+1)}"]
            else:
                a = [f"v_add_f32 {v(bs)}, {v(bs)}, {v(tt)}", f"v_add_f32 {v(bs)}, {v(bs)}, {v(tt+1)}"]
            a += [f"v_cvt_pk_bf16_f32 {v(PP+qa*4+ka*2)}, {v(tt)}, {v(tt+1)}",
                  f"v_add_f32 {v(bs)}, {v(bs)}, {v(tt+2)}", f"v_add_f32 {v(bs)}, {v(bs)}, {v(tt+3)}",
                  f"v_cvt_pk_bf16_f32 {v(PP+qa*4+ka*2+1)}, {v(tt+2)}, {v(tt+3)}"]
            grp.append((ex, a))
    return grp

def half(A, sc, p, tail, tag, loopctl=None, tailfill=None, first=False, pre=None):
    ds = {}
    for f in range(8, 72):
        g = 2 * f - 15
        if f < 32:
            ds[g] = (("K", f), kread(f, p ^ 1)[0])
        elif f < 64:
            r = vread(f - 32, p)
            ds[g] = (("V", f - 32), r[0]); ds[g + 1] = (("V", f - 32), r[1])
        elif pre:
            r = vread(f - 64, p ^ 1)
            ds[g] = (("V2", f - 64), r[0])
            if g + 1 < 128:
                ds[g + 1] = (("V2", f - 64), r[1])
        elif not tail:
            ds[g] = (("K", f - 64), kread(f - 64, p)[0])
    wt = {}
    for f in range(2, 66, 2):
        g = 2 * f - 1
        t = ("K", f + 1) if f < 32 else (("V", f + 1 - 32) if f < 64 else ("K", 1))
        if f == 64:
            if tail or pre:
                continue
            g = 126
        wt[g] = t
    free = [2 - (g in ds) - (g in wt) for g in range(128)]
    tb = [[] for _ in range(128)]
    ladd = [f"v_add_f32 {v(LS0)}, {v(LS0)}, {v(BS0)}", f"v_add_f32 {v(LS1)}, {v(LS1)}, {v(BS1)}"]
    if not tail:
        dm = kv_dma_ops()
        place(free, [dm[9]], 0, 0, tb)
        place(free, [dm[10]], 0, 1, tb)
        grp = softmax_sched(p)
        ge = 2
        gc = 3
        for k in range(4):
            ge = place(free, grp[k][0], max(ge, gc if k >= 2 else 0), 60, tb)
            if k >= 1:
                gc = place(free, grp[k - 1][1], gprev + 1, 60, tb)
            gprev = ge
        gc = place(free, grp[3][1] + check_ops(), gprev + 1, 60, tb)
        if not first:
            place(free, [f"s_cbranch_vccnz RARE{p}\nRET{tag}:"], gc + 1, 62, tb)
        if p == 0:
            place(free, [f"v_xor_b32 {v(VA)}, 0x10000, {v(VA)}"], 1, 48, tb)
    def paced(groups, g0, step):
        for j_, gr in enumerate(groups):
            g = g0 + j_ * step
            assert g < 128
            tb[g - 1] += gr[:-1]
            tb[g].insert(0, gr[-1])
    if pre:
        tb[1] += dm[11:13] + ["s_barrier"]
        place(free, ladd, 64, 100, tb)
        if p == 1:
            tb[112].append(f"v_xor_b32 {v(VA)}, 0x10000, {v(VA)}")
        paced(pre[0], 3, 4)
        paced(pre[1], 66, 4)
        tb[127].append("s_sub_u32 s44, s44, 1")
    elif not tail:
        g = place(free, ladd + dm[11:13], 64, 100, tb)
        if p == 0:
            place(free, [f"v_xor_b32 {v(KA0)}, 0x10000, {v(KA0)}", f"v_xor_b32 {v(KA1)}, 0x10000, {v(KA1)}"], g, 110, tb)
        place(free, [f"v_add_u32 {v(IT)}, 1, {v(IT)}"], 66, 74, tb)
        place(free, [lambda: sc.issue("fw", [f"ds_write_b32 {v(FW)}, {v(IT)}"])], 76, 76, tb)
        place(free, [lambda: sc.issue("fr", [f"ds_read_b32 {v(FV)}, {v(FR)}"])], 94, 94, tb)
        def chk():
            assert "fr" not in sc.q
            A(f"v_cmp_gt_u32 vcc, {v(IT)}, {v(FV)}")
        place(free, [chk], 110, 110, tb)
        if not first:
            place(free, ["s_cmp_le_u32 s44, 6", f"s_cbranch_scc1 HOOK{tag}\nHRET{tag}:"], 77, 92, tb)
        if "l2pf" in EXP:
            place(free, ["s_sub_u32 s33, s44, 3", "s_lshl_b32 s33, s33, 20", "buffer_load_dword v123, v122, s[4:7], s33 offen"], 77, 93, tb)
        place(free, [f"s_cbranch_vccnz SPIN{tag}\nSRET{tag}:"], 112, 112, tb)
        SPINS.append(tag)
        place(free, [dm[0]], 113, 113, tb)
        for i, g in enumerate((114, 116, 118, 120)):
            place(free, [dm[1 + i]], g, g, tb)
        place(free, [dm[5]], 121, 121, tb)
        for i, g in enumerate((122, 124, 126)):
            place(free, [dm[6 + i]], g, g, tb)
        place(free, loopctl[:2], 122, 125, tb)
        place(free, loopctl[2:], 127, 127, tb)
    else:
        sc.q = [("V", x[1]) for x in sc.q]
        A("s_barrier")
        tf = list(tailfill)
        for i_, x in enumerate(softmax_ops(p) + check_ops()):
            A(x)
            if i_ % 6 == 0:
                for y in tf.pop(0):
                    y() if callable(y) else A(y)
        A(f"s_cbranch_vccnz RARE{p}")
        A(f"RET{tag}:")
        sc.wait(("V", 1))
        place(free, ladd, 64, 127, tb)
        paced(tf, 65, 3)
    for g in range(64 if tail else 0, 128):
        if g < 64:
            n, qa = g >> 1, g & 1
            j, ka = n >> 1, n & 1
            sr = Sreg(p ^ 1, ka, qa)
            c = v(NEGM + 4 * qa, 4) if j == 0 else v(sr, 4)
            A(f"{MF} {v(sr,4)}, {v(ring(n),4)}, {R(Qr(qa,j),4)}, {c}")
        else:
            dt, qa = (g - 64) >> 1, g & 1
            o = R(Or(dt, qa), 4)
            A(f"{MF} {o}, {v(ring(dt),4)}, {v(PP+4*qa,4)}, {'0' if first else o}")
        if g in ds:
            sc.issue(ds[g][0], [ds[g][1]])
        last = [x for x in tb[g] if not callable(x) and "branch" in x]
        for x in tb[g]:
            if x in last:
                continue
            if callable(x):
                x()
            else:
                A(x)
        if g in wt and "nolg" in EXP and not tail and g != 111:
            A.auto = True
            sv = A.lines; A.lines = []
            sc.wait(wt[g]); A.lines = sv
        elif g in wt:
            sc.wait(wt[g], "vmcnt(0) " if (g == 75 and not tail and not pre) else "")
        for x in last:
            A(x)

SPINS = []
def spin(A, tag):
    A(f"SPIN{tag}:")
    A(f"ds_read_b32 {v(FV)}, {v(FR)}")
    A("s_waitcnt lgkmcnt(0)")
    A(f"v_cmp_gt_u32 vcc, {v(IT)}, {v(FV)}")
    A(f"s_cbranch_vccz SRET{tag}")
    A("s_sub_u32 s25, s25, 1")
    A(f"s_cbranch_scc0 SPIN{tag}")
    A("s_endpgm")

def rare(A, p):
    A(f"RARE{p}:")
    A("s_nop 15")
    D0, AL = XT, XT + 2
    for qa in range(2):
        rowmax(A, p, qa, D0 + qa, XT + 4)
        A(f"v_max_f32 {v(D0+qa)}, 0, {v(D0+qa)}")
        A(f"v_sub_f32 {v(AL+qa)}, 0, {v(D0+qa)}")
        A(f"v_exp_f32 {v(AL+qa)}, {v(AL+qa)}")
        for pp in range(2):
            for ka in range(2):
                for r in range(4):
                    x = Sreg(pp, ka, qa) + r
                    A(f"v_sub_f32 {v(x)}, {v(x)}, {v(D0+qa)}")
        for r in range(4):
            A(f"v_sub_f32 {v(NEGM+4*qa+r)}, {v(NEGM+4*qa+r)}, {v(D0+qa)}")
        A(f"v_mul_f32 {v(LS0+qa)}, {v(LS0+qa)}, {v(AL+qa)}")
    for dt in range(32):
        for qa in range(2):
            o = Or(dt, qa)
            if o < 256:
                for r in range(4):
                    A(f"v_mul_f32 {v(o+r)}, {v(o+r)}, {v(AL+qa)}")
            else:
                t = XT + 8
                for r in range(4):
                    A(f"v_accvgpr_read_b32 {v(t+r)}, {R(o+r)}")
                for r in range(4):
                    A(f"v_mul_f32 {v(t+r)}, {v(t+r)}, {v(AL+qa)}")
                for r in range(4):
                    A(f"v_accvgpr_write_b32 {R(o+r)}, {v(t+r)}")
    for x in softmax_ops(p):
        A(x)
    A("s_nop 3")
    A("s_cmp_eq_u32 s44, 1")
    A(f"s_cbranch_scc1 RETT{p}")
    A("s_cmp_eq_u32 s44, 2")
    A(f"s_cbranch_scc1 RETP{p}")
    A(f"s_branch RETL{p}")

def gen_mega():
    m = M()
    A, vm, lk = m.A, m.vm, m.lk
    name = "mega_kernel"
    A(f".globl {name}\n.p2align 8\n.type {name},@function\n{name}:\n{name}_S:")
    A("s_cmp_ge_u32 s2, 256")
    A("s_cbranch_scc0 MEGA_GO")
    A("s_endpgm")
    A("MEGA_GO:")
    A.stamp_init()
    ldptr(A, 8, 0); ldptr(A, 40, 3); ldptr(A, 44, 1); ldptr(A, 20, 10)
    ldptr(A, 60, 4); ldptr(A, 62, 6); ldptr(A, 12, 8); ldptr(A, 16, 9)
    A("v_lshrrev_b32 v1, 6, v0")
    A("v_and_b32 v0, 63, v0")
    A("v_readfirstlane_b32 s3, v1")
    A("v_lshlrev_b32 v1, 4, v0")
    A("s_and_b32 s28, s2, 7\ns_lshr_b32 s29, s2, 3\ns_and_b32 s30, s29, 3\ns_lshr_b32 s29, s29, 2")
    A("s_lshl_b32 s28, s28, 3\ns_add_u32 s28, s28, s29")
    A("s_lshl_b32 s31, s30, 2\ns_add_u32 s31, s31, s3")
    A("s_mov_b32 s49, 0xffff0000")
    A(f"s_lshl_b32 s24, s28, 7\ns_add_u32 s24, s24, {L.FLAGS}")
    A("s_mov_b32 s25, 0x60000")
    A("s_waitcnt lgkmcnt(0)")
    fix_srd(A, 8, 2 * L.T * 1024); fix_srd(A, 40, 0x100000); fix_srd(A, 44, 512 * 3072); fix_srd(A, 20, L.WS_BYTES)
    fix_srd(A, 12, 2 * L.T * 1024); fix_srd(A, 16, 256)
    A("PF_P0:")
    m.nonce_make(142)
    gu = GU(A, vm, lk)
    phase_p0(m, gu)
    c0, c1 = gelu_consts()
    A(f"v_mov_b32 v6, {hex(f2u(c0))}\nv_mov_b32 v7, v6\nv_mov_b32 v8, {hex(f2u(c1))}\nv_mov_b32 v9, v8\nv_mov_b32 v10, 1.0\nv_mov_b32 v11, 1.0")
    A(f"s_lshl_b32 s32, s28, 17\ns_add_u32 s32, s32, {L.XA}")
    for par in range(2):
        A(f"s_lshl_b32 s{66+par}, s31, 15\ns_add_u32 s{66+par}, s{66+par}, {L.W1 + par*16384}")
    gq_ = G4(A, vm, lk, NB=8, wn=2, KS=16, kps=2, NS=5, WD=16, s_act=32, blk_stride=16384, s_w=[66, 67],
             acc0=168, fr0=256, w0=256 + 112, vl16=1, vt=248, st=60, lds0=0, stamps=('A0', 'A1', 'A2'))
    gq_.smap = [106496, 122880, 139264, 73728, 90112]
    gq_.setup()
    RSR = 168
    A(f"v_and_b32 v252, 15, v0\nv_lshlrev_b32 v252, 3, v252")
    A(f"s_lshl_b32 s48, s28, 10\ns_add_u32 s48, s48, {L.RS - 128}")
    A(f"s_cmp_eq_u32 s28, 0\ns_cselect_b32 s38, {OOB}, s48\ns_cmp_eq_u32 s28, 63\ns_cselect_b32 s39, {OOB}, s48")
    def rsl():
        return [("RS", f"buffer_load_dwordx2 {v(RSR+2*b,2)}, v252, s[20:23], s{38 if b == 0 else (39 if b == 9 else 48)} offen offset:{b*128}{LL}") for b in range(10)]
    def extraU(k):
        out = []
        if k == 3:
            out.append(lambda: m.gsignal(0, 14))
        if k == 10:
            out.append(lambda: m.gpoll_issue(0, 224))
        if k == 12:
            out.append(lambda: m.gpoll_check(0, 224))
        if k == 13:
            assert any("GOK" in x.text for x in A.lines)
            pl = gq_.prefetch_list()
            cut = next(i for i, y in enumerate(pl) if y[0] == ("D", id(gq_), 3)) - 1
            out += rsl() + pl[:cut]
            rest.extend(pl[cut:])
        return out
    rest = []
    dq = gu.run(extraU, start=False, keep=True)
    assert not any(y[0] == "RS" for y in dq)
    dq += rest
    def dripq(n=1):
        while dq and n > 0:
            y = dq.pop(0)
            gq_.emit(tuple(y))
            if y[0] is not None:
                n -= 1
    A("PF_U_END:")
    A("s_barrier")
    lat = late_issue(m, 232)
    TAz = 256 + 176
    tl = c4_tload(A, vm, TAz, 0, sr=68)
    SU, SG = gu.accs[(0, 0)], 188
    for i in range(8):
        A(f"v_mov_b32_dpp {v(SU+i)}, {v(SU+i)} row_newbcast:0 row_mask:0xf bank_mask:0xf")
        A(f"v_mov_b32_dpp {v(SG+i)}, {v(gu.accs[(0,2)]+i)} row_newbcast:0 row_mask:0xf bank_mask:0xf")
    def fold(x, sn, b):
        rs = v(RSR + 2 * b, 2)
        for e in range(4):
            A(f"v_pk_fma_f32 {v(x+2*e,2)}, {v(sn+2*e,2)}, {rs}, {v(x+2*e,2)} op_sel:[0,1,0] op_sel_hi:[1,1,1]")
        for e in range(4):
            A(f"v_pk_mul_f32 {v(x+2*e,2)}, {v(x+2*e,2)}, {rs} op_sel_hi:[1,0]")
    tmp = list(range(196, 204, 2))
    st = 204
    for i in (18, 19, 22, 23):
        A(f"v_mov_b32 {v(st+i)}, 0")
    vm.wait("RS")
    for b in range(10):
        gq = gu.accs[(b, 2)]
        fold(gq, SG, b)
        dripq(1)
        gelu_pk(A, list(range(gq, gq + 8, 2)), tmp, lambda: dripq(1))
        s1, s2 = st + (b >> 2) * 8 + (b & 3), st + (b >> 2) * 8 + 4 + (b & 3)
        A(f"v_pk_add_f32 v[12:13], {v(gq,2)}, {v(gq+2,2)}\nv_pk_mul_f32 v[14:15], {v(gq,2)}, {v(gq,2)}")
        A(f"v_pk_add_f32 v[12:13], v[12:13], {v(gq+4,2)}\nv_pk_fma_f32 v[14:15], {v(gq+2,2)}, {v(gq+2,2)}, v[14:15]")
        A(f"v_pk_add_f32 v[12:13], v[12:13], {v(gq+6,2)}\nv_pk_fma_f32 v[14:15], {v(gq+4,2)}, {v(gq+4,2)}, v[14:15]")
        A(f"v_add_f32 {v(s1)}, v12, v13\nv_pk_fma_f32 v[14:15], {v(gq+6,2)}, {v(gq+6,2)}, v[14:15]")
        A(f"v_add_f32 {v(s2)}, v14, v15")
    A(f"s_lshl_b32 s33, s28, 4\ns_add_u32 s33, s33, s31\ns_mul_i32 s33, s33, 1536\ns_add_u32 s33, s33, {L.GST}")
    A("v_lshlrev_b32 v12, 3, v0")
    for h in range(3):
        for o in (0, 4):
            x = st + h * 8 + o
            A(f"v_permlane32_swap_b32 {v(x)}, {v(x+2)}")
            A(f"v_permlane32_swap_b32 {v(x+1)}, {v(x+3)}")
            A(f"v_add_f32 {v(x)}, {v(x)}, {v(x+2)}")
            A(f"v_add_f32 {v(x+1)}, {v(x+1)}, {v(x+3)}")
            A(f"v_permlane16_swap_b32 {v(x)}, {v(x+1)}")
            A(f"v_add_f32 {v(x)}, {v(x)}, {v(x+1)}")
        x = st + h * 8
        A(f"v_mov_b32 {v(x+1)}, {v(x+4)}")
        vm.issue("sS", f"buffer_store_dwordx2 {v(x,2)}, v12, s[20:23], s33 offen offset:{h*512}{SL}")
    for b in range(1, 9):
        fold(gu.accs[(b, 0)], SU, b)
        dripq(1)
    dripq(100)
    A.stamp('g')
    def extraA(k):
        out = []
        if k == 3:
            out.append(lambda: m.signal(F_S, "sS", 12))
        if k == 7:
            out += lat
        return out
    gq_.run(extraA)
    A("s_lshl_b32 s48, s28, 17\ns_lshl_b32 s33, s31, 10\ns_add_u32 s48, s48, s33")
    A(f"s_add_u32 s33, s48, {L.QP}")
    for b in range(8):
        q = gq_.accs[(b, 0)]
        for i in range(4):
            A(f"v_cvt_pk_bf16_f32 {v(q+i)}, {v(q+2*i)}, {v(q+2*i+1)}")
        vm.issue("sQ", f"buffer_store_dwordx4 {v(q,4)}, v1, s[20:23], s33 offen{SL}")
        A("s_add_u32 s33, s33, 16384")
    m.poll_issue(F_S, False, 13)
    dq += tl
    UR = 16
    tmp = list(range(240, 248, 2))
    for b in range(1, 9):
        u = gu.accs[(b, 0)]
        gelu_pk(A, list(range(u, u + 8, 2)), tmp, lambda: dripq(1))
        for i in range(4):
            A(f"v_cvt_pk_bf16_f32 {v(UR+4*(b-1)+i)}, {v(u+2*i)}, {v(u+2*i+1)}")
        if b == 5:
            m.signal(F_Q, "sQ", 12)
    A.stamp('u')
    def kv(tile):
        for x in kv_dma_ops():
            if "buffer" in x:
                vm.issue(("KV", tile), x)
            else:
                A(x)
    LB = 65536
    FST = LB + 4 * T4B
    STT = FST + 40960
    B0, D0, OUT, VA_ = 168, 88, 48, 80
    S0 = 48
    A("s_lshl_b32 s33, s3, 6\nv_add_u32 v14, s33, v0\nv_lshlrev_b32 v15, 3, v14")
    A("s_lshl_b32 s33, s28, 7\ns_sub_u32 s33, s33, 16\nv_add_u32 v14, s33, v14")
    A(f"s_mul_i32 s33, s28, {16*1536}\ns_add_u32 s33, s33, {L.GST}")
    m.poll_check(F_S, False, 13)
    for i in range(16):
        vm.issue("ST", f"buffer_load_dwordx2 {v(S0+2*i,2)}, v15, s[20:23], s33 offen offset:{(i&1)*1536}{LL}")
        if i & 1:
            A("s_add_u32 s33, s33, 3072")
    late_compute(m, 168, 200, 240, 232)
    m.poll_issue(F_Q, False, 13)
    c4_addr(A, LB, VA_)
    A(f"s_mul_i32 s45, s3, 10240\ns_add_u32 s45, s45, {FST}\nv_add_u32 v84, s45, v1")
    A("v_lshrrev_b32 v85, 2, v0\nv_lshlrev_b32 v85, 4, v85\nv_and_b32 v12, 3, v0\nv_lshl_add_u32 v85, v12, 8, v85\nv_add_u32 v85, s45, v85")
    A("s_lshr_b32 s32, s28, 5")
    A("s_mul_i32 s33, s30, 31\ns_cmp_lg_u32 s30, 0\ns_addc_u32 s33, s33, 0")
    A("s_lshl_b32 s34, s32, 7\ns_add_u32 s33, s33, s34\ns_lshl_b32 s46, s33, 15")
    A(f"s_add_u32 s46, s46, {L.XA}")
    A("s_lshl_b32 s47, s3, 12")
    A("s_and_b32 s35, s3, 1\ns_lshl_b32 s35, s35, 7")
    A(f"v_xor_b32 {v(DV0)}, s35, v1\nv_add_u32 {v(DV0)}, s47, {v(DV0)}\nv_add_u32 {v(DV1)}, 16384, {v(DV0)}")
    A("v_and_b32 v12, 4095, v14")
    A(f"s_movk_i32 s42, {L.T}\ns_movk_i32 s43, 8192")
    A("v_cmp_gt_u32 vcc, s42, v12")
    A("v_cmp_gt_u32 s[34:35], s43, v14")
    A("s_and_b64 vcc, vcc, s[34:35]")
    A(f"v_add_u32 v15, {STT}, v15")
    vm.wait("ST")
    for i in range(1, 16):
        A(f"v_pk_add_f32 {v(S0,2)}, {v(S0,2)}, {v(S0+2*i,2)}")
    A(f"v_mul_f32 {v(S0)}, {hex(f2u(1/512))}, {v(S0)}")
    A(f"v_mul_f32 {v(S0+1)}, {hex(f2u(1/512))}, {v(S0+1)}")
    A(f"v_fma_f32 {v(S0+1)}, -{v(S0)}, {v(S0)}, {v(S0+1)}")
    A(f"v_max_f32 {v(S0+1)}, 0, {v(S0+1)}")
    A(f"v_add_f32 {v(S0+1)}, {hex(f2u(1e-5))}, {v(S0+1)}")
    A(f"v_rsq_f32 {v(S0+2)}, {v(S0+1)}")
    A(f"v_mul_f32 {v(S0+3)}, {v(S0)}, {v(S0+2)}")
    A(f"v_sub_f32 {v(S0+3)}, 0, {v(S0+3)}")
    A(f"v_cndmask_b32 {v(S0+2)}, 0, {v(S0+2)}, vcc")
    A(f"v_cndmask_b32 {v(S0+3)}, 0, {v(S0+3)}, vcc")
    A(f"ds_write_b64 v15, {v(S0+2,2)}")
    A(f"v_and_b32 v12, 15, v0\nv_lshlrev_b32 v12, 3, v12\nv_add_u32 v12, {STT}, v12")
    A("s_waitcnt lgkmcnt(0)")
    A("s_barrier")
    kv(0)
    kv(1)
    TB = 232
    for b in range(10):
        lk.issue(("T", b), f"ds_read_b64 {v(TB+2*b,2)}, v12 offset:{b*128}")
    m.poll_check(F_Q, False, 13)
    A(f"s_lshl_b32 s36, s28, 2\ns_add_u32 s36, s36, s3\ns_lshl_b32 s36, s36, 15\ns_add_u32 s36, s36, {L.QP}\ns_add_u32 s37, s36, 16384")
    ql = []
    for j in range(16):
        for qa in range(2):
            ql.append(lambda j=j, qa=qa: vm.issue(("Q", j), f"buffer_load_dwordx4 {R(Qr(qa,j),4)}, v1, s[20:23], s{36+qa} offen offset:{(j&3)*1024}{LL}"))
        if j % 4 == 3:
            ql.append(lambda: A("s_add_u32 s36, s36, 4096\ns_add_u32 s37, s37, 4096"))
    for b in range(10):
        lk.wait(("T", b))
        gq = gu.accs[(b, 2)]
        for e in range(4):
            A(f"v_pk_fma_f32 {v(gq+2*e,2)}, {v(gq+2*e,2)}, {v(TB+2*b,2)}, {v(TB+2*b,2)} op_sel:[0,0,1] op_sel_hi:[1,0,1]")
        for e in range(4):
            A(f"v_cvt_pk_bf16_f32 {v(gq+e)}, {v(gq+2*e)}, {v(gq+2*e+1)}")
        lk.issue("wr", f"ds_write_b128 v84, {v(gq,4)} offset:{b*1024}")
        for u in range(2):
            lk.issue(("X", b), f"ds_read_b64_tr_b16 {v(B0+4*b+2*u,2)}, v85 offset:{b*1024+u*8}")
        ql.pop(0)()
        if b >= 1:
            lk.wait(("X", b - 1))
            for u in range(2):
                c4_write(lk, VA_, B0 + 4 * (b - 1) + 2 * u, b - 1, u)
    lk.wait(("X", 9))
    for u in range(2):
        c4_write(lk, VA_, B0 + 36 + 2 * u, 9, u)
    A.stamp('zc0')
    c4_core(A, lk, TAz, B0, D0, VA_, OUT, False, ql)
    A.stamp('zc1')
    A(f"s_add_u32 s41, s48, {L.Z}")
    for b in range(8):
        lk.wait(("O", b))
        t = 88 + 16 * (b & 1)
        for e in range(4):
            A(f"v_lshlrev_b32 {v(t+2*e)}, 16, {v(OUT+4*b+e)}\nv_and_b32 {v(t+2*e+1)}, s49, {v(OUT+4*b+e)}")
            A(f"v_lshlrev_b32 {v(t+8+2*e)}, 16, {v(UR+4*b+e)}\nv_and_b32 {v(t+8+2*e+1)}, s49, {v(UR+4*b+e)}")
        for e in range(4):
            A(f"v_pk_mul_f32 {v(t+2*e,2)}, {v(t+2*e,2)}, {v(t+8+2*e,2)}")
        for e in range(4):
            A(f"v_cvt_pk_bf16_f32 {v(128+4*b+e)}, {v(t+2*e)}, {v(t+2*e+1)}")
        vm.issue("sZ", f"buffer_store_dwordx4 {v(128+4*b,4)}, v1, s[20:23], s41 offen{SC}")
        A("s_add_u32 s41, s41, 16384")
    A.stamp('z')
    A(f"v_mov_b32 {v(IT)}, 0\ns_lshl_b32 s33, s3, 8\ns_add_u32 s33, s33, {FLG}\nv_lshlrev_b32 {v(FW)}, 2, v0\nv_add_u32 {v(FW)}, s33, {v(FW)}")
    A(f"v_and_b32 {v(FR)}, 3, v0\nv_lshlrev_b32 {v(FR)}, 8, {v(FR)}\nv_add_u32 {v(FR)}, {FLG}, {v(FR)}")
    A(f"ds_write_b32 {v(FW)}, {v(IT)}")
    vm.wait(("KV", 1))
    A("s_waitcnt lgkmcnt(0)")
    A("s_barrier")
    for x in kv_dma_ops()[:9]:
        if "buffer" in x:
            vm.issue(("KV", 2), x)
        else:
            A(x)
    A("s_cmp_eq_u32 s30, 0\ns_addc_u32 s44, 31, 0")
    A(f"s_mov_b32 s45, {hex(f2u(THRESH))}")
    A(f"v_mov_b32 {v(KA0)}, {v(L16)}")
    A(f"v_xor_b32 {v(KA1)}, 128, {v(L16)}")
    m.gsignal(1, 120)
    sc = Sched(A)
    for mm_ in range(8):
        sc.issue(("K", mm_), kread(mm_, 0))
    A(f"v_lshrrev_b32 {v(T0)}, 2, v0")
    A(f"v_bfe_u32 {v(T0+1)}, v0, 1, 1")
    A(f"v_lshlrev_b32 {v(T0+2)}, 3, {v(T0+1)}")
    A(f"v_xor_b32 {v(T0)}, {v(T0)}, {v(T0+2)}")
    A(f"v_lshlrev_b32 {v(T0)}, 4, {v(T0)}")
    A(f"v_lshl_add_u32 {v(T0)}, {v(T0+1)}, 12, {v(T0)}")
    A(f"v_and_b32 {v(T0+1)}, 1, v0")
    A(f"v_lshl_add_u32 {v(VA)}, {v(T0+1)}, 3, {v(T0)}")
    A(f"v_xor_b32 {v(VA)}, 0x10000, {v(VA)}")
    A(f"v_mov_b32 {v(LS0)}, 0\nv_mov_b32 {v(LS1)}, 0")
    A(f"s_lshl_b32 s32, s28, 17\ns_add_u32 s32, s32, {L.Z - 16384}")
    for par in range(2):
        A(f"s_lshl_b32 s{60+par}, s31, 15\ns_add_u32 s{60+par}, s{60+par}, {L.W2 + (32+par)*16384}")
    e1 = G4(A, vm, lk, NB=10, wn=2, KS=16, kps=2, NS=8, WD=16, s_act=32, blk_stride=16384, s_w=[60, 61],
            acc0=16, fr0=256 + 128, w0=256, vl16=1, vt=116, st=50, lds0=0, swap=True, dfl=LL, stamps=('E0', 'E1', 'Ex'), halo=True)
    e1.setup()
    for n in range(32):
        j, ka = n >> 1, n & 1
        if ka == 0:
            c_ = vm.count_for(("Q", j))
            sc.wait(("K", n + 1), f"vmcnt({c_}) " if c_ is not None else "")
        for qa in range(2):
            sr = Sreg(0, ka, qa)
            c = "0" if j == 0 else v(sr, 4)
            A(f"{MF} {v(sr,4)}, {v(ring(n),4)}, {R(Qr(qa,j),4)}, {c}")
        if n + 8 < 32:
            sc.issue(("K", n + 8), kread(n + 8, 0))
        else:
            sc.issue(("K", n + 8 - 32), kread(n + 8 - 32, 1))
    m.signal(F_Z, "sZ", T0 + 4)
    for qa in range(2):
        rowmax(A, 0, qa, T0 + qa, T0 + 2)
        for ka in range(2):
            for r in range(4):
                x = Sreg(0, ka, qa) + r
                A(f"v_sub_f32 {v(x)}, {v(x)}, {v(T0+qa)}")
        for r in range(4):
            A(f"v_sub_f32 {v(NEGM+4*qa+r)}, 0, {v(T0+qa)}")
    sc.wait(("K", 1))
    q0 = list(sc.q)
    if "delay" in EXP:
        for _ in range(2):
            A("s_sleep 100")
    A.stamp('loop')
    half(A, sc, 0, False, "F0", ["s_sub_u32 s44, s44, 1", "s_nop 0", "s_branch LOOP1"], first=True)
    assert sc.q == q0, (sc.q, q0)
    A(".p2align 6")
    A("LOOP:")
    half(A, sc, 0, False, "L0", ["s_sub_u32 s44, s44, 1", "s_cmp_eq_u32 s44, 2", "s_cbranch_scc1 PRE1"])
    assert sc.q == q0
    A("LOOP1:")
    half(A, sc, 1, False, "L1", ["s_sub_u32 s44, s44, 1", "s_cmp_lg_u32 s44, 2", "s_cbranch_scc1 LOOP"])
    assert sc.q == q0
    def groups(items):
        out, cur = [], []
        for x in items:
            isv = (x[0] is not None) if isinstance(x, tuple) else ("buffer" in x)
            if isv:
                cur.append(x if isinstance(x, tuple) else (lambda x=x: vm.issue("ZT", x)))
                out.append(cur); cur = []
            else:
                cur.append(x[1] if isinstance(x, tuple) else x)
        return out, cur
    def endgame(p):
        vm.q = ["KVX"] * 8
        sc.q = list(q0)
        d1 = kv_dma_ops()
        d2 = kv_dma_ops()[:10]
        d2 = [x.replace("s46", "s32") for x in d2]
        d2[0] = "s_add_u32 m0, s33, 131072"
        d2[5] = f"s_add_u32 m0, s33, {131072+16384}"
        ga, _ = groups(d1 + ["s_lshl_b32 s33, s3, 12", "s_add_u32 s32, s46, 32768"] + d2)
        gw, _ = groups(e1.wlist(16))
        half(A, sc, p, False, f"P{p}", pre=(ga, gw[:15]))
        gt, _ = groups(kv_dma_ops()[:10])
        half(A, sc, p ^ 1, True, f"T{p^1}", tailfill=gt + gw[15:])
    endgame(0)
    A("s_branch EPI")
    for t in SPINS:
        spin(A, t)
    for t in ("L0", "L1"):
        sv = list(vm.q)
        A(f"HOOK{t}:")
        A(f"s_cmp_lg_u32 s44, 6\ns_cbranch_scc1 HK5{t}")
        A.stamp('r6')
        m.poll_issue(F_Z, True, 120)
        m.gpoll_issue(1, 112)
        A(f"s_branch HRET{t}")
        A(f"HK5{t}:")
        A(f"s_cmp_lg_u32 s44, 5\ns_cbranch_scc1 HK3{t}")
        vm.q = []
        m.poll_check(F_Z, True, 120)
        m.gpoll_check(1, 112)
        m.pf("LOOP", "PF_END", 120)
        if "local" in EXP:
            A("s_lshl_b32 s33, s28, 2\ns_add_u32 s33, s33, s3")
            A(f"s_lshl_b32 s36, s30, 23\ns_lshl_b32 s37, s33, 15\ns_add_u32 s36, s36, s37\ns_add_u32 s36, s36, {L.PO}")
            A(f"s_cmp_eq_u32 s3, s30\ns_cselect_b32 s36, {OOB}, s36\nv_lshlrev_b32 v120, 7, v0")
            for i in range(4):
                A("buffer_load_dword v121, v120, s[20:23], s36 offen sc1\ns_add_u32 s36, s36, 8192")
            A("v_lshrrev_b32 v122, 3, v0\nv_lshlrev_b32 v122, 15, v122\nv_and_b32 v123, 7, v0\nv_lshl_add_u32 v122, v123, 7, v122")
            A(f"s_lshl_b32 s36, s28, 18\ns_lshl_b32 s37, s31, 10\ns_add_u32 s36, s36, s37\ns_add_u32 s36, s36, {L.MM}\ns_add_u32 s37, s36, 16384")
            A("buffer_load_dword v121, v122, s[20:23], s36 offen sc1\nbuffer_load_dword v121, v122, s[20:23], s37 offen sc1")
        A(f"s_branch HRET{t}")
        A(f"HK3{t}:")
        A(f"s_cmp_lg_u32 s44, 3\ns_cbranch_scc1 HRET{t}")
        A(f"s_lshl_b32 s46, s28, 17\ns_add_u32 s46, s46, {L.Z}\ns_and_b32 s59, s47, 0x18000")
        A(f"s_branch HRET{t}")
        vm.q = sv
    A("PRE1:")
    endgame(1)
    A("EPI:")
    A.stamp('epi')
    vm.wait("ZT")
    A("s_barrier")
    A(f"s_lshl_b32 s32, s28, 17\ns_add_u32 s32, s32, {L.Z - 16384}\ns_cmp_eq_u32 s28, 0\ns_cselect_b32 s34, {OOB}, s32")
    A(f"s_add_u32 s32, s32, {8*16384}\ns_cmp_eq_u32 s28, 63\ns_cselect_b32 s35, {OOB}, s32")
    A("s_add_u32 s47, s47, 32768\ns_and_b32 s47, s47, 0x1ffff\ns_mov_b32 m0, s47")
    for i in range(4):
        vm.issue("ZH", f"buffer_load_dwordx4 {v(DV0)}, s[20:23], s34 offen offset:{i*1024} lds")
    A("s_add_u32 m0, s47, 16384")
    for i in range(4):
        vm.issue("ZH", f"buffer_load_dwordx4 {v(DV1)}, s[20:23], s35 offen offset:{i*1024} lds")
    for qa in range(2):
        x = LS0 + qa
        for lv in (16, 32):
            A(f"v_mov_b32 {v(T0)}, {v(x)}")
            A(f"v_permlane{lv}_swap_b32 {v(x)}, {v(T0)}")
            A(f"v_add_f32 {v(x)}, {v(x)}, {v(T0)}")
    A(f"v_and_b32 {v(T0)}, 16, v0")
    A(f"v_cmp_eq_u32 vcc, 0, {v(T0)}")
    A(f"v_cndmask_b32 {v(T0+1)}, {v(NEGM+4)}, {v(NEGM)}, vcc")
    A(f"v_cndmask_b32 {v(T0+2)}, {v(LS1)}, {v(LS0)}, vcc")
    A(f"v_sub_f32 {v(T0+1)}, 0, {v(T0+1)}")
    A(f"v_cmp_gt_u32 vcc, 32, v0")
    A(f"v_cndmask_b32 v124, {v(T0+2)}, {v(T0+1)}, vcc")
    A(f"v_lshlrev_b32 v125, 2, v0")
    for p_ in range(5):
        if p_ == 3:
            A("s_mov_b32 s32, 131072")
        else:
            A(f"s_add_u32 s32, s59, {32768*min(p_,3)}\ns_and_b32 s32, s32, 0x1ffff")
        A(f"v_add_u32 {v(2+2*p_)}, s32, v1\nv_xor_b32 {v(3+2*p_)}, 128, {v(2+2*p_)}")
    def zaddr(b, k):
        p_, h_ = {0: (4, 0), 9: (4, 1)}.get(b, ((b - 1) >> 1, (b - 1) & 1))
        return f"{v(2+2*p_+((k>>2)&1))} offset:{h_*16384+k*1024}"
    seq = [(b, k) for k in range(16) for b in range(1, 9)] + [(b, k) for k in range(16) for b in (0, 9)]
    NRG = 7
    def rg(i): return 96 + 4 * (i % NRG)
    def zread(i):
        lk.issue(("Z", i), f"ds_read_b128 {v(rg(i),4)}, {zaddr(*seq[i])}")
    for i in range(NRG):
        zread(i)
    A("s_lshl_b32 s33, s28, 2\ns_add_u32 s33, s33, s3")
    A(f"s_lshl_b32 s35, s30, 8\ns_add_u32 s35, s35, s33\ns_lshl_b32 s35, s35, 8\ns_add_u32 s35, s35, {L.PML}")
    A(f"s_lshl_b32 s36, s30, 23\ns_lshl_b32 s37, s33, 15\ns_add_u32 s36, s36, s37\ns_add_u32 s36, s36, {L.PO}")
    A(f"s_cmp_eq_u32 s3, s30\ns_cselect_b32 s36, {OOB}, s36\ns_add_u32 s37, s36, 16384")
    vm.issue("sP", f"buffer_store_dword v124, v125, s[20:23], s35 offen{SL}")
    pk = []
    tmpr = [12, 14, 126]
    tcount = 0
    for f in range(16):
        for qa in range(2):
            d = 128 + 8 * f + 4 * qa
            for i in range(4):
                o = Or(2 * f + (i >> 1), qa) + 2 * (i & 1)
                if o >= 256:
                    t = tmpr[tcount % 3]; tcount += 1
                    pk.append((None, f"v_accvgpr_read_b32 {v(t)}, {R(o)}"))
                    pk.append((None, f"v_accvgpr_read_b32 {v(t+1)}, {R(o+1)}"))
                    o = t
                pk.append((None, f"v_cvt_pk_bf16_f32 {v(d+i)}, {v(o)}, {v(o+1)}"))
            pk.append(("sP", f"buffer_store_dwordx4 {v(d,4)}, v1, s[20:23], s{36+qa} offen offset:{(f&3)*1024}{SM}"))
        if f % 4 == 3:
            pk.append((None, "s_add_u32 s36, s36, 4096"))
            pk.append((None, "s_add_u32 s37, s37, 4096"))
    TA = 256 + 208
    pk += c4_tload(A, vm, TA, 64)
    A("PF_ATT_END:")
    A.stamp('D')
    vm.wait(("W", id(e1), 15))
    for i, (b, k) in enumerate(seq):
        if i % 2 == 0:
            lk.wait(("Z", i + 1))
        for u in range(2):
            acc = e1.accs[(b, u)]
            A(f"{MF} {v(acc,4)}, {v(rg(i),4)}, {R(e1.wreg(u,k),4)}, {'0' if k == 0 else v(acc,4)}")
            slots = 2
            mem = False
            if u == 1:
                if i + NRG == 128:
                    vm.wait("ZH")
                    A("s_barrier")
                if i + NRG < len(seq):
                    zread(i + NRG); slots -= 1; mem = True
                if i % 2 == 1:
                    slots -= 1
            while pk and slots > 0:
                if pk[0][0] is not None and mem:
                    break
                t_, x = pk.pop(0)
                if t_ is None:
                    A(x)
                else:
                    vm.issue(t_, x); mem = True
                slots -= 1
    assert not pk
    A.stamp('Ex')
    A("s_barrier")
    CV = 8
    c4_addr(A, 0, CV)
    A("v_add_u32 v118, 0x10000, v1")
    OWN = 65536
    A("s_cmp_lg_u32 s3, s30\ns_cbranch_scc1 NOT_OWN")
    for f in range(16):
        for qa in range(2):
            A(f"ds_write_b128 v118, {v(128+8*f+4*qa,4)} offset:{qa*16384+f*1024}")
        if f % 4 == 3:
            A("s_waitcnt lgkmcnt(4)")
    A("NOT_OWN:")

    def conv_store(gg, half_, TA_, pre, tag):
        for b in range(10):
            for u in range(2):
                q = gg.accs[(b, u)]
                for i in range(2):
                    A(f"v_cvt_pk_bf16_f32 {v(q+i)}, {v(q+2*i)}, {v(q+2*i+1)}")
                c4_write(lk, CV, q, b, u)
            if b % 4 == 3:
                lk.wait("wr")
        vm.wait("CW")
        if pre:
            pre()
        c4_core(A, lk, TA_, 128, 16, CV, 80, True, None)
        A(f"s_lshl_b32 s40, s28, 18\ns_lshl_b32 s41, s31, 10\ns_add_u32 s40, s40, s41\ns_add_u32 s40, s40, {L.MM + half_*16384}")
        for b in range(8):
            lk.wait(("O", b))
            vm.issue(tag, f"buffer_store_dwordx4 {v(80+4*b,4)}, v1, s[20:23], s40 offen{SM}")
            A("s_add_u32 s40, s40, 32768")

    conv_store(e1, 1, TA, lambda: m.signal(F_P, "sP", 12, sub=3), "sML")
    m.poll_issue(F_P, False, 13, sub=30)
    A.stamp('E2')
    A(f"s_lshl_b32 s32, s28, 18\ns_add_u32 s32, s32, {L.MM + 16384}")
    for par in range(2):
        A(f"s_lshl_b32 s{60+par}, s31, 16\ns_add_u32 s{60+par}, s{60+par}, {L.W3 + par*32768 + 16384}")
    gG = G4(A, vm, lk, NB=8, wn=2, KS=16, kps=2, NS=8, WD=8, s_act=32, blk_stride=32768, s_w=[60, 61],
            acc0=256 + 192, fr0=128, w0=256, vl16=1, vt=116, st=50, lds0=0, dfl=LL, stamps=('G0', 'G1', 'Gx'))
    gG.setup()
    for x in gG.wlist(8):
        x()
    A("s_lshl_b32 s33, s28, 2\ns_add_u32 s33, s33, s30")
    A("v_and_b32 v4, 15, v0\nv_lshlrev_b32 v4, 2, v4")
    A(f"s_lshl_b32 s34, s33, 8\ns_lshr_b32 s35, s3, 1\ns_lshl_b32 s35, s35, 6\ns_add_u32 s34, s34, s35\ns_add_u32 s34, s34, {L.PML}")
    A("s_lshl_b32 s48, s33, 15\ns_lshl_b32 s35, s3, 13\ns_add_u32 s48, s48, s35")
    A(f"s_add_u32 s35, s35, {OWN}\nv_add_u32 v5, s35, v1")
    for sp in range(4):
        A(f"s_add_u32 s35, s30, {sp}\ns_and_b32 s35, s35, 3\ns_lshl_b32 s{36+sp}, s35, 16\ns_add_u32 s{36+sp}, s{36+sp}, s34")
        if sp:
            A(f"s_lshl_b32 s35, s35, 23\ns_add_u32 s35, s35, s48\ns_add_u32 s{62+2*sp}, s35, {L.PO}\ns_add_u32 s{63+2*sp}, s{62+2*sp}, 4096")
    m.signal(F_ML, "sML", 12)
    A("s_waitcnt lgkmcnt(0)\ns_barrier")
    for f in range(8):
        lk.issue(("OWN", f), f"ds_read_b128 {v(128+16*f,4)}, v5 offset:{f*1024}")
    m.poll_check(F_P, False, 13, target=4)
    for sp in range(4):
        vm.issue("ML", f"buffer_load_dword {v(64+sp)}, v4, s[20:23], s{36+sp} offen{LL}")
        vm.issue("ML", f"buffer_load_dword {v(68+sp)}, v4, s[20:23], s{36+sp} offen offset:128{LL}")
    def pload(f):
        for sp in range(1, 4):
            vm.issue(("P", f), f"buffer_load_dwordx4 {v(128+16*f+4*sp,4)}, v1, s[20:23], s{62+2*sp+(f>>2)} offen offset:{(f&3)*1024}{LL}")
    for f in range(8):
        pload(f)
        if f == 5:
            m.poll_issue(F_ML, False, 13)
    lk.wait(("OWN", 7))
    vm.wait("ML")
    A("v_max3_f32 v24, v64, v65, v66\nv_max_f32 v24, v24, v67")
    for sp in range(4):
        A(f"v_sub_f32 {v(16+sp)}, {v(64+sp)}, v24")
    for sp in range(4):
        A(f"v_exp_f32 {v(16+sp)}, {v(16+sp)}")
    A("v_mul_f32 v25, v16, v68\nv_fmac_f32 v25, v17, v69\nv_fmac_f32 v25, v18, v70\nv_fmac_f32 v25, v19, v71")
    A("v_rcp_f32 v25, v25")
    A("s_and_b32 s34, s33, 127\ns_cmp_lt_u32 s34, 125\ns_cselect_b32 s34, 1.0, 0")
    A("v_mul_f32 v25, s34, v25")
    wr = [26, 28, 30, 32]
    for sp in range(4):
        A(f"v_mul_f32 {v(wr[sp])}, {v(16+sp)}, v25")
    A(f"s_add_u32 s34, s48, {L.AT}\ns_add_u32 s35, s34, 4096")
    for f in range(8):
        vm.wait(("P", f))
        acc, t, o = 40, 48, 80 + 4 * f
        for sp in range(4):
            raw = 128 + 16 * f + 4 * sp
            for e in range(4):
                A(f"v_lshlrev_b32 {v(t+2*e)}, 16, {v(raw+e)}\nv_and_b32 {v(t+2*e+1)}, s49, {v(raw+e)}")
            for e in range(4):
                if sp == 0:
                    A(f"v_pk_mul_f32 {v(acc+2*e,2)}, {v(t+2*e,2)}, {v(wr[sp],2)} op_sel_hi:[1,0]")
                else:
                    A(f"v_pk_fma_f32 {v(acc+2*e,2)}, {v(t+2*e,2)}, {v(wr[sp],2)}, {v(acc+2*e,2)} op_sel_hi:[1,0,1]")
        for e in range(4):
            A(f"v_cvt_pk_bf16_f32 {v(o+e)}, {v(acc+2*e)}, {v(acc+2*e+1)}")
        vm.issue("sAT", f"buffer_store_dwordx4 {v(o,4)}, v1, s[20:23], s{34+(f>>2)} offen offset:{(f&3)*1024}{SL if 'atl' in EXP else SC}")
        if f == 5:
            m.poll_check(F_ML, False, 13)
            A("s_barrier")
            gdl = gG.dlist()
            for x in gdl[:18]:
                x()
    for x in gdl[18:]:
        x()
    A("PF_F_END:")
    A.stamp('F')
    TA = 208
    A(f"s_lshl_b32 s32, s28, 17\ns_add_u32 s32, s32, {L.AT - 16384}")
    for par in range(2):
        A(f"s_lshl_b32 s{70+par}, s31, 15\ns_add_u32 s{70+par}, s{70+par}, {L.W2 + par*16384}")
    gH = G4(A, vm, lk, NB=10, wn=2, KS=16, kps=2, NS=4, WD=16, s_act=32, blk_stride=16384, s_w=[70, 71],
            acc0=16, fr0=128, w0=256 + 64, vl16=1, vt=120, st=62, lds0=0, swap=True, dfl=LL, stamps=('H0', 'H1', 'Hx'), halo=True)
    gH.setup()
    hw = gH.wlist(16)
    tl = c4_tload(A, vm, TA, 32)
    def extraG(k):
        out = hw[3 * k: 3 * k + 3] if k < 12 else []
        if 2 <= k < 12:
            out = out + [tl[k - 2]]
        if k == 2:
            out = [lambda: m.signal(F_AT, "sAT", 12)] + out
        if k == 11:
            out = out + [lambda: m.poll_issue(F_AT, True, 13)]
        if k == 13:
            out = out + [lambda: m.poll_check(F_AT, True, 13)] + gH.dlist()
        return out
    gG.run(extraG)
    A.stamp('G')
    A(f"s_lshl_b32 s32, s28, 18\ns_add_u32 s32, s32, {L.MM}")
    for par in range(2):
        A(f"s_lshl_b32 s{60+par}, s31, 16\ns_add_u32 s{60+par}, s{60+par}, {L.W3 + par*32768}")
    gI = G4(A, vm, lk, NB=8, wn=2, KS=16, kps=2, NS=8, WD=8, s_act=32, blk_stride=32768, s_w=[60, 61],
            acc0=256 + 192, fr0=128, w0=256, vl16=1, vt=116, st=50, lds0=0, dfl=LL, stamps=('I0', 'I1', 'Ix'))
    gI.setup()
    iw = gI.wlist(8)
    gH.run(lambda k: iw[2 * k: 2 * k + 2])
    c4_addr(A, 98304, CV)
    conv_store(gH, 0, TA, None, "sMG")
    A.stamp('H2')
    m.signal(F_MG, "sMG", 12)
    m.poll_issue(F_MG, False, 13)
    XR = 208
    A("v_and_b32 v7, 15, v0\nv_lshlrev_b32 v7, 10, v7\nv_lshrrev_b32 v6, 4, v0\nv_lshl_add_u32 v7, v6, 4, v7")
    A("s_lshr_b32 s33, s28, 5\ns_and_b32 s34, s28, 31\ns_lshl_b32 s34, s34, 7")
    A(f"s_mul_i32 s33, s33, {L.T}\ns_lshl_b32 s35, s31, 6")
    for b in range(8):
        A(f"s_add_u32 s36, s34, {16*b}\ns_add_u32 s37, s36, s33\ns_lshl_b32 s37, s37, 10\ns_add_u32 s37, s37, s35")
        A(f"s_cmp_lt_u32 s36, {L.T}\ns_cselect_b32 s{62+b}, s37, 0x40000000")
    m.poll_check(F_MG, False, 13)
    A("s_barrier")
    for f in gI.dlist():
        f()
    def extraI(k):
        if 2 <= k < 10:
            b = k - 2
            return [(("X", b), f"buffer_load_dwordx4 {v(XR+4*b,4)}, v7, s[8:11], s{62+b} offen")]
        return []
    gI.run(extraI, first_c=None)
    for b in range(8):
        vm.wait(("X", b))
        q = gI.accs[(b, 0)]
        x = XR + 4 * b
        t = 16 + 16 * (b & 1)
        for i in range(8):
            A(f"v_accvgpr_read_b32 {v(t+8+i)}, {R(q+i)}")
        for i in range(4):
            A(f"v_lshlrev_b32 {v(t+2*i)}, 16, {v(x+i)}\nv_and_b32 {v(t+2*i+1)}, s49, {v(x+i)}")
        for i in range(4):
            A(f"v_pk_add_f32 {v(t+2*i,2)}, {v(t+8+2*i,2)}, {v(t+2*i,2)}")
        for i in range(4):
            A(f"v_cvt_pk_bf16_f32 {v(x+i)}, {v(t+2*i)}, {v(t+2*i+1)}")
        vm.issue("S", f"buffer_store_dwordx4 {v(x,4)}, v7, s[12:15], s{62+b} offen")
    A.endpgm()
    A("PF_END:")
    rare(A, 0)
    rare(A, 1)
    assert A.check_branches() == 0
    return name, A.text() + "\n" + kdesc(name, 256, 256, 102), f"; @launch kernel={name} grid=(256,1,1) block=(256,1,1) lds=163840"
```

```python
from asmlib import *
import layout as L
from k0 import srd, xlane_sum, chan_lane
from g4 import *
import math
SC = " sc1"
OOB = 0x7f000000
import os
PFPOS = int(os.environ.get('PFPOS', '0'))
NDRIP0 = int(os.environ.get('NDRIP0', '0'))

def ldptr(A, dst, idx):
    A(f"s_load_dwordx2 s[{dst}:{dst+1}], s[0:1], {idx*8}")

def fix_srd(A, d, nbytes):
    A(f"s_and_b32 s{d+1}, s{d+1}, 0xffff\ns_mov_b32 s{d+2}, {nbytes}\ns_mov_b32 s{d+3}, 0x20000")

def ww_mm(A, AF, BF, AC, red, t0, sh=12):
    for ks in range(4):
        for a in range(2):
            for b in range(2):
                ac = AC + (b * 2 + a) * 4
                A(f"{MF} {v(ac,4)}, {v(AF+(a*4+ks)*4,4)}, {v(BF+(b*4+ks)*4,4)}, {'0' if ks == 0 else v(ac,4)}")
    A(f"s_lshl_b32 s33, s3, {sh}\ns_add_u32 s33, s33, {red}\nv_add_u32 {v(t0)}, s33, v1")
    A(f"s_and_b32 s33, s3, 1\ns_lshl_b32 s33, s33, 11\ns_add_u32 s33, s33, {red}\nv_add_u32 {v(t0+1)}, s33, v1")
    for i in range(4):
        A(f"ds_write_b128 {v(t0)}, {v(AC+4*i,4)} offset:{i*1024}")
    A("s_waitcnt lgkmcnt(0)")
    A("s_barrier")
    for src in range(4):
        for a in range(2):
            A(f"ds_read_b128 {v(AF+(src*2+a)*4,4)}, {v(t0+1)} offset:{(src<<sh)+a*1024}")

def ww_fin(A, vm, AF, BF, scale, base, tag):
    A(f"s_lshr_b32 s33, s2, 4\ns_lshl_b32 s33, s33, 1\ns_and_b32 s34, s3, 1\ns_add_u32 s33, s33, s34\ns_lshl_b32 s33, s33, 14")
    A(f"s_and_b32 s34, s2, 15\ns_lshl_b32 s34, s34, 10\ns_add_u32 s33, s33, s34\ns_add_u32 s33, s33, {base}")
    A("s_waitcnt lgkmcnt(0)")
    for src in range(1, 4):
        for i in range(4):
            A(f"v_pk_add_f32 {v(AF+2*i,2)}, {v(AF+2*i,2)}, {v(AF+src*8+2*i,2)}")
    if scale:
        for i in range(8):
            A(f"v_mul_f32 {v(AF+i)}, {hex(f2u(scale))}, {v(AF+i)}")
    for i in range(4):
        A(f"v_cvt_pk_bf16_f32 {v(BF+i)}, {v(AF+2*i)}, {v(AF+2*i+1)}")
    vm.issue(tag, f"buffer_store_dwordx4 {v(BF,4)}, v1, s[20:23], s33 offen{SC}")

def swz_voffs(A, d, t):
    A(f"v_lshrrev_b32 {v(t)}, 4, v0\nv_and_b32 {v(t+1)}, 15, v0\nv_mul_u32_u24 {v(t+2)}, 3072, {v(t)}")
    for c in range(4):
        A(f"v_add_u32 {v(d+c)}, {4*c}, {v(t)}\nv_xor_b32 {v(d+c)}, {v(d+c)}, {v(t+1)}\nv_lshl_add_u32 {v(d+c)}, {v(d+c)}, 4, {v(t+2)}")

def phase_p0(m, gu):
    A, vm, lk = m.A, m.vm, m.lk
    A.stamp("a0")
    gu.setup()
    A("s_and_b32 s32, s28, 31\ns_lshl_b32 s32, s32, 7\ns_lshl_b32 s33, s31, 3\ns_add_u32 s32, s32, s33")
    A(f"s_lshr_b32 s33, s28, 5\ns_mul_i32 s33, s33, {L.T}\ns_add_u32 s33, s33, s32\ns_lshl_b32 s33, s33, 10")
    A(f"s_cmp_lt_u32 s32, {L.T}\ns_cselect_b32 s33, s33, {OOB}")
    P, Uq = 16, 48
    XRB = 118784
    A(f"s_lshl_b32 s48, s3, 13\ns_add_u32 s48, s48, {XRB}")
    for jj in range(8):
        A(f"s_add_u32 m0, s48, {jj*1024 - jj*128}")
        vm.issue("x", f"buffer_load_dwordx4 v2, s[8:11], s33 offen offset:{jj*128} lds")
    A.stamp("a1")
    m.pf("PF_P0", "PF_ATT_END", 140)
    TL = int(os.environ.get('TLB', '0'))
    if TL:
        A(f"s_lshl_b32 s33, s3, {TL+6}\nv_lshlrev_b32 v142, {TL}, v0")
        vm.issue("pf", "buffer_load_dword v143, v142, s[20:23], s33 offen sc1")
        vm.issue("pf", "buffer_load_dword v143, v142, s[12:15], s33 offen sc1")
    gu.skew()
    QKB = GU.SLOT
    RED = XRB
    swz_voffs(A, 8, 12)
    A(f"s_and_b32 s34, s2, 15\ns_lshr_b32 s35, s2, 4\ns_lshl_b32 s37, s3, 8\ns_mul_i32 s38, s34, {32*3072}\ns_add_u32 s38, s38, s37")
    A(f"s_mul_i32 s39, s35, {32*3072}\ns_add_u32 s39, s39, s37\ns_add_u32 s39, s39, 1024")
    A(f"s_lshl_b32 s36, s3, 14\ns_add_u32 s36, s36, {QKB}")
    dl = []
    def wq(i):
        r = 38 + (i >> 3)
        A(f"s_add_u32 m0, s36, {i*1024}\ns_nop 0")
        vm.issue("wq", f"buffer_load_dwordx4 {v(8+(i&3))}, s[44:47], s{r} offen lds")
        A(f"s_add_u32 s{r}, s{r}, {4*3072}")
    for i in range(16):
        dl.append(lambda i=i: wq(i))
    A("s_cmp_lt_u32 s2, 32")
    A("s_cselect_b32 s68, s60, s62\ns_cselect_b32 s69, s61, s63\ns_cselect_b32 s37, 10, 11\ns_cselect_b32 s32, 0, 32")
    A("s_and_b32 s69, s69, 0xffff\ns_sub_u32 s32, s2, s32\ns_lshl_b32 s33, 1, s37\ns_mul_i32 s70, s33, 31\ns_mov_b32 s71, 0x20000")
    A("s_cmp_lt_u32 s2, 96\ns_cselect_b32 s70, s70, 0")
    A("v_lshrrev_b32 v112, 2, v0\nv_and_b32 v113, 3, v0")
    chan_lane(A, 114, 112, 115)
    A("s_lshr_b32 s33, s32, 1\ns_lshl_b32 s33, s33, 5\ns_and_b32 s34, s32, 1\ns_lshl_b32 s34, s34, 2\ns_add_u32 s33, s33, s34")
    A("v_add_u32 v114, s33, v114\nv_lshlrev_b32 v114, 1, v114")
    A("v_bfrev_b32 v116, -2")
    A("s_lshl_b32 s33, s3, 3\nv_sub_u32 v115, s33, v113")
    TP = 120
    for e in range(12):
        if e < 8:
            A(f"v_add_u32 v117, {e-1}, v115")
        else:
            A(f"v_sub_u32 v117, {23+e}, v113")
        A("v_cmp_gt_i32 vcc, 0, v117\nv_lshlrev_b32 v117, s37, v117\nv_add_u32 v117, v117, v114")
        A(f"v_cndmask_b32 {v(TP+e)}, v117, v116, vcc")
        dl.append(lambda e=e: vm.issue("tp", f"buffer_load_ushort {v(TP+e)}, {v(TP+e)}, s[68:71], 0 offen"))
    def drip(n=1):
        for _ in range(n):
            if dl:
                dl.pop(0)()
    A(f"v_mov_b32 v118, 0\nv_mul_u32_u24 v119, {L.FK}, v0\nv_cmp_gt_u32 vcc, 4, v0\ns_nop 1\nv_cndmask_b32 v119, v116, v119, vcc")
    A(f"s_mul_i32 s32, s30, {4*L.FK}\ns_add_u32 s32, s32, s24")
    dl.append(lambda: vm.issue("p0s", f"buffer_store_dword v118, v119, s[20:23], s32 offen{SC}"))
    gu.setup2()
    A(f"s_lshl_b32 s33, s28, 7\ns_lshl_b32 s34, s31, 3\ns_add_u32 s33, s33, s34")
    A(f"s_lshl_b32 s35, s33, 3\ns_add_u32 s35, s35, {L.RS}")
    A(f"s_lshr_b32 s34, s33, 4\ns_lshl_b32 s34, s34, 14\ns_and_b32 s33, s33, 15\ns_lshl_b32 s33, s33, 4\ns_add_u32 s34, s34, s33\ns_add_u32 s34, s34, {L.XA}")
    A("v_lshlrev_b32 v7, 4, v4\nv_lshl_add_u32 v7, v5, 8, v7")
    A("v_lshlrev_b32 v6, 3, v0\nv_cmp_gt_u32 vcc, 8, v0\ns_nop 1\nv_cndmask_b32 v6, v116, v6, vcc")
    A.stamp("a2")
    if os.environ.get("ORD", "1") == "1":
        drip(16)
        st0 = gu.dma(0); gu.d_issued = 1
        grp = []
        cur = []
        for y in st0:
            cur.append(y)
            if y[0] is not None:
                grp.append(cur); cur = []
        grp[-1] += cur
        tpl = dl[:12]; rest = dl[12:]
        dl[:] = [lambda: [f() for f in tpl[:6]], lambda: [f() for f in tpl[6:]]] + \
                [(lambda g_=g_: [gu.emit(y) for y in g_]) for g_ in grp] + rest
    else:
        gu.issue_stage()
    A.stamp("i0")
    drip(NDRIP0)
    A("v_xor_b32 v142, v4, v5\nv_lshlrev_b32 v142, 4, v142\nv_lshl_add_u32 v142, v4, 7, v142\nv_add_u32 v142, s48, v142")
    vm.wait("x")
    for jj in range(8):
        lk.issue(("x", jj), f"ds_read_b128 {v(P+4*jj,4)}, v142 offset:{jj*1024}")
    drip(2)
    for jj in range(8):
        lk.wait(("x", jj))
        for i in range(4):
            r = P + 4 * jj + i
            u = Uq + 2 * (4 * jj + i)
            A(f"v_lshlrev_b32 {v(u)}, 16, {v(r)}")
            A(f"v_and_b32 {v(u+1)}, s49, {v(r)}")
        drip()
    A.stamp("x")
    acc = 132
    A(f"v_pk_add_f32 {v(acc,2)}, {v(Uq,2)}, {v(Uq+2,2)}")
    A(f"v_pk_add_f32 {v(acc+2,2)}, {v(Uq+4,2)}, {v(Uq+6,2)}")
    for i in range(4, 32):
        a = acc + 2 * (i & 1)
        A(f"v_pk_add_f32 {v(a,2)}, {v(a,2)}, {v(Uq+2*i,2)}")
        if i % 4 == 0: drip()
    A(f"v_pk_add_f32 {v(acc,2)}, {v(acc,2)}, {v(acc+2,2)}")
    A(f"v_add_f32 {v(acc)}, {v(acc)}, {v(acc+1)}")
    xlane_sum(A, acc, acc + 1, (8, 16, 32))
    A(f"v_mul_f32 {v(acc)}, {hex(f2u(-1.0/512))}, {v(acc)}")
    for i in range(32):
        A(f"v_pk_add_f32 {v(Uq+2*i,2)}, {v(Uq+2*i,2)}, {v(acc,2)} op_sel_hi:[1,0]")
        if i % 4 == 0: drip()
    q = 136
    A(f"v_pk_mul_f32 {v(q,2)}, {v(Uq,2)}, {v(Uq,2)}")
    A(f"v_pk_mul_f32 {v(q+2,2)}, {v(Uq+2,2)}, {v(Uq+2,2)}")
    for i in range(2, 32):
        a = q + 2 * (i & 1)
        A(f"v_pk_fma_f32 {v(a,2)}, {v(Uq+2*i,2)}, {v(Uq+2*i,2)}, {v(a,2)}")
        if i % 4 == 0: drip()
    drip(100)
    m.nonce_issue(143)
    A(f"v_pk_add_f32 {v(q,2)}, {v(q,2)}, {v(q+2,2)}")
    A(f"v_add_f32 {v(q)}, {v(q)}, {v(q+1)}")
    xlane_sum(A, q, q + 1, (8, 16, 32))
    A(f"v_mov_b32 {v(q+1)}, {hex(f2u(1e-5))}")
    A(f"v_fmac_f32 {v(q+1)}, {hex(f2u(1.0/512))}, {v(q)}")
    A(f"v_rsq_f32 {v(q)}, {v(q+1)}")
    A(f"v_mov_b32 {v(q+1)}, {v(acc)}")
    vm.issue("p0s", f"buffer_store_dwordx2 {v(q,2)}, v6, s[20:23], s35 offen{SC}")
    for jj in range(8):
        for i in range(4):
            u = Uq + 2 * (4 * jj + i)
            A(f"v_pk_mul_f32 {v(u,2)}, {v(u,2)}, {v(q,2)} op_sel_hi:[1,0]")
        for i in range(4):
            u = Uq + 2 * (4 * jj + i)
            A(f"v_cvt_pk_bf16_f32 {v(P+4*jj+i)}, {v(u)}, {v(u+1)}")
        if jj % 2 == 0 and jj:
            A("s_add_u32 s34, s34, 4096")
        vm.issue("p0s", f"buffer_store_dwordx4 {v(P+4*jj,4)}, v7, s[20:23], s34 offen offset:{(jj&1)*2048}{SC}")
    A.stamp("ln")
    AF, BF, AC = 48, 80, 144
    A("v_and_b32 v14, 15, v0")
    chan_lane(A, 12, 14, 13)
    A("v_and_b32 v13, 15, v12\nv_lshrrev_b32 v14, 4, v0\nv_xor_b32 v13, v13, v14\nv_lshlrev_b32 v13, 4, v13\nv_lshl_add_u32 v13, v12, 8, v13\nv_add_u32 v160, s36, v13")
    for c in range(1, 4):
        A(f"v_xor_b32 {v(160+c)}, {64*c}, v160")
    vm.wait("tp")
    A.stamp("tp")
    for ks in range(4):
        for u in range(2):
            A(f"ds_read_b128 {v(AF+(u*4+ks)*4,4)}, {v(160+(ks^u))} offset:{1024*u}")
            A(f"ds_read_b128 {v(BF+(u*4+ks)*4,4)}, {v(160+(ks^u))} offset:{8192+1024*u}")
        if ks == 1:
            A("s_waitcnt lgkmcnt(0)")
    for i in range(6):
        A(f"v_lshl_or_b32 {v(TP+i)}, {v(TP+2*i+1)}, 16, {v(TP+2*i)}")
    A("v_and_b32 v117, 1, v113\nv_lshlrev_b32 v117, 4, v117\nv_mov_b32 v118, 0x3f80\nv_lshlrev_b32 v118, v117, v118")
    A("v_cmp_gt_u32 vcc, 2, v113\ns_nop 1")
    A(f"v_cndmask_b32 {v(TP+6)}, 0, v118, vcc\nv_cndmask_b32 {v(TP+7)}, v118, 0, vcc")
    A(f"s_mul_i32 s33, s2, 5120\ns_add_u32 s33, s33, {L.TT}\ns_cmp_lt_u32 s2, 96\ns_cselect_b32 s33, s33, {OOB}")
    A("s_add_u32 s34, s33, 4096\ns_lshl_b32 s35, s3, 10\ns_add_u32 s33, s33, s35")
    vm.issue("p0s", f"buffer_store_dwordx4 {v(TP,4)}, v1, s[20:23], s33 offen{SC}")
    vm.issue("p0s", f"buffer_store_dwordx4 {v(TP+4,4)}, v1, s[20:23], s34 offen{SC}")
    A("s_waitcnt lgkmcnt(0)")
    c = 512 ** -0.5 * math.log2(math.e)
    ww_mm(A, AF, BF, AC, RED, 12, 13)
    A.stamp("b0")
    gu.issue_stage()
    ww_fin(A, vm, AF, BF, c, L.W1, "p0s")
    A.stamp("b1")
    m.nonce_get(143)
    vm.wait(("D", id(gu), 0))
    A("s_barrier")
    gu.issue_stage()
    A.stamp("p0c")


def late_issue(m, t):
    A, vm = m.A, m.vm
    ldptr(A, 44, 1); ldptr(A, 40, 2); ldptr(A, 52, 7); ldptr(A, 56, 5)
    swz_voffs(A, t, t + 4)
    A(f"v_lshrrev_b32 {v(t+4)}, 2, v0\nv_and_b32 {v(t+5)}, 3, v0\nv_lshlrev_b32 {v(t+4)}, 10, {v(t+4)}\nv_lshl_add_u32 {v(t+4)}, {v(t+5)}, 4, {v(t+4)}")
    A(f"v_lshrrev_b32 {v(t+5)}, 3, v0\nv_and_b32 {v(t+6)}, 7, v0\nv_lshlrev_b32 {v(t+5)}, 10, {v(t+5)}\nv_lshl_add_u32 {v(t+5)}, {v(t+6)}, 4, {v(t+5)}")
    A("s_and_b32 s34, s2, 15\ns_lshr_b32 s38, s34, 3\ns_lshl_b32 s38, s38, 8\ns_and_b32 s39, s34, 7\ns_lshl_b32 s39, s39, 4\ns_add_u32 s38, s38, s39")
    A("s_mul_i32 s38, s38, 3072\ns_lshl_b32 s37, s3, 8\ns_add_u32 s38, s38, s37\ns_add_u32 s38, s38, 2048")
    A("s_lshr_b32 s35, s2, 4\ns_lshl_b32 s39, s3, 17\ns_lshl_b32 s35, s35, 6\ns_add_u32 s39, s39, s35")
    A("s_lshr_b32 s34, s2, 3\ns_lshl_b32 s34, s34, 5\ns_lshl_b32 s35, s3, 3\ns_add_u32 s34, s34, s35\ns_lshl_b32 s34, s34, 10\ns_and_b32 s35, s2, 7\ns_lshl_b32 s35, s35, 7\ns_add_u32 s37, s34, s35")
    A("s_lshl_b32 s36, s3, 14\ns_lshl_b32 s35, s3, 10")
    A("s_waitcnt lgkmcnt(0)")
    m.lk.q = []
    fix_srd(A, 44, 512 * 3072); fix_srd(A, 40, 0x80000); fix_srd(A, 52, 0x100000); fix_srd(A, 56, 0x80000)
    out = []
    for i in range(8):
        out.append((None, f"s_add_u32 m0, s36, {i*1024}"))
        out.append(("vo", f"buffer_load_dwordx4 {v(t+(i&3))}, s[44:47], s38 offen lds"))
        out.append((None, f"s_add_u32 s38, s38, {4*3072 if i != 3 else (128-12)*3072}"))
    for i in range(8):
        out.append((None, f"s_add_u32 m0, s36, {8192 + i*1024}"))
        out.append(("vo", f"buffer_load_dwordx4 {v(t+4)}, s[40:43], s39 offen lds"))
        out.append((None, "s_add_u32 s39, s39, 16384"))
    out.append((None, "s_add_u32 m0, s35, 65536"))
    out.append(("vo", f"buffer_load_dwordx4 {v(t+5)}, s[52:55], s37 offen lds"))
    out.append((None, f"s_add_u32 m0, s35, {65536+4096}"))
    out.append(("vo", f"buffer_load_dwordx4 {v(t+5)}, s[56:59], s37 offen lds"))
    return out


def late_compute(m, AF, BF, AC, t):
    A, vm = m.A, m.vm
    A(f"v_and_b32 {v(t+5)}, 7, v0\nv_bfe_u32 {v(t+4)}, v0, 3, 1\nv_lshl_add_u32 {v(t+4)}, {v(t+4)}, 4, {v(t+5)}\nv_lshrrev_b32 {v(t+6)}, 4, v0")
    A(f"v_xor_b32 {v(t+5)}, {v(t+5)}, {v(t+6)}\nv_lshlrev_b32 {v(t+5)}, 4, {v(t+5)}\nv_lshl_add_u32 {v(t+5)}, {v(t+4)}, 8, {v(t+5)}")
    A(f"s_lshl_b32 s36, s3, 14\nv_add_u32 {v(t)}, s36, {v(t+5)}")
    for c_ in range(1, 4):
        A(f"v_xor_b32 {v(t+c_)}, {64*c_}, {v(t)}")
    A(f"v_bfe_u32 {v(t+4)}, v0, 2, 2\nv_lshl_add_u32 {v(t+4)}, {v(t+6)}, 3, {v(t+4)}\nv_and_b32 {v(t+5)}, 3, v0\nv_lshlrev_b32 {v(t+5)}, 4, {v(t+5)}")
    A(f"v_lshl_add_u32 {v(t+6)}, {v(t+4)}, 6, {v(t+5)}\nv_add_u32 {v(t+6)}, s36, {v(t+6)}")
    A(f"s_lshr_b32 s34, s3, 1\ns_lshl_b32 s34, s34, 6\ns_and_b32 s33, s3, 1\ns_lshl_b32 s33, s33, 3\ns_add_u32 s34, s34, s33\ns_add_u32 s34, s34, 65536")
    A(f"v_lshl_add_u32 {v(t+7)}, {v(t+4)}, 7, {v(t+5)}\nv_add_u32 {v(t+7)}, s34, {v(t+7)}")
    vm.wait("vo")
    for ks in range(4):
        for u in range(2):
            A(f"ds_read_b128 {v(AF+(u*4+ks)*4,4)}, {v(t+(ks^(2*u)))} offset:{2048*u}")
            r = BF + (u * 4 + ks) * 4
            A(f"ds_read_b64_tr_b16 {v(r,2)}, {v(t+6)} offset:{8192+ks*2048+8*u}")
            A(f"ds_read_b64_tr_b16 {v(r+2,2)}, {v(t+6)} offset:{8192+ks*2048+8*u+256}")
        if ks & 1:
            A("s_waitcnt lgkmcnt(0)")
    ww_mm(A, AF, BF, AC, 0, t, 14)
    TR = BF + 8
    for k in range(2):
        A(f"ds_read_b64_tr_b16 {v(TR+4*k,2)}, {v(t+7)} offset:{k*4096}")
        A(f"ds_read_b64_tr_b16 {v(TR+4*k+2,2)}, {v(t+7)} offset:{k*4096+512}")
    ww_fin(A, vm, AF, BF, None, L.W2, "vos")
    A(f"s_and_b32 s35, s2, 7\ns_lshl_b32 s35, s35, 2\ns_add_u32 s35, s35, s3\ns_lshr_b32 s33, s2, 3\ns_lshl_b32 s33, s33, 10")
    A(f"s_lshl_b32 s32, s35, 15\ns_add_u32 s32, s32, s33\ns_add_u32 s32, s32, {L.W3}")
    vm.issue("vos", f"buffer_store_dwordx4 {v(TR,4)}, v1, s[20:23], s32 offen{SC}")
    A(f"s_lshl_b32 s32, s35, 14\ns_add_u32 s32, s32, s33\ns_add_u32 s32, s32, {L.W2 + 32*16384}\ns_cmp_lt_u32 s2, 128\ns_cselect_b32 s32, s32, {OOB}")
    vm.issue("vos", f"buffer_store_dwordx4 {v(TR+4,4)}, v1, s[20:23], s32 offen{SC}")
    A.stamp("vo")
```

```python
from asmlib import *
import layout as L
from k0 import srd
from g4 import *
from gemm import gelu_consts
from p0 import *
from ph import c4_tload, c4_addr, c4_write, c4_core, RS, T4B
import attn as AT_
from attn import Sreg, ring, kread, vread, softmax_ops, check_ops, rowmax, Sched, spread, DIST, THRESH
from attn import L16, DV0, DV1, KA0, KA1, VA, LS0, LS1, BS0, BS1, T0, NEGM, PP, XT

import os
EXP = os.environ.get("EXP", "pl").split(",")
SC = " sc1"
LL = "" if "pl" in EXP else SC
SL = SC
SM = "" if "local" in EXP else SC
F_S, F_Q, F_Z, F_ML, F_AT, F_MG = 0, 1, 2, 4, 5, 6
F_P = 8
FK = L.FK
OOB = 0x7f000000

def Qr(qa, j): return 256 + (qa * 16 + j) * 4
def Or(dt, qa):
    i = (dt * 2 + qa) * 4
    return 128 + i if i < 128 else 256 + i

class M:
    def __init__(self):
        self.A = Asm()
        self.vm = Q(self.A, "vmcnt", 63)
        self.lk = Q(self.A, "lgkmcnt", 15)

    def signal(self, kind, tag, vt, sub=None):
        A = self.A
        A(f"v_mov_b32 {v(vt)}, 1\ns_add_u32 s26, s24, {kind*FK}")
        if sub is not None:
            A(f"s_lshl_b32 s29, s{sub}, 13\ns_add_u32 s26, s26, s29")
        self.vm.wait(tag)
        A("s_mov_b64 exec, 1")
        self.vm.issue("SIG", f"buffer_atomic_add {v(vt)}, off, s[20:23], s26 sc1")
        A("s_mov_b64 exec, -1")
        A.stamp("sg%d" % kind)

    def _poll_text(self, nbr, vt, sreg):
        if nbr:
            return f"buffer_load_dword {v(vt)}, {v(vt+1)}, s[20:23], s{sreg} offen sc1"
        return f"buffer_load_dword {v(vt)}, off, s[20:23], s{sreg} sc1"

    def poll_issue(self, kind, nbr, vt, sreg=27, sub=None):
        A = self.A
        if nbr:
            A(f"s_mov_b32 s{sreg}, {L.FLAGS + kind*FK}\ns_sub_u32 s26, s28, 1")
            A(f"v_min_u32 {v(vt+1)}, 2, v0\nv_add_u32 {v(vt+1)}, s26, {v(vt+1)}\nv_med3_i32 {v(vt+1)}, {v(vt+1)}, 0, 63\nv_lshlrev_b32 {v(vt+1)}, 7, {v(vt+1)}")
        else:
            A(f"s_add_u32 s{sreg}, s24, {kind*FK}")
            if sub is not None:
                A(f"s_lshl_b32 s29, s{sub}, 13\ns_add_u32 s{sreg}, s{sreg}, s29")
        self.vm.issue(("POLL", kind), self._poll_text(nbr, vt, sreg))

    def poll_check(self, kind, nbr, vt, sreg=27, target=16):
        A = self.A
        ok, lp = A.label("POK"), A.label("PLP")
        A.stamp("pb%d" % kind)
        self.vm.wait(("POLL", kind))
        A(f"{lp}:")
        A(f"v_cmp_le_u32 vcc, {target}, {v(vt)}")
        A("s_cmp_eq_u64 vcc, -1")
        A(f"s_cbranch_scc1 {ok}")
        A("s_sleep 1")
        A(self._poll_text(nbr, vt, sreg))
        A("s_sub_u32 s25, s25, 1")
        A("s_waitcnt vmcnt(0)")
        A(f"s_cbranch_scc0 {lp}")
        A("s_endpgm")
        A(f"{ok}:")
        A.stamp("pc%d" % kind)

    def nonce_make(self, vt):
        A = self.A
        A("s_memrealtime s[4:5]")
        A(f"s_or_b32 s26, s2, s3\ns_cmp_eq_u32 s26, 0\ns_cselect_b32 s26, 0, {OOB}")
        A("s_waitcnt lgkmcnt(0)")
        A(f"s_or_b32 s4, s4, 1\nv_mov_b32 {v(vt)}, s4\ns_mov_b64 exec, 1")
        self.vm.issue("SIG", f"buffer_store_dword {v(vt)}, off, s[16:19], s26 sc1")
        A("s_mov_b64 exec, -1")

    def nonce_issue(self, vt):
        self.A(f"s_cmp_eq_u32 s3, 0\ns_cselect_b32 s5, 0, {OOB}")
        self.vm.issue("NON", f"buffer_load_dword {v(vt)}, off, s[16:19], s5 sc1")

    def nonce_get(self, vt):
        A = self.A
        ok, lp = A.label("NOK"), A.label("NLP")
        self.vm.wait("NON")
        A(f"s_cmp_lg_u32 s3, 0\ns_cbranch_scc1 {ok}")
        A(f"{lp}:")
        A(f"v_readfirstlane_b32 s4, {v(vt)}")
        A(f"s_cmp_lg_u32 s4, 0\ns_cbranch_scc1 {ok}")
        A("s_sleep 1")
        A(f"buffer_load_dword {v(vt)}, off, s[16:19], 0 sc1")
        A("s_sub_u32 s25, s25, 1")
        A("s_waitcnt vmcnt(0)")
        A(f"s_cbranch_scc0 {lp}")
        A("s_endpgm")
        A(f"{ok}:")

    def gsignal(self, ev, vt):
        A = self.A
        A(f"v_mov_b32 {v(vt)}, s4\ns_lshr_b32 s26, s2, 3\ns_lshl_b32 s26, s26, 7\ns_and_b32 s5, s2, 7\ns_lshl_b32 s5, s5, 2\ns_add_u32 s26, s26, s5")
        A(f"s_add_u32 s26, s26, {L.GF + ev*4096}\ns_cmp_eq_u32 s3, 0\ns_cselect_b32 s26, s26, {OOB}\ns_mov_b64 exec, 1")
        self.vm.issue("SIG", f"buffer_store_dword {v(vt)}, off, s[20:23], s26 sc1")
        A("s_mov_b64 exec, -1")

    def gpoll_issue(self, ev, vt):
        A = self.A
        A(f"v_lshrrev_b32 {v(vt+4)}, 1, v0\nv_lshlrev_b32 {v(vt+4)}, 7, {v(vt+4)}\nv_and_b32 {v(vt)}, 1, v0\nv_lshl_add_u32 {v(vt+4)}, {v(vt)}, 4, {v(vt+4)}")
        A(f"s_mov_b32 s5, {L.GF + ev*4096}\ns_cmp_eq_u32 s3, 0\ns_cselect_b32 s5, s5, {OOB}")
        self.vm.issue("GPOLL", f"buffer_load_dwordx4 {v(vt,4)}, {v(vt+4)}, s[20:23], s5 offen sc1")

    def gpoll_check(self, ev, vt):
        A = self.A
        ok, lp = A.label("GOK"), A.label("GLP")
        self.vm.wait("GPOLL")
        A(f"s_cmp_lg_u32 s3, 0\ns_cbranch_scc1 {ok}")
        A(f"{lp}:")
        for i in range(4):
            A(f"v_xor_b32 {v(vt+i)}, s4, {v(vt+i)}")
        A(f"v_or3_b32 {v(vt)}, {v(vt)}, {v(vt+1)}, {v(vt+2)}\nv_or_b32 {v(vt)}, {v(vt)}, {v(vt+3)}")
        A(f"v_cmp_ne_u32 vcc, 0, {v(vt)}")
        A(f"s_cbranch_vccz {ok}")
        A("s_sleep 1")
        A(f"buffer_load_dwordx4 {v(vt,4)}, {v(vt+4)}, s[20:23], s5 offen sc1")
        A("s_sub_u32 s25, s25, 1")
        A("s_waitcnt vmcnt(0)")
        A(f"s_cbranch_scc0 {lp}")
        A("s_endpgm")
        A(f"{ok}:")
        A.stamp("gp%d" % ev)

    def pf(self, start, end, vt, sr=96):
        A = self.A
        lb = A.label("PC" + start)
        A(f"s_getpc_b64 s[{sr}:{sr+1}]")
        A(f"{lb}:")
        A(f"s_add_u32 s{sr}, s{sr}, {start}-{lb}")
        A(f"s_addc_u32 s{sr+1}, s{sr+1}, ({start}-{lb})>>32")
        A(f"s_and_b32 s{sr+1}, s{sr+1}, 0xffff")
        A(f"s_mov_b32 s{sr+2}, {end}-{start}")
        A(f"s_mov_b32 s{sr+3}, 0x20000")
        A(f"s_lshr_b32 s{sr+4}, s2, 3\ns_lshl_b32 s{sr+4}, s{sr+4}, 2\ns_add_u32 s{sr+4}, s{sr+4}, s3\ns_lshl_b32 s{sr+4}, s{sr+4}, 10")
        A(f"v_and_b32 v{vt}, 7, v0\nv_lshlrev_b32 v{vt}, 7, v{vt}")
        self.vm.issue("PC", f"buffer_load_dword v{vt+1}, v{vt}, s[{sr}:{sr+3}], s{sr+4} offen")

def gelu_pk(A, regs, tmp, hook=lambda: None):
    for x, t in zip(regs, tmp):
        A(f"v_pk_mul_f32 {v(t,2)}, {v(x,2)}, {v(x,2)}")
    for x, t in zip(regs, tmp):
        A(f"v_pk_fma_f32 {v(t,2)}, {v(t,2)}, v[8:9], v[6:7]")
    for x, t in zip(regs, tmp):
        A(f"v_pk_mul_f32 {v(t,2)}, {v(t,2)}, {v(x,2)}")
    hook()
    for x, t in zip(regs, tmp):
        A(f"v_exp_f32 {v(t)}, {v(t)}\nv_exp_f32 {v(t+1)}, {v(t+1)}")
    hook()
    for x, t in zip(regs, tmp):
        A(f"v_pk_add_f32 {v(t,2)}, {v(t,2)}, v[10:11]")
    for x, t in zip(regs, tmp):
        A(f"v_rcp_f32 {v(t)}, {v(t)}\nv_rcp_f32 {v(t+1)}, {v(t+1)}")
    hook()
    for x, t in zip(regs, tmp):
        A(f"v_pk_mul_f32 {v(x,2)}, {v(x,2)}, {v(t,2)}")

def kv_dma_ops():
    out = ["s_mov_b32 m0, s47"]
    for i in range(4):
        out.append(f"buffer_load_dwordx4 {v(DV0)}, s[20:23], s46 offen offset:{i*1024} lds")
    out.append("s_add_u32 m0, s47, 16384")
    for i in range(4):
        out.append(f"buffer_load_dwordx4 {v(DV1)}, s[20:23], s46 offen offset:{i*1024} lds")
    out += ["s_add_u32 s46, s46, 32768", "s_add_u32 s47, s47, 32768", "s_and_b32 s47, s47, 0x1ffff"]
    return out

IT, FW, FR, FV = 124, 125, 126, 127
FLG = 163840 - 1024

def cost(x):
    if callable(x):
        return 1
    return 2 if x.startswith("v_exp") else 1

def place(free, ops, g0, g1, table):
    g = g0
    prev_trans = None
    for x in ops:
        c = cost(x)
        while g <= g1 and free[g] < c:
            g += 1
        assert g <= g1, ("no room", x)
        table[g].append(x)
        free[g] -= c
    return g

def softmax_sched(p):
    grp = []
    t = 0
    for qa in range(2):
        bs = BS0 + qa
        for ka in range(2):
            sr = Sreg(p, ka, qa)
            tt = T0 + 4 * (t & 1); t += 1
            ex = [f"v_exp_f32 {v(tt+r)}, {v(sr+r)}" for r in range(4)]
            if ka == 0:
                a = [f"v_add_f32 {v(bs)}, {v(tt)}, {v(tt+1)}"]
            else:
                a = [f"v_add_f32 {v(bs)}, {v(bs)}, {v(tt)}", f"v_add_f32 {v(bs)}, {v(bs)}, {v(tt+1)}"]
            a += [f"v_cvt_pk_bf16_f32 {v(PP+qa*4+ka*2)}, {v(tt)}, {v(tt+1)}",
                  f"v_add_f32 {v(bs)}, {v(bs)}, {v(tt+2)}", f"v_add_f32 {v(bs)}, {v(bs)}, {v(tt+3)}",
                  f"v_cvt_pk_bf16_f32 {v(PP+qa*4+ka*2+1)}, {v(tt+2)}, {v(tt+3)}"]
            grp.append((ex, a))
    return grp

def half(A, sc, p, tail, tag, loopctl=None, tailfill=None, first=False, pre=None):
    ds = {}
    for f in range(8, 72):
        g = 2 * f - 15
        if f < 32:
            ds[g] = (("K", f), kread(f, p ^ 1)[0])
        elif f < 64:
            r = vread(f - 32, p)
            ds[g] = (("V", f - 32), r[0]); ds[g + 1] = (("V", f - 32), r[1])
        elif pre:
            r = vread(f - 64, p ^ 1)
            ds[g] = (("V2", f - 64), r[0])
            if g + 1 < 128:
                ds[g + 1] = (("V2", f - 64), r[1])
        elif not tail:
            ds[g] = (("K", f - 64), kread(f - 64, p)[0])
    wt = {}
    for f in range(2, 66, 2):
        g = 2 * f - 1
        t = ("K", f + 1) if f < 32 else (("V", f + 1 - 32) if f < 64 else ("K", 1))
        if f == 64:
            if tail or pre:
                continue
            g = 126
        wt[g] = t
    free = [2 - (g in ds) - (g in wt) for g in range(128)]
    tb = [[] for _ in range(128)]
    ladd = [f"v_add_f32 {v(LS0)}, {v(LS0)}, {v(BS0)}", f"v_add_f32 {v(LS1)}, {v(LS1)}, {v(BS1)}"]
    if not tail:
        dm = kv_dma_ops()
        place(free, [dm[9]], 0, 0, tb)
        place(free, [dm[10]], 0, 1, tb)
        grp = softmax_sched(p)
        ge = 2
        gc = 3
        for k in range(4):
            ge = place(free, grp[k][0], max(ge, gc if k >= 2 else 0), 60, tb)
            if k >= 1:
                gc = place(free, grp[k - 1][1], gprev + 1, 60, tb)
            gprev = ge
        gc = place(free, grp[3][1] + check_ops(), gprev + 1, 60, tb)
        if not first:
            place(free, [f"s_cbranch_vccnz RARE{p}\nRET{tag}:"], gc + 1, 62, tb)
        if p == 0:
            place(free, [f"v_xor_b32 {v(VA)}, 0x10000, {v(VA)}"], 1, 48, tb)
    def paced(groups, g0, step):
        for j_, gr in enumerate(groups):
            g = g0 + j_ * step
            assert g < 128
            tb[g - 1] += gr[:-1]
            tb[g].insert(0, gr[-1])
    if pre:
        tb[1] += dm[11:13] + ["s_barrier"]
        place(free, ladd, 64, 100, tb)
        if p == 1:
            tb[112].append(f"v_xor_b32 {v(VA)}, 0x10000, {v(VA)}")
        paced(pre[0], 3, 4)
        paced(pre[1], 66, 4)
        tb[127].append("s_sub_u32 s44, s44, 1")
    elif not tail:
        g = place(free, ladd + dm[11:13], 64, 100, tb)
        if p == 0:
            place(free, [f"v_xor_b32 {v(KA0)}, 0x10000, {v(KA0)}", f"v_xor_b32 {v(KA1)}, 0x10000, {v(KA1)}"], g, 110, tb)
        place(free, [f"v_add_u32 {v(IT)}, 1, {v(IT)}"], 66, 74, tb)
        place(free, [lambda: sc.issue("fw", [f"ds_write_b32 {v(FW)}, {v(IT)}"])], 76, 76, tb)
        place(free, [lambda: sc.issue("fr", [f"ds_read_b32 {v(FV)}, {v(FR)}"])], 94, 94, tb)
        def chk():
            assert "fr" not in sc.q
            A(f"v_cmp_gt_u32 vcc, {v(IT)}, {v(FV)}")
        place(free, [chk], 110, 110, tb)
        if first:
            place(free, [first], 77, 92, tb)
        if not first:
            place(free, ["s_cmp_le_u32 s44, 6", f"s_cbranch_scc1 HOOK{tag}\nHRET{tag}:"], 77, 92, tb)
        if "l2pf" in EXP:
            place(free, ["s_sub_u32 s33, s44, 3", "s_lshl_b32 s33, s33, 20", "buffer_load_dword v123, v122, s[4:7], s33 offen"], 77, 93, tb)
        place(free, [f"s_cbranch_vccnz SPIN{tag}\nSRET{tag}:"], 112, 112, tb)
        SPINS.append(tag)
        place(free, [dm[0]], 113, 113, tb)
        for i, g in enumerate((114, 116, 118, 120)):
            place(free, [dm[1 + i]], g, g, tb)
        place(free, [dm[5]], 121, 121, tb)
        for i, g in enumerate((122, 124, 126)):
            place(free, [dm[6 + i]], g, g, tb)
        place(free, loopctl[:2], 122, 125, tb)
        place(free, loopctl[2:], 127, 127, tb)
    else:
        sc.q = [("V", x[1]) for x in sc.q]
        A("s_barrier")
        tf = list(tailfill)
        for i_, x in enumerate(softmax_ops(p) + check_ops()):
            A(x)
            if i_ % 6 == 0:
                for y in tf.pop(0):
                    y() if callable(y) else A(y)
        A(f"s_cbranch_vccnz RARE{p}")
        A(f"RET{tag}:")
        sc.wait(("V", 1))
        place(free, ladd, 64, 127, tb)
        paced(tf, 65, 3)
    for g in range(64 if tail else 0, 128):
        if g < 64:
            n, qa = g >> 1, g & 1
            j, ka = n >> 1, n & 1
            sr = Sreg(p ^ 1, ka, qa)
            c = v(NEGM + 4 * qa, 4) if j == 0 else v(sr, 4)
            A(f"{MF} {v(sr,4)}, {v(ring(n),4)}, {R(Qr(qa,j),4)}, {c}")
        else:
            dt, qa = (g - 64) >> 1, g & 1
            o = R(Or(dt, qa), 4)
            A(f"{MF} {o}, {v(ring(dt),4)}, {v(PP+4*qa,4)}, {'0' if first else o}")
        if g in ds:
            sc.issue(ds[g][0], [ds[g][1]])
        last = [x for x in tb[g] if not callable(x) and "branch" in x]
        for x in tb[g]:
            if x in last:
                continue
            if callable(x):
                x()
            else:
                A(x)
        if g in wt and "nolg" in EXP and not tail and g != 111:
            A.auto = True
            sv = A.lines; A.lines = []
            sc.wait(wt[g]); A.lines = sv
        elif g in wt:
            sc.wait(wt[g], "vmcnt(0) " if (g == 75 and not tail and not pre) else "")
        for x in last:
            A(x)

SPINS = []
def spin(A, tag):
    A(f"SPIN{tag}:")
    A(f"ds_read_b32 {v(FV)}, {v(FR)}")
    A("s_waitcnt lgkmcnt(0)")
    A(f"v_cmp_gt_u32 vcc, {v(IT)}, {v(FV)}")
    A(f"s_cbranch_vccz SRET{tag}")
    A("s_sub_u32 s25, s25, 1")
    A(f"s_cbranch_scc0 SPIN{tag}")
    A("s_endpgm")

def rare(A, p):
    A(f"RARE{p}:")
    A("s_nop 15")
    D0, AL = XT, XT + 2
    for qa in range(2):
        rowmax(A, p, qa, D0 + qa, XT + 4)
        A(f"v_max_f32 {v(D0+qa)}, 0, {v(D0+qa)}")
        A(f"v_sub_f32 {v(AL+qa)}, 0, {v(D0+qa)}")
        A(f"v_exp_f32 {v(AL+qa)}, {v(AL+qa)}")
        for pp in range(2):
            for ka in range(2):
                for r in range(4):
                    x = Sreg(pp, ka, qa) + r
                    A(f"v_sub_f32 {v(x)}, {v(x)}, {v(D0+qa)}")
        for r in range(4):
            A(f"v_sub_f32 {v(NEGM+4*qa+r)}, {v(NEGM+4*qa+r)}, {v(D0+qa)}")
        A(f"v_mul_f32 {v(LS0+qa)}, {v(LS0+qa)}, {v(AL+qa)}")
    for dt in range(32):
        for qa in range(2):
            o = Or(dt, qa)
            if o < 256:
                for r in range(4):
                    A(f"v_mul_f32 {v(o+r)}, {v(o+r)}, {v(AL+qa)}")
            else:
                t = XT + 8
                for r in range(4):
                    A(f"v_accvgpr_read_b32 {v(t+r)}, {R(o+r)}")
                for r in range(4):
                    A(f"v_mul_f32 {v(t+r)}, {v(t+r)}, {v(AL+qa)}")
                for r in range(4):
                    A(f"v_accvgpr_write_b32 {R(o+r)}, {v(t+r)}")
    for x in softmax_ops(p):
        A(x)
    A("s_nop 3")
    A("s_cmp_eq_u32 s44, 1")
    A(f"s_cbranch_scc1 RETT{p}")
    A("s_cmp_eq_u32 s44, 2")
    A(f"s_cbranch_scc1 RETP{p}")
    A(f"s_branch RETL{p}")

def gen_mega():
    m = M()
    A, vm, lk = m.A, m.vm, m.lk
    name = os.environ.get("KNAME", "standalone__conformer_family_e_branchformer__speech_kernel")
    A(f".globl {name}\n.p2align 8\n.type {name},@function\n{name}:")
    A("s_cmp_ge_u32 s2, 256")
    A("s_cbranch_scc0 MEGA_GO")
    A("s_endpgm")
    A("MEGA_GO:")
    A("s_getpc_b64 s[96:97]")
    A("PCS:")
    A("s_and_b32 s97, s97, 0xffff\ns_mov_b32 s98, PF_ATT_END-PCS\ns_mov_b32 s99, 0x20000")
    A("s_lshr_b32 s100, s2, 3\ns_lshl_b32 s100, s100, 12")
    A("v_lshrrev_b32 v140, 3, v0\nv_lshlrev_b32 v140, 7, v140")
    vm.issue("PC", "buffer_load_dword v141, v140, s[96:99], s100 offen")
    A.stamp_init()
    ldptr(A, 8, 0); ldptr(A, 40, 3); ldptr(A, 44, 1); ldptr(A, 20, 10)
    ldptr(A, 60, 4); ldptr(A, 62, 6); ldptr(A, 12, 8); ldptr(A, 16, 9)
    A("v_lshrrev_b32 v1, 6, v0")
    A("v_and_b32 v0, 63, v0")
    A("v_readfirstlane_b32 s3, v1")
    A("v_lshlrev_b32 v1, 4, v0")
    A("s_and_b32 s28, s2, 7\ns_lshr_b32 s29, s2, 3\ns_and_b32 s30, s29, 3\ns_lshr_b32 s29, s29, 2")
    A("s_lshl_b32 s28, s28, 3\ns_add_u32 s28, s28, s29")
    A("s_lshl_b32 s31, s30, 2\ns_add_u32 s31, s31, s3")
    A("s_mov_b32 s49, 0xffff0000")
    A(f"s_lshl_b32 s24, s28, 7\ns_add_u32 s24, s24, {L.FLAGS}")
    A("s_mov_b32 s25, 0x60000")
    A("s_waitcnt lgkmcnt(0)")
    fix_srd(A, 8, 2 * L.T * 1024); fix_srd(A, 40, 0x100000); fix_srd(A, 44, 512 * 3072); fix_srd(A, 20, L.WS_BYTES)
    fix_srd(A, 12, 2 * L.T * 1024); fix_srd(A, 16, 256)
    A("PF_P0:")
    m.nonce_make(142)
    gu = GU(A, vm, lk)
    phase_p0(m, gu)
    c0, c1 = gelu_consts()
    A(f"v_mov_b32 v6, {hex(f2u(c0))}\nv_mov_b32 v7, v6\nv_mov_b32 v8, {hex(f2u(c1))}\nv_mov_b32 v9, v8\nv_mov_b32 v10, 1.0\nv_mov_b32 v11, 1.0")
    A(f"s_lshl_b32 s32, s28, 17\ns_add_u32 s32, s32, {L.XA}")
    for par in range(2):
        A(f"s_lshl_b32 s{66+par}, s31, 15\ns_add_u32 s{66+par}, s{66+par}, {L.W1 + par*16384}")
    gq_ = G4(A, vm, lk, NB=8, wn=2, KS=16, kps=2, NS=5, WD=16, s_act=32, blk_stride=16384, s_w=[66, 67],
             acc0=168, fr0=256, w0=256 + 112, vl16=1, vt=248, st=60, lds0=0, stamps=('A0', 'A1', 'A2'))
    gq_.smap = [106496, 122880, 139264, 73728, 90112]
    gq_.setup()
    RSR = 168
    A(f"v_and_b32 v252, 15, v0\nv_lshlrev_b32 v252, 3, v252")
    A(f"s_lshl_b32 s48, s28, 10\ns_add_u32 s48, s48, {L.RS - 128}")
    A(f"s_cmp_eq_u32 s28, 0\ns_cselect_b32 s38, {OOB}, s48\ns_cmp_eq_u32 s28, 63\ns_cselect_b32 s39, {OOB}, s48")
    def rsl():
        return [("RS", f"buffer_load_dwordx2 {v(RSR+2*b,2)}, v252, s[20:23], s{38 if b == 0 else (39 if b == 9 else 48)} offen offset:{b*128}{LL}") for b in range(10)]
    def extraU(k):
        out = []
        if k == 3:
            out.append(lambda: m.gsignal(0, 14))
        if k == 10:
            out.append(lambda: m.gpoll_issue(0, 224))
        if k == 11 and "nowarm" not in EXP:
            out.append(lambda: late_warm(m, 229))
        if k == 12:
            out.append(lambda: m.gpoll_check(0, 224))
        if k == 13:
            assert any("GOK" in x.text for x in A.lines)
            pl = gq_.prefetch_list()
            cut = next(i for i, y in enumerate(pl) if y[0] == ("D", id(gq_), 3)) - 1
            out += rsl() + pl[:cut]
            rest.extend(pl[cut:])
        return out
    rest = []
    dq = gu.run(extraU, start=False, keep=True)
    assert not any(y[0] == "RS" for y in dq)
    dq += rest
    def dripq(n=1):
        while dq and n > 0:
            y = dq.pop(0)
            gq_.emit(tuple(y))
            if y[0] is not None:
                n -= 1
    A("PF_U_END:")
    A("s_barrier")
    lat = late_issue(m, 232)
    TAz = 256 + 176
    tl = c4_tload(A, vm, TAz, 0, sr=68)
    SU, SG = gu.accs[(0, 0)], 188
    for i in range(8):
        A(f"v_mov_b32_dpp {v(SU+i)}, {v(SU+i)} row_newbcast:0 row_mask:0xf bank_mask:0xf")
        A(f"v_mov_b32_dpp {v(SG+i)}, {v(gu.accs[(0,2)]+i)} row_newbcast:0 row_mask:0xf bank_mask:0xf")
    def fold(x, sn, b):
        rs = v(RSR + 2 * b, 2)
        for e in range(4):
            A(f"v_pk_fma_f32 {v(x+2*e,2)}, {v(sn+2*e,2)}, {rs}, {v(x+2*e,2)} op_sel:[0,1,0] op_sel_hi:[1,1,1]")
        for e in range(4):
            A(f"v_pk_mul_f32 {v(x+2*e,2)}, {v(x+2*e,2)}, {rs} op_sel_hi:[1,0]")
    tmp = list(range(196, 204, 2))
    st = 204
    for i in (18, 19, 22, 23):
        A(f"v_mov_b32 {v(st+i)}, 0")
    vm.wait("RS")
    for b in range(10):
        gq = gu.accs[(b, 2)]
        fold(gq, SG, b)
        dripq(1)
        gelu_pk(A, list(range(gq, gq + 8, 2)), tmp, lambda: dripq(1))
        s1, s2 = st + (b >> 2) * 8 + (b & 3), st + (b >> 2) * 8 + 4 + (b & 3)
        A(f"v_pk_add_f32 v[12:13], {v(gq,2)}, {v(gq+2,2)}\nv_pk_mul_f32 v[14:15], {v(gq,2)}, {v(gq,2)}")
        A(f"v_pk_add_f32 v[12:13], v[12:13], {v(gq+4,2)}\nv_pk_fma_f32 v[14:15], {v(gq+2,2)}, {v(gq+2,2)}, v[14:15]")
        A(f"v_pk_add_f32 v[12:13], v[12:13], {v(gq+6,2)}\nv_pk_fma_f32 v[14:15], {v(gq+4,2)}, {v(gq+4,2)}, v[14:15]")
        A(f"v_add_f32 {v(s1)}, v12, v13\nv_pk_fma_f32 v[14:15], {v(gq+6,2)}, {v(gq+6,2)}, v[14:15]")
        A(f"v_add_f32 {v(s2)}, v14, v15")
    A(f"s_lshl_b32 s33, s28, 4\ns_add_u32 s33, s33, s31\ns_mul_i32 s33, s33, 1536\ns_add_u32 s33, s33, {L.GST}")
    A("v_lshlrev_b32 v12, 3, v0")
    for h in range(3):
        for o in (0, 4):
            x = st + h * 8 + o
            A(f"v_permlane32_swap_b32 {v(x)}, {v(x+2)}")
            A(f"v_permlane32_swap_b32 {v(x+1)}, {v(x+3)}")
            A(f"v_add_f32 {v(x)}, {v(x)}, {v(x+2)}")
            A(f"v_add_f32 {v(x+1)}, {v(x+1)}, {v(x+3)}")
            A(f"v_permlane16_swap_b32 {v(x)}, {v(x+1)}")
            A(f"v_add_f32 {v(x)}, {v(x)}, {v(x+1)}")
        x = st + h * 8
        A(f"v_mov_b32 {v(x+1)}, {v(x+4)}")
        vm.issue("sS", f"buffer_store_dwordx2 {v(x,2)}, v12, s[20:23], s33 offen offset:{h*512}{SL}")
    for b in range(1, 9):
        fold(gu.accs[(b, 0)], SU, b)
        dripq(1)
    dripq(100)
    A.stamp('g')
    def extraA(k):
        out = []
        if k == 3:
            out.append(lambda: m.signal(F_S, "sS", 12))
        if k == 5:
            out += lat
        if k == 13:
            out.append(lambda: m.poll_issue(F_S, False, 13))
        return out
    gq_.run(extraA)
    A("s_lshl_b32 s33, s3, 6\nv_add_u32 v14, s33, v0\nv_lshlrev_b32 v15, 3, v14")
    A("s_lshl_b32 s33, s28, 7\ns_sub_u32 s33, s33, 16\nv_add_u32 v14, s33, v14")
    A(f"s_mul_i32 s33, s28, {16*1536}\ns_add_u32 s33, s33, {L.GST}")
    m.poll_check(F_S, False, 13)
    for i in range(16):
        vm.issue("ST", f"buffer_load_dwordx2 {a_(64+2*i,2)}, v15, s[20:23], s33 offen offset:{(i&1)*1536}{LL}")
        if i & 1:
            A("s_add_u32 s33, s33, 3072")
    A("s_lshl_b32 s48, s28, 17\ns_lshl_b32 s33, s31, 10\ns_add_u32 s48, s48, s33")
    A(f"s_add_u32 s33, s48, {L.QP}")
    for b in range(8):
        q = gq_.accs[(b, 0)]
        for i in range(4):
            A(f"v_cvt_pk_bf16_f32 {v(q+i)}, {v(q+2*i)}, {v(q+2*i+1)}")
        vm.issue("sQ", f"buffer_store_dwordx4 {v(q,4)}, v1, s[20:23], s33 offen{SL}")
        A("s_add_u32 s33, s33, 16384")
    A.stamp('qs')
    dq += tl
    UR = 16
    tmp = list(range(240, 248, 2))
    for b in range(1, 9):
        u = gu.accs[(b, 0)]
        gelu_pk(A, list(range(u, u + 8, 2)), tmp, lambda: dripq(1))
        for i in range(4):
            A(f"v_cvt_pk_bf16_f32 {v(UR+4*(b-1)+i)}, {v(u+2*i)}, {v(u+2*i+1)}")
    A.stamp('u')
    def kv(tile):
        for x in kv_dma_ops():
            if "buffer" in x:
                vm.issue(("KV", tile), x)
            else:
                A(x)
    LB = 65536
    FST = LB + 4 * T4B
    STT = 155648
    B0, D0, OUT, VA_ = 168, 88, 48, 80
    S0 = 48
    A("v_and_b32 v12, 4095, v14")
    A(f"s_movk_i32 s32, {L.T}\ns_movk_i32 s33, 8192")
    A("v_cmp_gt_u32 vcc, s32, v12")
    A("v_cmp_gt_u32 s[34:35], s33, v14")
    A("s_and_b64 vcc, vcc, s[34:35]")
    A(f"v_add_u32 v15, {STT}, v15")
    vm.wait("ST")
    for i in range(32):
        A(f"v_accvgpr_read_b32 {v(S0+i)}, {a_(64+i)}")
    for i in range(1, 16):
        A(f"v_pk_add_f32 {v(S0,2)}, {v(S0,2)}, {v(S0+2*i,2)}")
    A(f"v_mul_f32 {v(S0)}, {hex(f2u(1/512))}, {v(S0)}")
    A(f"v_mul_f32 {v(S0+1)}, {hex(f2u(1/512))}, {v(S0+1)}")
    A(f"v_fma_f32 {v(S0+1)}, -{v(S0)}, {v(S0)}, {v(S0+1)}")
    A(f"v_max_f32 {v(S0+1)}, 0, {v(S0+1)}")
    A(f"v_add_f32 {v(S0+1)}, {hex(f2u(1e-5))}, {v(S0+1)}")
    A(f"v_rsq_f32 {v(S0+2)}, {v(S0+1)}")
    A(f"v_mul_f32 {v(S0+3)}, {v(S0)}, {v(S0+2)}")
    A(f"v_sub_f32 {v(S0+3)}, 0, {v(S0+3)}")
    A(f"v_cndmask_b32 {v(S0+2)}, 0, {v(S0+2)}, vcc")
    A(f"v_cndmask_b32 {v(S0+3)}, 0, {v(S0+3)}, vcc")
    A(f"ds_write_b64 v15, {v(S0+2,2)}")
    m.signal(F_Q, "sQ", 12)
    late_compute(m, 168, 200, 240, 232)
    A("s_barrier")
    m.poll_issue(F_Q, False, 13)
    c4_addr(A, LB, VA_)
    A(f"s_mul_i32 s45, s3, 10240\ns_add_u32 s45, s45, {FST}\nv_add_u32 v84, s45, v1")
    A("v_lshrrev_b32 v85, 2, v0\nv_lshlrev_b32 v85, 4, v85\nv_and_b32 v12, 3, v0\nv_lshl_add_u32 v85, v12, 8, v85\nv_add_u32 v85, s45, v85")
    A("s_lshr_b32 s32, s28, 5")
    A("s_mul_i32 s33, s30, 31\ns_cmp_lg_u32 s30, 0\ns_addc_u32 s33, s33, 0")
    A("s_lshl_b32 s34, s32, 7\ns_add_u32 s33, s33, s34\ns_lshl_b32 s46, s33, 15")
    A(f"s_add_u32 s46, s46, {L.XA}")
    A("s_lshl_b32 s47, s3, 12")
    A("s_and_b32 s35, s3, 1\ns_lshl_b32 s35, s35, 7")
    A(f"v_xor_b32 {v(DV0)}, s35, v1\nv_add_u32 {v(DV0)}, s47, {v(DV0)}\nv_add_u32 {v(DV1)}, 16384, {v(DV0)}")
    A(f"v_and_b32 v12, 15, v0\nv_lshlrev_b32 v12, 3, v12\nv_add_u32 v12, {STT}, v12")
    A.stamp('stb')
    TB = 232
    for b in range(10):
        lk.issue(("T", b), f"ds_read_b64 {v(TB+2*b,2)}, v12 offset:{b*128}")
    A(f"s_lshl_b32 s36, s28, 2\ns_add_u32 s36, s36, s3\ns_lshl_b32 s36, s36, 15\ns_add_u32 s36, s36, {L.QP}\ns_add_u32 s37, s36, 16384")
    def kvl(tile):
        out, cur = [], []
        for x in kv_dma_ops():
            cur.append(x)
            if "buffer" in x:
                out.append(cur); cur = []
        out[-1] += cur
        return [(lambda gr=gr: [vm.issue(("KV", tile), x) if "buffer" in x else A(x) for x in gr]) for gr in out]
    ql = kvl(0)
    def qload(j, qa):
        if j == 0 and qa == 0:
            m.poll_check(F_Q, False, 13)
        vm.issue(("Q", j), f"buffer_load_dwordx4 {R(Qr(qa,j),4)}, v1, s[20:23], s{36+qa} offen offset:{(j&3)*1024}{LL}")
        if j % 4 == 3 and qa == 1:
            A("s_add_u32 s36, s36, 4096\ns_add_u32 s37, s37, 4096")
    for j in range(16):
        for qa in range(2):
            ql.append(lambda j=j, qa=qa: qload(j, qa))
    ql += kvl(1)
    for b in range(10):
        lk.wait(("T", b))
        gq = gu.accs[(b, 2)]
        for e in range(4):
            A(f"v_pk_fma_f32 {v(gq+2*e,2)}, {v(gq+2*e,2)}, {v(TB+2*b,2)}, {v(TB+2*b,2)} op_sel:[0,0,1] op_sel_hi:[1,0,1]")
        ql.pop(0)()
        for e in range(4):
            A(f"v_cvt_pk_bf16_f32 {v(gq+e)}, {v(gq+2*e)}, {v(gq+2*e+1)}")
        lk.issue("wr", f"ds_write_b128 v84, {v(gq,4)} offset:{b*1024}")
        for u in range(2):
            lk.issue(("X", b), f"ds_read_b64_tr_b16 {v(B0+4*b+2*u,2)}, v85 offset:{b*1024+u*8}")
        ql.pop(0)()
        if b >= 1:
            lk.wait(("X", b - 1))
            for u in range(2):
                c4_write(lk, VA_, B0 + 4 * (b - 1) + 2 * u, b - 1, u)
    lk.wait(("X", 9))
    for u in range(2):
        c4_write(lk, VA_, B0 + 36 + 2 * u, 9, u)
    vm.wait("CW")
    A.stamp('zc0')
    c4_core(A, lk, TAz, B0, D0, VA_, OUT, False, ql)
    A.stamp('zc1')
    A(f"s_add_u32 s41, s48, {L.Z}")
    for b in range(8):
        lk.wait(("O", b))
        t = 88 + 16 * (b & 1)
        for _ in range(2):
            if ql: ql.pop(0)()
        for e in range(4):
            A(f"v_lshlrev_b32 {v(t+2*e)}, 16, {v(OUT+4*b+e)}\nv_and_b32 {v(t+2*e+1)}, s49, {v(OUT+4*b+e)}")
            A(f"v_lshlrev_b32 {v(t+8+2*e)}, 16, {v(UR+4*b+e)}\nv_and_b32 {v(t+8+2*e+1)}, s49, {v(UR+4*b+e)}")
        for e in range(4):
            A(f"v_pk_mul_f32 {v(t+2*e,2)}, {v(t+2*e,2)}, {v(t+8+2*e,2)}")
        for e in range(4):
            A(f"v_cvt_pk_bf16_f32 {v(128+4*b+e)}, {v(t+2*e)}, {v(t+2*e+1)}")
    assert not ql
    A.stamp('z')
    A(f"v_mov_b32 {v(IT)}, 0\ns_lshl_b32 s33, s3, 8\ns_add_u32 s33, s33, {FLG}\nv_lshlrev_b32 {v(FW)}, 2, v0\nv_add_u32 {v(FW)}, s33, {v(FW)}")
    A(f"v_and_b32 {v(FR)}, 3, v0\nv_lshlrev_b32 {v(FR)}, 8, {v(FR)}\nv_add_u32 {v(FR)}, {FLG}, {v(FR)}")
    A(f"ds_write_b32 {v(FW)}, {v(IT)}")
    vm.wait(("KV", 0))
    A("s_waitcnt lgkmcnt(0)")
    A("s_barrier")
    def zst(b):
        vm.issue("sZ", f"buffer_store_dwordx4 {v(128+4*b,4)}, v1, s[20:23], s41 offen{SC}")
        A("s_add_u32 s41, s41, 16384")
    pro = kvl(2)[:7] + [(lambda b=b: zst(b)) for b in range(8)]
    A("s_cmp_eq_u32 s30, 0\ns_addc_u32 s44, 31, 0")
    A(f"s_mov_b32 s45, {hex(f2u(THRESH))}")
    A(f"v_mov_b32 {v(KA0)}, {v(L16)}")
    A(f"v_xor_b32 {v(KA1)}, 128, {v(L16)}")
    A.stamp('cb')
    m.gsignal(1, 120)
    sc = Sched(A)
    for mm_ in range(8):
        sc.issue(("K", mm_), kread(mm_, 0))
    A(f"v_lshrrev_b32 {v(T0)}, 2, v0")
    A(f"v_bfe_u32 {v(T0+1)}, v0, 1, 1")
    A(f"v_lshlrev_b32 {v(T0+2)}, 3, {v(T0+1)}")
    A(f"v_xor_b32 {v(T0)}, {v(T0)}, {v(T0+2)}")
    A(f"v_lshlrev_b32 {v(T0)}, 4, {v(T0)}")
    A(f"v_lshl_add_u32 {v(T0)}, {v(T0+1)}, 12, {v(T0)}")
    A(f"v_and_b32 {v(T0+1)}, 1, v0")
    A(f"v_lshl_add_u32 {v(VA)}, {v(T0+1)}, 3, {v(T0)}")
    A(f"v_xor_b32 {v(VA)}, 0x10000, {v(VA)}")
    A(f"v_mov_b32 {v(LS0)}, 0\nv_mov_b32 {v(LS1)}, 0")
    A(f"s_lshl_b32 s32, s28, 17\ns_add_u32 s32, s32, {L.Z - 16384}")
    for par in range(2):
        A(f"s_lshl_b32 s{60+par}, s31, 15\ns_add_u32 s{60+par}, s{60+par}, {L.W2 + (32+par)*16384}")
    e1 = G4(A, vm, lk, NB=10, wn=2, KS=16, kps=2, NS=8, WD=16, s_act=32, blk_stride=16384, s_w=[60, 61],
            acc0=16, fr0=256 + 128, w0=256, vl16=1, vt=116, st=50, lds0=0, swap=True, dfl=LL, stamps=('E0', 'E1', 'Ex'), halo=True)
    e1.setup()
    for n in range(32):
        j, ka = n >> 1, n & 1
        if ka == 0:
            c_ = vm.count_for(("Q", j))
            sc.wait(("K", n + 1), f"vmcnt({c_}) " if c_ is not None else "")
        for qa in range(2):
            sr = Sreg(0, ka, qa)
            c = "0" if j == 0 else v(sr, 4)
            A(f"{MF} {v(sr,4)}, {v(ring(n),4)}, {R(Qr(qa,j),4)}, {c}")
        if n % 2 == 1 and pro:
            pro.pop(0)()
        if n == 24:
            vm.wait(("KV", 1))
            A("s_barrier")
        if n + 8 < 32:
            sc.issue(("K", n + 8), kread(n + 8, 0))
        else:
            sc.issue(("K", n + 8 - 32), kread(n + 8 - 32, 1))
    A.stamp('qk')
    assert not pro
    for qa in range(2):
        rowmax(A, 0, qa, T0 + qa, T0 + 2)
        for ka in range(2):
            for r in range(4):
                x = Sreg(0, ka, qa) + r
                A(f"v_sub_f32 {v(x)}, {v(x)}, {v(T0+qa)}")
        for r in range(4):
            A(f"v_sub_f32 {v(NEGM+4*qa+r)}, 0, {v(T0+qa)}")
    sc.wait(("K", 1))
    q0 = list(sc.q)
    if "delay" in EXP:
        for _ in range(2):
            A("s_sleep 100")
    def zsig():
        vm.q = []
        m.signal(F_Z, "sZ", 120)
    A.stamp('loop')
    half(A, sc, 0, False, "F0", ["s_sub_u32 s44, s44, 1", "s_nop 0", "s_branch LOOP1"], first=zsig)
    assert sc.q == q0, (sc.q, q0)
    A(".p2align 6")
    A("LOOP:")
    half(A, sc, 0, False, "L0", ["s_sub_u32 s44, s44, 1", "s_cmp_eq_u32 s44, 2", "s_cbranch_scc1 PRE1"])
    assert sc.q == q0
    A("LOOP1:")
    half(A, sc, 1, False, "L1", ["s_sub_u32 s44, s44, 1", "s_cmp_lg_u32 s44, 2", "s_cbranch_scc1 LOOP"])
    assert sc.q == q0
    def groups(items):
        out, cur = [], []
        for x in items:
            isv = (x[0] is not None) if isinstance(x, tuple) else ("buffer" in x)
            if isv:
                cur.append(x if isinstance(x, tuple) else (lambda x=x: vm.issue("ZT", x)))
                out.append(cur); cur = []
            else:
                cur.append(x[1] if isinstance(x, tuple) else x)
        return out, cur
    def endgame(p):
        vm.q = ["KVX"] * 8
        sc.q = list(q0)
        d1 = kv_dma_ops()
        d2 = kv_dma_ops()[:10]
        d2 = [x.replace("s46", "s32") for x in d2]
        d2[0] = "s_add_u32 m0, s33, 131072"
        d2[5] = f"s_add_u32 m0, s33, {131072+16384}"
        ga, _ = groups(d1 + ["s_lshl_b32 s33, s3, 12", "s_add_u32 s32, s46, 32768"] + d2)
        gw, _ = groups(e1.wlist(16))
        half(A, sc, p, False, f"P{p}", pre=(ga, gw[:15]))
        gt, _ = groups(kv_dma_ops()[:10])
        half(A, sc, p ^ 1, True, f"T{p^1}", tailfill=gt + gw[15:])
    endgame(0)
    A("s_branch EPI")
    for t in SPINS:
        spin(A, t)
    for t in ("L0", "L1"):
        sv = list(vm.q)
        A(f"HOOK{t}:")
        A(f"s_cmp_lg_u32 s44, 6\ns_cbranch_scc1 HK5{t}")
        A.stamp('r6')
        m.poll_issue(F_Z, True, 120)
        m.gpoll_issue(1, 112)
        A(f"s_branch HRET{t}")
        A(f"HK5{t}:")
        A(f"s_cmp_lg_u32 s44, 5\ns_cbranch_scc1 HK3{t}")
        vm.q = []
        m.poll_check(F_Z, True, 120)
        m.gpoll_check(1, 112)
        m.pf("LOOP", "PF_END", 120)
        if "local" in EXP:
            A("s_lshl_b32 s33, s28, 2\ns_add_u32 s33, s33, s3")
            A(f"s_lshl_b32 s36, s30, 23\ns_lshl_b32 s37, s33, 15\ns_add_u32 s36, s36, s37\ns_add_u32 s36, s36, {L.PO}")
            A(f"s_cmp_eq_u32 s3, s30\ns_cselect_b32 s36, {OOB}, s36\nv_lshlrev_b32 v120, 7, v0")
            for i in range(4):
                A("buffer_load_dword v121, v120, s[20:23], s36 offen sc1\ns_add_u32 s36, s36, 8192")
            A("v_lshrrev_b32 v122, 3, v0\nv_lshlrev_b32 v122, 15, v122\nv_and_b32 v123, 7, v0\nv_lshl_add_u32 v122, v123, 7, v122")
            A(f"s_lshl_b32 s36, s28, 18\ns_lshl_b32 s37, s31, 10\ns_add_u32 s36, s36, s37\ns_add_u32 s36, s36, {L.MM}\ns_add_u32 s37, s36, 16384")
            A("buffer_load_dword v121, v122, s[20:23], s36 offen sc1\nbuffer_load_dword v121, v122, s[20:23], s37 offen sc1")
        A(f"s_branch HRET{t}")
        A(f"HK3{t}:")
        A(f"s_cmp_lg_u32 s44, 3\ns_cbranch_scc1 HRET{t}")
        A(f"s_lshl_b32 s46, s28, 17\ns_add_u32 s46, s46, {L.Z}\ns_and_b32 s59, s47, 0x18000")
        A(f"s_branch HRET{t}")
        vm.q = sv
    A("PRE1:")
    endgame(1)
    A("EPI:")
    A.stamp('epi')
    vm.wait("ZT")
    A("s_barrier")
    A(f"s_lshl_b32 s32, s28, 17\ns_add_u32 s32, s32, {L.Z - 16384}\ns_cmp_eq_u32 s28, 0\ns_cselect_b32 s34, {OOB}, s32")
    A(f"s_add_u32 s32, s32, {8*16384}\ns_cmp_eq_u32 s28, 63\ns_cselect_b32 s35, {OOB}, s32")
    A("s_add_u32 s47, s47, 32768\ns_and_b32 s47, s47, 0x1ffff\ns_mov_b32 m0, s47")
    for i in range(4):
        vm.issue("ZH", f"buffer_load_dwordx4 {v(DV0)}, s[20:23], s34 offen offset:{i*1024} lds")
    A("s_add_u32 m0, s47, 16384")
    for i in range(4):
        vm.issue("ZH", f"buffer_load_dwordx4 {v(DV1)}, s[20:23], s35 offen offset:{i*1024} lds")
    for qa in range(2):
        x = LS0 + qa
        for lv in (16, 32):
            A(f"v_mov_b32 {v(T0)}, {v(x)}")
            A(f"v_permlane{lv}_swap_b32 {v(x)}, {v(T0)}")
            A(f"v_add_f32 {v(x)}, {v(x)}, {v(T0)}")
    A(f"v_and_b32 {v(T0)}, 16, v0")
    A(f"v_cmp_eq_u32 vcc, 0, {v(T0)}")
    A(f"v_cndmask_b32 {v(T0+1)}, {v(NEGM+4)}, {v(NEGM)}, vcc")
    A(f"v_cndmask_b32 {v(T0+2)}, {v(LS1)}, {v(LS0)}, vcc")
    A(f"v_sub_f32 {v(T0+1)}, 0, {v(T0+1)}")
    A(f"v_cmp_gt_u32 vcc, 32, v0")
    A(f"v_cndmask_b32 v124, {v(T0+2)}, {v(T0+1)}, vcc")
    A(f"v_lshlrev_b32 v125, 2, v0")
    for p_ in range(5):
        if p_ == 3:
            A("s_mov_b32 s32, 131072")
        else:
            A(f"s_add_u32 s32, s59, {32768*min(p_,3)}\ns_and_b32 s32, s32, 0x1ffff")
        A(f"v_add_u32 {v(2+2*p_)}, s32, v1\nv_xor_b32 {v(3+2*p_)}, 128, {v(2+2*p_)}")
    def zaddr(b, k):
        p_, h_ = {0: (4, 0), 9: (4, 1)}.get(b, ((b - 1) >> 1, (b - 1) & 1))
        return f"{v(2+2*p_+((k>>2)&1))} offset:{h_*16384+k*1024}"
    seq = [(b, k) for k in range(16) for b in range(1, 9)] + [(b, k) for k in range(16) for b in (0, 9)]
    NRG = 7
    def rg(i): return 96 + 4 * (i % NRG)
    def zread(i):
        lk.issue(("Z", i), f"ds_read_b128 {v(rg(i),4)}, {zaddr(*seq[i])}")
    for i in range(NRG):
        zread(i)
    A("s_lshl_b32 s33, s28, 2\ns_add_u32 s33, s33, s3")
    A(f"s_lshl_b32 s35, s30, 8\ns_add_u32 s35, s35, s33\ns_lshl_b32 s35, s35, 8\ns_add_u32 s35, s35, {L.PML}")
    A(f"s_lshl_b32 s36, s30, 23\ns_lshl_b32 s37, s33, 15\ns_add_u32 s36, s36, s37\ns_add_u32 s36, s36, {L.PO}")
    A(f"s_cmp_eq_u32 s3, s30\ns_cselect_b32 s36, {OOB}, s36\ns_add_u32 s37, s36, 16384")
    vm.issue("sP", f"buffer_store_dword v124, v125, s[20:23], s35 offen{SL}")
    pk = []
    tmpr = [12, 14, 126]
    tcount = 0
    for f in range(16):
        for qa in range(2):
            d = 128 + 8 * f + 4 * qa
            for i in range(4):
                o = Or(2 * f + (i >> 1), qa) + 2 * (i & 1)
                if o >= 256:
                    t = tmpr[tcount % 3]; tcount += 1
                    pk.append((None, f"v_accvgpr_read_b32 {v(t)}, {R(o)}"))
                    pk.append((None, f"v_accvgpr_read_b32 {v(t+1)}, {R(o+1)}"))
                    o = t
                pk.append((None, f"v_cvt_pk_bf16_f32 {v(d+i)}, {v(o)}, {v(o+1)}"))
            pk.append(("sP", f"buffer_store_dwordx4 {v(d,4)}, v1, s[20:23], s{36+qa} offen offset:{(f&3)*1024}{SM}"))
        if f % 4 == 3:
            pk.append((None, "s_add_u32 s36, s36, 4096"))
            pk.append((None, "s_add_u32 s37, s37, 4096"))
    TA = 256 + 208
    pk += c4_tload(A, vm, TA, 64)
    A("PF_ATT_END:")
    A.stamp('D')
    vm.wait(("W", id(e1), 15))
    for i, (b, k) in enumerate(seq):
        if i % 2 == 0:
            lk.wait(("Z", i + 1))
        for u in range(2):
            acc = e1.accs[(b, u)]
            A(f"{MF} {v(acc,4)}, {v(rg(i),4)}, {R(e1.wreg(u,k),4)}, {'0' if k == 0 else v(acc,4)}")
            slots = 2
            mem = False
            if u == 1:
                if i + NRG == 128:
                    vm.wait("ZH")
                    A("s_barrier")
                if i + NRG < len(seq):
                    zread(i + NRG); slots -= 1; mem = True
                if i % 2 == 1:
                    slots -= 1
            while pk and slots > 0:
                if pk[0][0] is not None and mem:
                    break
                t_, x = pk.pop(0)
                if t_ is None:
                    A(x)
                else:
                    vm.issue(t_, x); mem = True
                slots -= 1
    assert not pk
    A.stamp('Ex')
    A("s_barrier")
    CV = 8
    c4_addr(A, 0, CV)
    A("v_add_u32 v118, 0x10000, v1")
    OWN = 65536
    A("s_cmp_lg_u32 s3, s30\ns_cbranch_scc1 NOT_OWN")
    for f in range(16):
        for qa in range(2):
            A(f"ds_write_b128 v118, {v(128+8*f+4*qa,4)} offset:{qa*16384+f*1024}")
        if f % 4 == 3:
            A("s_waitcnt lgkmcnt(4)")
    A("NOT_OWN:")

    def conv_store(gg, half_, TA_, pre, tag):
        for b in range(10):
            for u in range(2):
                q = gg.accs[(b, u)]
                for i in range(2):
                    A(f"v_cvt_pk_bf16_f32 {v(q+i)}, {v(q+2*i)}, {v(q+2*i+1)}")
                c4_write(lk, CV, q, b, u)
            if b % 4 == 3:
                lk.wait("wr")
        vm.wait("CW")
        if pre:
            pre()
        c4_core(A, lk, TA_, 128, 16, CV, 80, True, None)
        A(f"s_lshl_b32 s40, s28, 18\ns_lshl_b32 s41, s31, 10\ns_add_u32 s40, s40, s41\ns_add_u32 s40, s40, {L.MM + half_*16384}")
        for b in range(8):
            lk.wait(("O", b))
            vm.issue(tag, f"buffer_store_dwordx4 {v(80+4*b,4)}, v1, s[20:23], s40 offen{SM}")
            A("s_add_u32 s40, s40, 32768")

    conv_store(e1, 1, TA, lambda: m.signal(F_P, "sP", 12, sub=3), "sML")
    m.poll_issue(F_P, False, 13, sub=30)
    A.stamp('E2')
    A(f"s_lshl_b32 s32, s28, 18\ns_add_u32 s32, s32, {L.MM + 16384}")
    for par in range(2):
        A(f"s_lshl_b32 s{60+par}, s31, 16\ns_add_u32 s{60+par}, s{60+par}, {L.W3 + par*32768 + 16384}")
    gG = G4(A, vm, lk, NB=8, wn=2, KS=16, kps=2, NS=8, WD=8, s_act=32, blk_stride=32768, s_w=[60, 61],
            acc0=256 + 192, fr0=128, w0=256, vl16=1, vt=116, st=50, lds0=0, dfl=LL, stamps=('G0', 'G1', 'Gx'))
    gG.setup()
    for x in gG.wlist(8):
        x()
    A("s_lshl_b32 s33, s28, 2\ns_add_u32 s33, s33, s30")
    A("v_and_b32 v4, 15, v0\nv_lshlrev_b32 v4, 2, v4")
    A(f"s_lshl_b32 s34, s33, 8\ns_lshr_b32 s35, s3, 1\ns_lshl_b32 s35, s35, 6\ns_add_u32 s34, s34, s35\ns_add_u32 s34, s34, {L.PML}")
    A("s_lshl_b32 s48, s33, 15\ns_lshl_b32 s35, s3, 13\ns_add_u32 s48, s48, s35")
    A(f"s_add_u32 s35, s35, {OWN}\nv_add_u32 v5, s35, v1")
    for sp in range(4):
        A(f"s_add_u32 s35, s30, {sp}\ns_and_b32 s35, s35, 3\ns_lshl_b32 s{36+sp}, s35, 16\ns_add_u32 s{36+sp}, s{36+sp}, s34")
        if sp:
            A(f"s_lshl_b32 s35, s35, 23\ns_add_u32 s35, s35, s48\ns_add_u32 s{62+2*sp}, s35, {L.PO}\ns_add_u32 s{63+2*sp}, s{62+2*sp}, 4096")
    m.signal(F_ML, "sML", 12)
    A("s_waitcnt lgkmcnt(0)\ns_barrier")
    for f in range(8):
        lk.issue(("OWN", f), f"ds_read_b128 {v(128+16*f,4)}, v5 offset:{f*1024}")
    m.poll_check(F_P, False, 13, target=4)
    for sp in range(4):
        vm.issue("ML", f"buffer_load_dword {v(64+sp)}, v4, s[20:23], s{36+sp} offen{LL}")
        vm.issue("ML", f"buffer_load_dword {v(68+sp)}, v4, s[20:23], s{36+sp} offen offset:128{LL}")
    def pload(f):
        for sp in range(1, 4):
            vm.issue(("P", f), f"buffer_load_dwordx4 {v(128+16*f+4*sp,4)}, v1, s[20:23], s{62+2*sp+(f>>2)} offen offset:{(f&3)*1024}{LL}")
    for f in range(8):
        pload(f)
        if f == 5:
            m.poll_issue(F_ML, False, 13)
    lk.wait(("OWN", 7))
    vm.wait("ML")
    A("v_max3_f32 v24, v64, v65, v66\nv_max_f32 v24, v24, v67")
    for sp in range(4):
        A(f"v_sub_f32 {v(16+sp)}, {v(64+sp)}, v24")
    for sp in range(4):
        A(f"v_exp_f32 {v(16+sp)}, {v(16+sp)}")
    A("v_mul_f32 v25, v16, v68\nv_fmac_f32 v25, v17, v69\nv_fmac_f32 v25, v18, v70\nv_fmac_f32 v25, v19, v71")
    A("v_rcp_f32 v25, v25")
    A("s_and_b32 s34, s33, 127\ns_cmp_lt_u32 s34, 125\ns_cselect_b32 s34, 1.0, 0")
    A("v_mul_f32 v25, s34, v25")
    wr = [26, 28, 30, 32]
    for sp in range(4):
        A(f"v_mul_f32 {v(wr[sp])}, {v(16+sp)}, v25")
    A(f"s_add_u32 s34, s48, {L.AT}\ns_add_u32 s35, s34, 4096")
    for f in range(8):
        vm.wait(("P", f))
        acc, t, o = 40, 48, 80 + 4 * f
        for sp in range(4):
            raw = 128 + 16 * f + 4 * sp
            for e in range(4):
                A(f"v_lshlrev_b32 {v(t+2*e)}, 16, {v(raw+e)}\nv_and_b32 {v(t+2*e+1)}, s49, {v(raw+e)}")
            for e in range(4):
                if sp == 0:
                    A(f"v_pk_mul_f32 {v(acc+2*e,2)}, {v(t+2*e,2)}, {v(wr[sp],2)} op_sel_hi:[1,0]")
                else:
                    A(f"v_pk_fma_f32 {v(acc+2*e,2)}, {v(t+2*e,2)}, {v(wr[sp],2)}, {v(acc+2*e,2)} op_sel_hi:[1,0,1]")
        for e in range(4):
            A(f"v_cvt_pk_bf16_f32 {v(o+e)}, {v(acc+2*e)}, {v(acc+2*e+1)}")
        vm.issue("sAT", f"buffer_store_dwordx4 {v(o,4)}, v1, s[20:23], s{34+(f>>2)} offen offset:{(f&3)*1024}{SL if 'atl' in EXP else SC}")
        if f == 5:
            m.poll_check(F_ML, False, 13)
            A("s_barrier")
            gdl = gG.dlist()
            for x in gdl[:18]:
                x()
    for x in gdl[18:]:
        x()
    A("PF_F_END:")
    A.stamp('F')
    TA = 208
    A(f"s_lshl_b32 s32, s28, 17\ns_add_u32 s32, s32, {L.AT - 16384}")
    for par in range(2):
        A(f"s_lshl_b32 s{70+par}, s31, 15\ns_add_u32 s{70+par}, s{70+par}, {L.W2 + par*16384}")
    gH = G4(A, vm, lk, NB=10, wn=2, KS=16, kps=2, NS=4, WD=16, s_act=32, blk_stride=16384, s_w=[70, 71],
            acc0=16, fr0=128, w0=256 + 64, vl16=1, vt=120, st=62, lds0=0, swap=True, dfl=LL, stamps=('H0', 'H1', 'Hx'), halo=True)
    gH.setup()
    hw = gH.wlist(16)
    tl = c4_tload(A, vm, TA, 32)
    def extraG(k):
        out = hw[3 * k: 3 * k + 3] if k < 12 else []
        if 2 <= k < 12:
            out = out + [tl[k - 2]]
        if k == 2:
            out = [lambda: m.signal(F_AT, "sAT", 12)] + out
        if k == 11:
            out = out + [lambda: m.poll_issue(F_AT, True, 13)]
        if k == 13:
            out = out + [lambda: m.poll_check(F_AT, True, 13)] + gH.dlist()
        return out
    gG.run(extraG)
    A.stamp('G')
    A(f"s_lshl_b32 s32, s28, 18\ns_add_u32 s32, s32, {L.MM}")
    for par in range(2):
        A(f"s_lshl_b32 s{60+par}, s31, 16\ns_add_u32 s{60+par}, s{60+par}, {L.W3 + par*32768}")
    gI = G4(A, vm, lk, NB=8, wn=2, KS=16, kps=2, NS=8, WD=8, s_act=32, blk_stride=32768, s_w=[60, 61],
            acc0=256 + 192, fr0=128, w0=256, vl16=1, vt=116, st=50, lds0=0, dfl=LL, stamps=('I0', 'I1', 'Ix'))
    gI.setup()
    iw = gI.wlist(8)
    gH.run(lambda k: iw[2 * k: 2 * k + 2])
    c4_addr(A, 98304, CV)
    conv_store(gH, 0, TA, None, "sMG")
    A.stamp('H2')
    m.signal(F_MG, "sMG", 12)
    m.poll_issue(F_MG, False, 13)
    XR = 208
    A("v_and_b32 v7, 15, v0\nv_lshlrev_b32 v7, 10, v7\nv_lshrrev_b32 v6, 4, v0\nv_lshl_add_u32 v7, v6, 4, v7")
    A("s_lshr_b32 s33, s28, 5\ns_and_b32 s34, s28, 31\ns_lshl_b32 s34, s34, 7")
    A(f"s_mul_i32 s33, s33, {L.T}\ns_lshl_b32 s35, s31, 6")
    for b in range(8):
        A(f"s_add_u32 s36, s34, {16*b}\ns_add_u32 s37, s36, s33\ns_lshl_b32 s37, s37, 10\ns_add_u32 s37, s37, s35")
        A(f"s_cmp_lt_u32 s36, {L.T}\ns_cselect_b32 s{62+b}, s37, 0x40000000")
    m.poll_check(F_MG, False, 13)
    A("s_barrier")
    for f in gI.dlist():
        f()
    def extraI(k):
        if 2 <= k < 10:
            b = k - 2
            return [(("X", b), f"buffer_load_dwordx4 {v(XR+4*b,4)}, v7, s[8:11], s{62+b} offen")]
        return []
    gI.run(extraI, first_c=None)
    for b in range(8):
        vm.wait(("X", b))
        q = gI.accs[(b, 0)]
        x = XR + 4 * b
        t = 16 + 16 * (b & 1)
        for i in range(8):
            A(f"v_accvgpr_read_b32 {v(t+8+i)}, {R(q+i)}")
        for i in range(4):
            A(f"v_lshlrev_b32 {v(t+2*i)}, 16, {v(x+i)}\nv_and_b32 {v(t+2*i+1)}, s49, {v(x+i)}")
        for i in range(4):
            A(f"v_pk_add_f32 {v(t+2*i,2)}, {v(t+8+2*i,2)}, {v(t+2*i,2)}")
        for i in range(4):
            A(f"v_cvt_pk_bf16_f32 {v(x+i)}, {v(t+2*i)}, {v(t+2*i+1)}")
        vm.issue("S", f"buffer_store_dwordx4 {v(x,4)}, v7, s[12:15], s{62+b} offen")
    A.endpgm()
    A("PF_END:")
    rare(A, 0)
    rare(A, 1)
    assert A.check_branches() == 0
    return name, A.text() + "\n" + kdesc(name, 256, 256, 102), f"; @launch {'kernel=' + name + ' ' if 'mega' in name else ''}grid=(256,1,1) block=(256,1,1) lds=163840"
```

```python
from asmlib import *
import layout as L
from k0 import srd, xlane_sum, chan_lane
from g4 import *
import math
SC = " sc1"
OOB = 0x7f000000
import os
PFPOS = int(os.environ.get('PFPOS', '0'))
NDRIP0 = int(os.environ.get('NDRIP0', '0'))

def ldptr(A, dst, idx):
    A(f"s_load_dwordx2 s[{dst}:{dst+1}], s[0:1], {idx*8}")

def fix_srd(A, d, nbytes):
    A(f"s_and_b32 s{d+1}, s{d+1}, 0xffff\ns_mov_b32 s{d+2}, {nbytes}\ns_mov_b32 s{d+3}, 0x20000")

def ww_mm(A, AF, BF, AC, red, t0, sh=12):
    for ks in range(4):
        for a in range(2):
            for b in range(2):
                ac = AC + (b * 2 + a) * 4
                A(f"{MF} {v(ac,4)}, {v(AF+(a*4+ks)*4,4)}, {v(BF+(b*4+ks)*4,4)}, {'0' if ks == 0 else v(ac,4)}")
    A(f"s_lshl_b32 s33, s3, {sh}\ns_add_u32 s33, s33, {red}\nv_add_u32 {v(t0)}, s33, v1")
    A(f"s_and_b32 s33, s3, 1\ns_lshl_b32 s33, s33, 11\ns_add_u32 s33, s33, {red}\nv_add_u32 {v(t0+1)}, s33, v1")
    for i in range(4):
        A(f"ds_write_b128 {v(t0)}, {v(AC+4*i,4)} offset:{i*1024}")
    A("s_waitcnt lgkmcnt(0)")
    A("s_barrier")
    for src in range(4):
        for a in range(2):
            A(f"ds_read_b128 {v(AF+(src*2+a)*4,4)}, {v(t0+1)} offset:{(src<<sh)+a*1024}")

def ww_fin(A, vm, AF, BF, scale, base, tag):
    A(f"s_lshr_b32 s33, s2, 4\ns_lshl_b32 s33, s33, 1\ns_and_b32 s34, s3, 1\ns_add_u32 s33, s33, s34\ns_lshl_b32 s33, s33, 14")
    A(f"s_and_b32 s34, s2, 15\ns_lshl_b32 s34, s34, 10\ns_add_u32 s33, s33, s34\ns_add_u32 s33, s33, {base}")
    A("s_waitcnt lgkmcnt(0)")
    for src in range(1, 4):
        for i in range(4):
            A(f"v_pk_add_f32 {v(AF+2*i,2)}, {v(AF+2*i,2)}, {v(AF+src*8+2*i,2)}")
    if scale:
        for i in range(8):
            A(f"v_mul_f32 {v(AF+i)}, {hex(f2u(scale))}, {v(AF+i)}")
    for i in range(4):
        A(f"v_cvt_pk_bf16_f32 {v(BF+i)}, {v(AF+2*i)}, {v(AF+2*i+1)}")
    vm.issue(tag, f"buffer_store_dwordx4 {v(BF,4)}, v1, s[20:23], s33 offen{SC}")

def swz_voffs(A, d, t):
    A(f"v_lshrrev_b32 {v(t)}, 4, v0\nv_and_b32 {v(t+1)}, 15, v0\nv_mul_u32_u24 {v(t+2)}, 3072, {v(t)}")
    for c in range(4):
        A(f"v_add_u32 {v(d+c)}, {4*c}, {v(t)}\nv_xor_b32 {v(d+c)}, {v(d+c)}, {v(t+1)}\nv_lshl_add_u32 {v(d+c)}, {v(d+c)}, 4, {v(t+2)}")

def phase_p0(m, gu):
    A, vm, lk = m.A, m.vm, m.lk
    A.stamp("a0")
    gu.setup()
    A("s_and_b32 s32, s28, 31\ns_lshl_b32 s32, s32, 7\ns_lshl_b32 s33, s31, 3\ns_add_u32 s32, s32, s33")
    A(f"s_lshr_b32 s33, s28, 5\ns_mul_i32 s33, s33, {L.T}\ns_add_u32 s33, s33, s32\ns_lshl_b32 s33, s33, 10")
    A(f"s_cmp_lt_u32 s32, {L.T}\ns_cselect_b32 s33, s33, {OOB}")
    P, Uq = 16, 48
    XRB = 118784
    A(f"s_lshl_b32 s48, s3, 13\ns_add_u32 s48, s48, {XRB}")
    for jj in range(8):
        A(f"s_add_u32 m0, s48, {jj*1024 - jj*128}")
        vm.issue("x", f"buffer_load_dwordx4 v2, s[8:11], s33 offen offset:{jj*128} lds")
    A.stamp("a1")
    TL = int(os.environ.get('TLB', '0'))
    if TL:
        A(f"s_lshl_b32 s33, s3, {TL+6}\nv_lshlrev_b32 v142, {TL}, v0")
        vm.issue("pf", "buffer_load_dword v143, v142, s[20:23], s33 offen sc1")
        vm.issue("pf", "buffer_load_dword v143, v142, s[12:15], s33 offen sc1")
    gu.skew()
    QKB = GU.SLOT
    RED = XRB
    swz_voffs(A, 8, 12)
    A(f"s_and_b32 s34, s2, 15\ns_lshr_b32 s35, s2, 4\ns_lshl_b32 s37, s3, 8\ns_mul_i32 s38, s34, {32*3072}\ns_add_u32 s38, s38, s37")
    A(f"s_mul_i32 s39, s35, {32*3072}\ns_add_u32 s39, s39, s37\ns_add_u32 s39, s39, 1024")
    A(f"s_lshl_b32 s36, s3, 14\ns_add_u32 s36, s36, {QKB}")
    dl = []
    def wq(i):
        r = 38 + (i >> 3)
        A(f"s_add_u32 m0, s36, {i*1024}\ns_nop 0")
        vm.issue("wq", f"buffer_load_dwordx4 {v(8+(i&3))}, s[44:47], s{r} offen lds")
        A(f"s_add_u32 s{r}, s{r}, {4*3072}")
    for i in range(16):
        dl.append(lambda i=i: wq(i))
    A("s_cmp_lt_u32 s2, 32")
    A("s_cselect_b32 s68, s60, s62\ns_cselect_b32 s69, s61, s63\ns_cselect_b32 s37, 10, 11\ns_cselect_b32 s32, 0, 32")
    A("s_and_b32 s69, s69, 0xffff\ns_sub_u32 s32, s2, s32\ns_lshl_b32 s33, 1, s37\ns_mul_i32 s70, s33, 31\ns_mov_b32 s71, 0x20000")
    A("s_cmp_lt_u32 s2, 96\ns_cselect_b32 s70, s70, 0")
    A("v_lshrrev_b32 v112, 2, v0\nv_and_b32 v113, 3, v0")
    chan_lane(A, 114, 112, 115)
    A("s_lshr_b32 s33, s32, 1\ns_lshl_b32 s33, s33, 5\ns_and_b32 s34, s32, 1\ns_lshl_b32 s34, s34, 2\ns_add_u32 s33, s33, s34")
    A("v_add_u32 v114, s33, v114\nv_lshlrev_b32 v114, 1, v114")
    A("v_bfrev_b32 v116, -2")
    A("s_lshl_b32 s33, s3, 3\nv_sub_u32 v115, s33, v113")
    TP = 120
    for e in range(12):
        if e < 8:
            A(f"v_add_u32 v117, {e-1}, v115")
        else:
            A(f"v_sub_u32 v117, {23+e}, v113")
        A("v_cmp_gt_i32 vcc, 0, v117\nv_lshlrev_b32 v117, s37, v117\nv_add_u32 v117, v117, v114")
        A(f"v_cndmask_b32 {v(TP+e)}, v117, v116, vcc")
        dl.append(lambda e=e: vm.issue("tp", f"buffer_load_ushort {v(TP+e)}, {v(TP+e)}, s[68:71], 0 offen"))
    def drip(n=1):
        for _ in range(n):
            if dl:
                dl.pop(0)()
    A(f"v_mov_b32 v118, 0\nv_mul_u32_u24 v119, {L.FK}, v0\nv_cmp_gt_u32 vcc, 4, v0\ns_nop 1\nv_cndmask_b32 v119, v116, v119, vcc")
    A(f"s_mul_i32 s32, s30, {4*L.FK}\ns_add_u32 s32, s32, s24")
    dl.append(lambda: vm.issue("p0s", f"buffer_store_dword v118, v119, s[20:23], s32 offen{SC}"))
    gu.setup2()
    A(f"s_lshl_b32 s33, s28, 7\ns_lshl_b32 s34, s31, 3\ns_add_u32 s33, s33, s34")
    A(f"s_lshl_b32 s35, s33, 3\ns_add_u32 s35, s35, {L.RS}")
    A(f"s_lshr_b32 s34, s33, 4\ns_lshl_b32 s34, s34, 14\ns_and_b32 s33, s33, 15\ns_lshl_b32 s33, s33, 4\ns_add_u32 s34, s34, s33\ns_add_u32 s34, s34, {L.XA}")
    A("v_lshlrev_b32 v7, 4, v4\nv_lshl_add_u32 v7, v5, 8, v7")
    A("v_lshlrev_b32 v6, 3, v0\nv_cmp_gt_u32 vcc, 8, v0\ns_nop 1\nv_cndmask_b32 v6, v116, v6, vcc")
    A.stamp("a2")
    if os.environ.get("ORD", "1") == "1":
        drip(16)
        st0 = gu.dma(0); gu.d_issued = 1
        grp = []
        cur = []
        for y in st0:
            cur.append(y)
            if y[0] is not None:
                grp.append(cur); cur = []
        grp[-1] += cur
        tpl = dl[:12]; rest = dl[12:]
        dl[:] = [lambda: [f() for f in tpl[:6]], lambda: [f() for f in tpl[6:]]] + \
                [(lambda g_=g_: [gu.emit(y) for y in g_]) for g_ in grp] + rest
    else:
        gu.issue_stage()
    A.stamp("i0")
    drip(NDRIP0)
    A("v_xor_b32 v142, v4, v5\nv_lshlrev_b32 v142, 4, v142\nv_lshl_add_u32 v142, v4, 7, v142\nv_add_u32 v142, s48, v142")
    vm.wait("x")
    for jj in range(8):
        lk.issue(("x", jj), f"ds_read_b128 {v(P+4*jj,4)}, v142 offset:{jj*1024}")
    drip(2)
    for jj in range(8):
        lk.wait(("x", jj))
        for i in range(4):
            r = P + 4 * jj + i
            u = Uq + 2 * (4 * jj + i)
            A(f"v_lshlrev_b32 {v(u)}, 16, {v(r)}")
            A(f"v_and_b32 {v(u+1)}, s49, {v(r)}")
        drip()
    A.stamp("x")
    acc = 132
    A(f"v_pk_add_f32 {v(acc,2)}, {v(Uq,2)}, {v(Uq+2,2)}")
    A(f"v_pk_add_f32 {v(acc+2,2)}, {v(Uq+4,2)}, {v(Uq+6,2)}")
    for i in range(4, 32):
        a = acc + 2 * (i & 1)
        A(f"v_pk_add_f32 {v(a,2)}, {v(a,2)}, {v(Uq+2*i,2)}")
        if i % 4 == 0: drip()
    A(f"v_pk_add_f32 {v(acc,2)}, {v(acc,2)}, {v(acc+2,2)}")
    A(f"v_add_f32 {v(acc)}, {v(acc)}, {v(acc+1)}")
    xlane_sum(A, acc, acc + 1, (8, 16, 32))
    A(f"v_mul_f32 {v(acc)}, {hex(f2u(-1.0/512))}, {v(acc)}")
    for i in range(32):
        A(f"v_pk_add_f32 {v(Uq+2*i,2)}, {v(Uq+2*i,2)}, {v(acc,2)} op_sel_hi:[1,0]")
        if i % 4 == 0: drip()
    q = 136
    A(f"v_pk_mul_f32 {v(q,2)}, {v(Uq,2)}, {v(Uq,2)}")
    A(f"v_pk_mul_f32 {v(q+2,2)}, {v(Uq+2,2)}, {v(Uq+2,2)}")
    for i in range(2, 32):
        a = q + 2 * (i & 1)
        A(f"v_pk_fma_f32 {v(a,2)}, {v(Uq+2*i,2)}, {v(Uq+2*i,2)}, {v(a,2)}")
        if i % 4 == 0: drip()
    drip(100)
    m.nonce_issue(143)
    A(f"v_pk_add_f32 {v(q,2)}, {v(q,2)}, {v(q+2,2)}")
    A(f"v_add_f32 {v(q)}, {v(q)}, {v(q+1)}")
    xlane_sum(A, q, q + 1, (8, 16, 32))
    A(f"v_mov_b32 {v(q+1)}, {hex(f2u(1e-5))}")
    A(f"v_fmac_f32 {v(q+1)}, {hex(f2u(1.0/512))}, {v(q)}")
    A(f"v_rsq_f32 {v(q)}, {v(q+1)}")
    A(f"v_mov_b32 {v(q+1)}, {v(acc)}")
    vm.issue("p0s", f"buffer_store_dwordx2 {v(q,2)}, v6, s[20:23], s35 offen{SC}")
    for jj in range(8):
        for i in range(4):
            u = Uq + 2 * (4 * jj + i)
            A(f"v_pk_mul_f32 {v(u,2)}, {v(u,2)}, {v(q,2)} op_sel_hi:[1,0]")
        for i in range(4):
            u = Uq + 2 * (4 * jj + i)
            A(f"v_cvt_pk_bf16_f32 {v(P+4*jj+i)}, {v(u)}, {v(u+1)}")
        if jj % 2 == 0 and jj:
            A("s_add_u32 s34, s34, 4096")
        vm.issue("p0s", f"buffer_store_dwordx4 {v(P+4*jj,4)}, v7, s[20:23], s34 offen offset:{(jj&1)*2048}{SC}")
    A.stamp("ln")
    AF, BF, AC = 48, 80, 144
    A("v_and_b32 v14, 15, v0")
    chan_lane(A, 12, 14, 13)
    A("v_and_b32 v13, 15, v12\nv_lshrrev_b32 v14, 4, v0\nv_xor_b32 v13, v13, v14\nv_lshlrev_b32 v13, 4, v13\nv_lshl_add_u32 v13, v12, 8, v13\nv_add_u32 v160, s36, v13")
    for c in range(1, 4):
        A(f"v_xor_b32 {v(160+c)}, {64*c}, v160")
    vm.wait("tp")
    A.stamp("tp")
    for ks in range(4):
        for u in range(2):
            A(f"ds_read_b128 {v(AF+(u*4+ks)*4,4)}, {v(160+(ks^u))} offset:{1024*u}")
            A(f"ds_read_b128 {v(BF+(u*4+ks)*4,4)}, {v(160+(ks^u))} offset:{8192+1024*u}")
        if ks == 1:
            A("s_waitcnt lgkmcnt(0)")
    for i in range(6):
        A(f"v_lshl_or_b32 {v(TP+i)}, {v(TP+2*i+1)}, 16, {v(TP+2*i)}")
    A("v_and_b32 v117, 1, v113\nv_lshlrev_b32 v117, 4, v117\nv_mov_b32 v118, 0x3f80\nv_lshlrev_b32 v118, v117, v118")
    A("v_cmp_gt_u32 vcc, 2, v113\ns_nop 1")
    A(f"v_cndmask_b32 {v(TP+6)}, 0, v118, vcc\nv_cndmask_b32 {v(TP+7)}, v118, 0, vcc")
    A(f"s_mul_i32 s33, s2, 5120\ns_add_u32 s33, s33, {L.TT}\ns_cmp_lt_u32 s2, 96\ns_cselect_b32 s33, s33, {OOB}")
    A("s_add_u32 s34, s33, 4096\ns_lshl_b32 s35, s3, 10\ns_add_u32 s33, s33, s35")
    vm.issue("p0s", f"buffer_store_dwordx4 {v(TP,4)}, v1, s[20:23], s33 offen{SC}")
    vm.issue("p0s", f"buffer_store_dwordx4 {v(TP+4,4)}, v1, s[20:23], s34 offen{SC}")
    A("s_waitcnt lgkmcnt(0)")
    c = 512 ** -0.5 * math.log2(math.e)
    ww_mm(A, AF, BF, AC, RED, 12, 13)
    A.stamp("b0")
    gu.issue_stage()
    ww_fin(A, vm, AF, BF, c, L.W1, "p0s")
    A.stamp("b1")
    m.nonce_get(143)
    vm.wait(("D", id(gu), 0))
    A("s_barrier")
    gu.issue_stage()
    A.stamp("p0c")


def late_warm(m, t):
    A, vm = m.A, m.vm
    ldptr(A, 96, 2); ldptr(A, 68, 7)
    A(f"v_and_b32 {v(t)}, 31, v0\nv_lshlrev_b32 {v(t)}, 7, {v(t)}")
    A("s_lshr_b32 s33, s2, 3\ns_lshl_b32 s33, s33, 2\ns_add_u32 s33, s33, s3\ns_lshl_b32 s33, s33, 12")
    A("s_waitcnt lgkmcnt(0)")
    m.lk.q = []
    fix_srd(A, 96, 0x80000)
    vm.issue("pf", f"buffer_load_dword {v(t+1)}, {v(t)}, s[96:99], s33 offen")


def late_issue(m, t):
    A, vm = m.A, m.vm
    ldptr(A, 44, 1); ldptr(A, 40, 2); ldptr(A, 52, 7); ldptr(A, 56, 5)
    swz_voffs(A, t, t + 4)
    A(f"v_lshrrev_b32 {v(t+4)}, 2, v0\nv_and_b32 {v(t+5)}, 3, v0\nv_lshlrev_b32 {v(t+4)}, 10, {v(t+4)}\nv_lshl_add_u32 {v(t+4)}, {v(t+5)}, 4, {v(t+4)}")
    A(f"v_lshrrev_b32 {v(t+5)}, 3, v0\nv_and_b32 {v(t+6)}, 7, v0\nv_lshlrev_b32 {v(t+5)}, 10, {v(t+5)}\nv_lshl_add_u32 {v(t+5)}, {v(t+6)}, 4, {v(t+5)}")
    A("s_and_b32 s34, s2, 15\ns_lshr_b32 s38, s34, 3\ns_lshl_b32 s38, s38, 8\ns_and_b32 s39, s34, 7\ns_lshl_b32 s39, s39, 4\ns_add_u32 s38, s38, s39")
    A("s_mul_i32 s38, s38, 3072\ns_lshl_b32 s37, s3, 8\ns_add_u32 s38, s38, s37\ns_add_u32 s38, s38, 2048")
    A("s_lshr_b32 s35, s2, 4\ns_lshl_b32 s39, s3, 17\ns_lshl_b32 s35, s35, 6\ns_add_u32 s39, s39, s35")
    A("s_lshr_b32 s34, s2, 3\ns_lshl_b32 s34, s34, 5\ns_lshl_b32 s35, s3, 3\ns_add_u32 s34, s34, s35\ns_lshl_b32 s34, s34, 10\ns_and_b32 s35, s2, 7\ns_lshl_b32 s35, s35, 7\ns_add_u32 s37, s34, s35")
    A("s_lshl_b32 s36, s3, 14\ns_lshl_b32 s35, s3, 10")
    A("s_waitcnt lgkmcnt(0)")
    m.lk.q = []
    fix_srd(A, 44, 512 * 3072); fix_srd(A, 40, 0x80000); fix_srd(A, 52, 0x100000); fix_srd(A, 56, 0x80000)
    out = []
    for i in range(8):
        out.append((None, f"s_add_u32 m0, s36, {i*1024}"))
        out.append(("vo", f"buffer_load_dwordx4 {v(t+(i&3))}, s[44:47], s38 offen lds"))
        out.append((None, f"s_add_u32 s38, s38, {4*3072 if i != 3 else (128-12)*3072}"))
    for i in range(8):
        out.append((None, f"s_add_u32 m0, s36, {8192 + i*1024}"))
        out.append(("vo", f"buffer_load_dwordx4 {v(t+4)}, s[40:43], s39 offen lds"))
        out.append((None, "s_add_u32 s39, s39, 16384"))
    out.append((None, "s_add_u32 m0, s35, 65536"))
    out.append(("vo", f"buffer_load_dwordx4 {v(t+5)}, s[52:55], s37 offen lds"))
    out.append((None, f"s_add_u32 m0, s35, {65536+4096}"))
    out.append(("vo", f"buffer_load_dwordx4 {v(t+5)}, s[56:59], s37 offen lds"))
    return out


def late_compute(m, AF, BF, AC, t):
    A, vm = m.A, m.vm
    A(f"v_and_b32 {v(t+5)}, 7, v0\nv_bfe_u32 {v(t+4)}, v0, 3, 1\nv_lshl_add_u32 {v(t+4)}, {v(t+4)}, 4, {v(t+5)}\nv_lshrrev_b32 {v(t+6)}, 4, v0")
    A(f"v_xor_b32 {v(t+5)}, {v(t+5)}, {v(t+6)}\nv_lshlrev_b32 {v(t+5)}, 4, {v(t+5)}\nv_lshl_add_u32 {v(t+5)}, {v(t+4)}, 8, {v(t+5)}")
    A(f"s_lshl_b32 s36, s3, 14\nv_add_u32 {v(t)}, s36, {v(t+5)}")
    for c_ in range(1, 4):
        A(f"v_xor_b32 {v(t+c_)}, {64*c_}, {v(t)}")
    A(f"v_bfe_u32 {v(t+4)}, v0, 2, 2\nv_lshl_add_u32 {v(t+4)}, {v(t+6)}, 3, {v(t+4)}\nv_and_b32 {v(t+5)}, 3, v0\nv_lshlrev_b32 {v(t+5)}, 4, {v(t+5)}")
    A(f"v_lshl_add_u32 {v(t+6)}, {v(t+4)}, 6, {v(t+5)}\nv_add_u32 {v(t+6)}, s36, {v(t+6)}")
    A(f"s_lshr_b32 s34, s3, 1\ns_lshl_b32 s34, s34, 6\ns_and_b32 s33, s3, 1\ns_lshl_b32 s33, s33, 3\ns_add_u32 s34, s34, s33\ns_add_u32 s34, s34, 65536")
    A(f"v_lshl_add_u32 {v(t+7)}, {v(t+4)}, 7, {v(t+5)}\nv_add_u32 {v(t+7)}, s34, {v(t+7)}")
    vm.wait("vo")
    for ks in range(4):
        for u in range(2):
            A(f"ds_read_b128 {v(AF+(u*4+ks)*4,4)}, {v(t+(ks^(2*u)))} offset:{2048*u}")
            r = BF + (u * 4 + ks) * 4
            A(f"ds_read_b64_tr_b16 {v(r,2)}, {v(t+6)} offset:{8192+ks*2048+8*u}")
            A(f"ds_read_b64_tr_b16 {v(r+2,2)}, {v(t+6)} offset:{8192+ks*2048+8*u+256}")
        if ks & 1:
            A("s_waitcnt lgkmcnt(0)")
    ww_mm(A, AF, BF, AC, 0, t, 14)
    TR = BF + 8
    for k in range(2):
        A(f"ds_read_b64_tr_b16 {v(TR+4*k,2)}, {v(t+7)} offset:{k*4096}")
        A(f"ds_read_b64_tr_b16 {v(TR+4*k+2,2)}, {v(t+7)} offset:{k*4096+512}")
    ww_fin(A, vm, AF, BF, None, L.W2, "vos")
    A(f"s_and_b32 s35, s2, 7\ns_lshl_b32 s35, s35, 2\ns_add_u32 s35, s35, s3\ns_lshr_b32 s33, s2, 3\ns_lshl_b32 s33, s33, 10")
    A(f"s_lshl_b32 s32, s35, 15\ns_add_u32 s32, s32, s33\ns_add_u32 s32, s32, {L.W3}")
    vm.issue("vos", f"buffer_store_dwordx4 {v(TR,4)}, v1, s[20:23], s32 offen{SC}")
    A(f"s_lshl_b32 s32, s35, 14\ns_add_u32 s32, s32, s33\ns_add_u32 s32, s32, {L.W2 + 32*16384}\ns_cmp_lt_u32 s2, 128\ns_cselect_b32 s32, s32, {OOB}")
    vm.issue("vos", f"buffer_store_dwordx4 {v(TR+4,4)}, v1, s[20:23], s32 offen{SC}")
    A.stamp("vo")
```

```python
from asmlib import *
import layout as L
from k0 import srd
from g4 import *
from gemm import gelu_consts, emit_gelu

IB = 4352
IG = 272
IMG = 10 * IB

def head(A, name, ptrs=()):
    A(f".globl {name}\n.p2align 8\n.type {name},@function\n{name}:\n{name}_S:")
    A("s_cmp_ge_u32 s2, 256")
    A(f"s_cbranch_scc1 {name}_END")
    A.stamp_init()
    A("s_load_dwordx2 s[16:17], s[0:1], 80")
    for (sreg, off) in ptrs:
        A(f"s_load_dwordx2 s[{sreg}:{sreg+1}], s[0:1], {off}")
    A("v_lshrrev_b32 v1, 6, v0")
    A("v_and_b32 v0, 63, v0")
    A("v_readfirstlane_b32 s3, v1")
    A("v_lshlrev_b32 v1, 4, v0")
    A("s_and_b32 s28, s2, 7\ns_lshr_b32 s29, s2, 3\ns_and_b32 s30, s29, 3\ns_lshr_b32 s29, s29, 2")
    A("s_lshl_b32 s28, s28, 3\ns_add_u32 s28, s28, s29")
    A("s_lshl_b32 s31, s30, 2\ns_add_u32 s31, s31, s3")
    A("s_mov_b32 s49, 0xffff0000")
    A("s_waitcnt lgkmcnt(0)")
    srd(A, 20, 16, L.WS_BYTES)

def tail(A, name, lds, nv=256, na=256):
    A.endpgm()
    A(f"{name}_END:")
    A("s_endpgm")
    assert A.check_branches() == 0
    return name, A.text() + "\n" + kdesc(name, nv, na, 100), f"; @launch kernel={name} grid=(256,1,1) block=(256,1,1) lds={lds}"

def phase_p1(A, vm, lk):
    A(f"s_lshl_b32 s32, s28, 17")
    if L.XA:
        A(f"s_add_u32 s32, s32, {L.XA}")
    for kind in range(3):
        for par in range(2):
            A(f"s_lshl_b32 s{34+kind*2+par}, s31, 15\ns_add_u32 s{34+kind*2+par}, s{34+kind*2+par}, {L.W1 + (kind*32+par)*16384}")
    g = G4(A, vm, lk, NB=8, wn=6, KS=16, kps=2, NS=4, WD=4, s_act=32, blk_stride=16384, s_w=list(range(34, 40)),
           acc0=16, fr0=256, w0=320, vl16=1, vt=2, st=50)
    g.setup()
    g.prefetch()
    A.stamp(1)
    g.run()
    A.prefetch_code("k2_attn_kernel_S", "K2_END", 32768, 8, vm=vm)
    A("s_lshl_b32 s40, s28, 17\ns_lshl_b32 s41, s31, 10\ns_add_u32 s40, s40, s41")
    A(f"s_add_u32 s41, s40, {L.U}\ns_add_u32 s42, s40, {L.G}\ns_add_u32 s40, s40, {L.QP}")
    c0, c1 = gelu_consts()
    tmp = list(range(208, 224))
    st = 224
    A(f"v_mov_b32 v6, {hex(f2u(c0))}\ns_mov_b32 s43, {hex(f2u(c1))}")
    for b in range(8):
        q = g.accs[(b, 0)]
        for i in range(4):
            A(f"v_cvt_pk_bf16_f32 {v(q+i)}, {v(q+2*i)}, {v(q+2*i+1)}")
        vm.issue("S", f"buffer_store_dwordx4 {v(q,4)}, v1, s[20:23], s40 offen")
        A("s_add_u32 s40, s40, 16384")
    for b in range(8):
        u, gq = g.accs[(b, 2)], g.accs[(b, 4)]
        emit_gelu(A, list(range(u, u + 8)) + list(range(gq, gq + 8)), tmp, 6, 43)
        for i in range(4):
            A(f"v_cvt_pk_bf16_f32 {v(u+i)}, {v(u+2*i)}, {v(u+2*i+1)}")
        vm.issue("S", f"buffer_store_dwordx4 {v(u,4)}, v1, s[20:23], s41 offen")
        for i in range(4):
            A(f"v_cvt_pk_bf16_f32 {v(u+4+i)}, {v(gq+2*i)}, {v(gq+2*i+1)}")
        vm.issue("S", f"buffer_store_dwordx4 {v(u+4,4)}, v1, s[20:23], s42 offen")
        A("s_add_u32 s41, s41, 16384\ns_add_u32 s42, s42, 16384")
        s1, s2 = st + (b >> 2) * 8 + (b & 3), st + (b >> 2) * 8 + 4 + (b & 3)
        A(f"v_add_f32 {v(s1)}, {v(gq)}, {v(gq+1)}")
        A(f"v_mul_f32 {v(s2)}, {v(gq)}, {v(gq)}")
        for i in range(1, 8):
            if i >= 2:
                A(f"v_add_f32 {v(s1)}, {v(s1)}, {v(gq+i)}")
            A(f"v_fmac_f32 {v(s2)}, {v(gq+i)}, {v(gq+i)}")
    A("s_lshl_b32 s37, s28, 5\ns_add_u32 s37, s37, s31\ns_lshl_b32 s37, s37, 9")
    A(f"s_add_u32 s37, s37, {L.GST}\ns_add_u32 s38, s37, 8192")
    A("v_lshlrev_b32 v7, 3, v0")
    for h in range(2):
        for o in (0, 4):
            x = st + h * 8 + o
            A(f"v_permlane32_swap_b32 {v(x)}, {v(x+2)}")
            A(f"v_permlane32_swap_b32 {v(x+1)}, {v(x+3)}")
            A(f"v_add_f32 {v(x)}, {v(x)}, {v(x+2)}")
            A(f"v_add_f32 {v(x+1)}, {v(x+1)}, {v(x+3)}")
            A(f"v_permlane16_swap_b32 {v(x)}, {v(x+1)}")
            A(f"v_add_f32 {v(x)}, {v(x)}, {v(x+1)}")
        x = st + h * 8
        A(f"v_mov_b32 {v(x+1)}, {v(x+4)}")
        vm.issue("S", f"buffer_store_dwordx2 {v(x,2)}, v7, s[20:23], s{37+h} offen")

def gen_k1n():
    A = Asm(); name = "k1_gemm_kernel"
    head(A, name)
    vm, lk = Q(A, "vmcnt", 63), Q(A, "lgkmcnt", 15)
    phase_p1(A, vm, lk)
    return tail(A, name, 65536, 256, 160)

RS = 336
T4B = 32 * RS
M4 = "v_mfma_f32_4x4x4_16b_bf16"

def c4_tload(A, vm, TA, grp0, tag="CW", sr=42):
    A(f"s_mul_i32 s{sr}, s31, 10240\ns_add_u32 s{sr}, s{sr}, {L.TT + grp0*5120}\ns_add_u32 s{sr+1}, s{sr}, 4096\ns_add_u32 s{sr+2}, s{sr}, 8192")
    return [(tag, f"buffer_load_dwordx4 {R(TA+4*i,4)}, v1, s[20:23], s{sr+(i>>2)} offen offset:{(i&3)*1024}") for i in range(10)]

def c4_addr(A, base, VA_):
    A(f"s_mul_i32 s45, s3, {T4B}\ns_add_u32 s45, s45, {base}")
    A(f"v_and_b32 {v(VA_)}, 15, v0\nv_mul_u32_u24 {v(VA_)}, {RS}, {v(VA_)}\nv_lshrrev_b32 {v(VA_+1)}, 4, v0")
    A(f"v_lshl_add_u32 {v(VA_)}, {v(VA_+1)}, 3, {v(VA_)}\nv_add_u32 {v(VA_)}, s45, {v(VA_)}")
    A(f"v_lshrrev_b32 {v(VA_+1)}, 2, v0\nv_mul_u32_u24 {v(VA_+1)}, {RS}, {v(VA_+1)}\nv_add_u32 {v(VA_+1)}, s45, {v(VA_+1)}")
    A(f"v_and_b32 {v(VA_+3)}, 3, v0")
    A(f"v_lshl_add_u32 {v(VA_+2)}, {v(VA_+3)}, 3, {v(VA_+1)}")
    A(f"v_lshl_add_u32 {v(VA_+1)}, {v(VA_+3)}, 6, {v(VA_+1)}")

def c4_write(lk, VA_, reg, b, u):
    lk.issue("wr", f"ds_write_b64 {v(VA_)}, {v(reg,2)} offset:{u*16*RS + b*32}")

def c4_core(A, lk, TA, B0, D0, VA_, OUT, ident, fill=None):
    fill = fill if fill is not None else []
    for h in range(2):
        for p in range(8):
            lk.issue(("B", h, p), f"ds_read_b128 {v(B0+32*h+4*p,4)}, {v(VA_+1)} offset:{h*16*RS + p*16}")
        if h == 0:
            lk.wait(("B", 0, 3))
    for h in range(2):
        for s_ in range(10 if ident else 9):
            if s_ < 9:
                lk.wait(("B", h, min(7, (7 + s_) >> 1)))
            for o in range(8):
                d = D0 + 32 * h + 4 * o
                un = o + (s_ if s_ < 9 else 4)
                c = "0" if s_ == 0 else v(d, 4)
                A(f"{M4} {v(d,4)}, {R(TA+20*h+2*s_,2)}, {v(B0+32*h+2*un,2)}, {c}")
                if fill and o == 7:
                    fill.pop(0)()
                if h == 1 and s_ >= 1 and s_ <= 4 and o % 2 == 0:
                    i = (s_ - 1) * 4 + o // 2
                    A(f"v_cvt_pk_bf16_f32 {v(B0+i)}, {v(D0+2*i)}, {v(D0+2*i+1)}")
            if h == 1 and s_ == 5:
                for p in range(4):
                    lk.issue("wr", f"ds_write_b128 {v(VA_+1)}, {v(B0+4*p,4)} offset:{p*16}")
    for i in range(16):
        A(f"v_cvt_pk_bf16_f32 {v(B0+32+i)}, {v(D0+32+2*i)}, {v(D0+32+2*i+1)}")
    for p in range(4):
        lk.issue("wr", f"ds_write_b128 {v(VA_+1)}, {v(B0+32+4*p,4)} offset:{16*RS + p*16}")
    for b in range(8):
        lk.issue(("O", b), f"ds_read_b64_tr_b16 {v(OUT+4*b,2)}, {v(VA_+2)} offset:{b*32}")
        lk.issue(("O", b), f"ds_read_b64_tr_b16 {v(OUT+4*b+2,2)}, {v(VA_+2)} offset:{16*RS + b*32}")
        if b == 3:
            lk.wait(("O", 1))

def phase_z(A, vm, lk, pre=None):
    TA, B0, D0, VA_ = 16, 56, 120, 8
    ACC = 120
    GR, UR = 184, 224
    FST = 4 * T4B
    STT = FST + 40960
    A("s_lshl_b32 s47, s3, 6\nv_add_u32 v13, s47, v0")
    A("s_lshl_b32 s47, s28, 7\ns_sub_u32 s47, s47, 16\nv_add_u32 v14, s47, v13")
    A("v_lshrrev_b32 v15, 6, v14\nv_and_b32 v15, 127, v15\nv_lshlrev_b32 v15, 13, v15")
    A("v_and_b32 v2, 63, v14\nv_lshl_add_u32 v15, v2, 3, v15")
    A(f"s_mov_b32 s47, {L.GST}\ns_add_u32 s48, s47, 4096")
    for i in range(16):
        vm.issue("ST", f"buffer_load_dwordx2 {v(ACC+2*i,2)}, v15, s[20:23], s{47+(i>>3)} offen offset:{(i&7)*512}")
    A(f"s_lshl_b32 s40, s28, 17\ns_lshl_b32 s41, s31, 10\ns_add_u32 s40, s40, s41")
    A(f"s_add_u32 s41, s40, {L.G - 16384}")
    for b in range(10):
        vm.issue(("G", b), f"buffer_load_dwordx4 {v(GR+4*b,4)}, v1, s[20:23], s41 offen")
        A("s_add_u32 s41, s41, 16384")
    for t, x in c4_tload(A, vm, TA, 0):
        vm.issue(t, x)
    A(f"s_add_u32 s41, s40, {L.U}")
    for b in range(8):
        vm.issue(("U", b), f"buffer_load_dwordx4 {v(UR+4*b,4)}, v1, s[20:23], s41 offen")
        A("s_add_u32 s41, s41, 16384")
    c4_addr(A, 0, VA_)
    A(f"s_mul_i32 s45, s3, 10240\ns_add_u32 s45, s45, {FST}\nv_add_u32 v3, s45, v1")
    A("v_lshrrev_b32 v12, 2, v0\nv_lshlrev_b32 v12, 4, v12\nv_and_b32 v2, 3, v0\nv_lshl_add_u32 v12, v2, 8, v12\nv_add_u32 v12, s45, v12")
    vm.wait("ST")
    for i in range(1, 16):
        A(f"v_pk_add_f32 {v(ACC,2)}, {v(ACC,2)}, {v(ACC+2*i,2)}")
    A(f"v_mul_f32 {v(ACC)}, {hex(f2u(1/512))}, {v(ACC)}")
    A(f"v_mul_f32 {v(ACC+1)}, {hex(f2u(1/512))}, {v(ACC+1)}")
    A(f"v_fma_f32 {v(ACC+1)}, -{v(ACC)}, {v(ACC)}, {v(ACC+1)}")
    A(f"v_max_f32 {v(ACC+1)}, 0, {v(ACC+1)}")
    A(f"v_add_f32 {v(ACC+1)}, {hex(f2u(1e-5))}, {v(ACC+1)}")
    A(f"v_rsq_f32 {v(ACC+2)}, {v(ACC+1)}")
    A(f"v_mul_f32 {v(ACC+3)}, {v(ACC)}, {v(ACC+2)}")
    A(f"v_sub_f32 {v(ACC+3)}, 0, {v(ACC+3)}")
    A("v_and_b32 v2, 4095, v14")
    A(f"s_movk_i32 s47, {L.T}\ns_movk_i32 s48, 8192")
    A("v_cmp_gt_u32 vcc, s47, v2")
    A("v_cmp_gt_u32 s[50:51], s48, v14")
    A("s_and_b64 vcc, vcc, s[50:51]")
    A("s_nop 1")
    A(f"v_cndmask_b32 {v(ACC+2)}, 0, {v(ACC+2)}, vcc")
    A(f"v_cndmask_b32 {v(ACC+3)}, 0, {v(ACC+3)}, vcc")
    A(f"v_lshlrev_b32 v2, 3, v13\nv_add_u32 v2, {STT}, v2")
    A(f"ds_write_b64 v2, {v(ACC+2,2)}")
    A("s_waitcnt lgkmcnt(0)")
    A("s_barrier")
    A(f"v_and_b32 v2, 15, v0\nv_lshlrev_b32 v2, 3, v2\nv_add_u32 v2, {STT}, v2")
    for b in range(10):
        lk.issue(("T", b), f"ds_read_b64 {v(ACC+2*b,2)}, v2 offset:{b*128}")
    for b in range(10):
        waits(A, vm, [("G", b)], lk, [("T", b)])
        t = ACC + 24 + 8 * (b & 1)
        for e in range(4):
            A(f"v_lshlrev_b32 {v(t+2*e)}, 16, {v(GR+4*b+e)}\nv_and_b32 {v(t+2*e+1)}, s49, {v(GR+4*b+e)}")
        for e in range(4):
            A(f"v_pk_fma_f32 {v(t+2*e,2)}, {v(t+2*e,2)}, {v(ACC+2*b,2)}, {v(ACC+2*b,2)} op_sel:[0,0,1] op_sel_hi:[1,0,1]")
        for e in range(4):
            A(f"v_cvt_pk_bf16_f32 {v(GR+4*b+e)}, {v(t+2*e)}, {v(t+2*e+1)}")
        lk.issue("wr", f"ds_write_b128 v3, {v(GR+4*b,4)} offset:{b*1024}")
        for u in range(2):
            lk.issue(("X", b), f"ds_read_b64_tr_b16 {v(B0+4*b+2*u,2)}, v12 offset:{b*1024+u*8}")
        if b >= 1:
            lk.wait(("X", b - 1))
            for u in range(2):
                c4_write(lk, VA_, B0 + 4 * (b - 1) + 2 * u, b - 1, u)
    lk.wait(("X", 9))
    for u in range(2):
        c4_write(lk, VA_, B0 + 36 + 2 * u, 9, u)
    vm.wait("CW")
    A.stamp(2)
    c4_core(A, lk, TA, B0, D0, VA_, GR, False, pre() if pre else None)
    A.stamp(3)
    A(f"s_add_u32 s41, s40, {L.Z}")
    for b in range(8):
        waits(A, vm, [("U", b)], lk, [("O", b)])
        t = ACC + 16 * (b & 1)
        for e in range(4):
            A(f"v_lshlrev_b32 {v(t+2*e)}, 16, {v(GR+4*b+e)}\nv_and_b32 {v(t+2*e+1)}, s49, {v(GR+4*b+e)}")
            A(f"v_lshlrev_b32 {v(t+8+2*e)}, 16, {v(UR+4*b+e)}\nv_and_b32 {v(t+8+2*e+1)}, s49, {v(UR+4*b+e)}")
        for e in range(4):
            A(f"v_pk_mul_f32 {v(t+2*e,2)}, {v(t+2*e,2)}, {v(t+8+2*e,2)}")
        for e in range(4):
            A(f"v_cvt_pk_bf16_f32 {v(GR+4*b+e)}, {v(t+2*e)}, {v(t+2*e+1)}")
        vm.issue("S", f"buffer_store_dwordx4 {v(GR+4*b,4)}, v1, s[20:23], s41 offen")
        A("s_add_u32 s41, s41, 16384")
    return STT + 2048

def comb_loads(A, vm):
    A("s_lshl_b32 s52, s28, 2\ns_add_u32 s52, s52, s30")
    A("v_and_b32 v4, 15, v0\nv_lshlrev_b32 v4, 2, v4")
    A(f"s_lshl_b32 s53, s52, 8\ns_lshr_b32 s54, s3, 1\ns_lshl_b32 s54, s54, 6\ns_add_u32 s53, s53, s54\ns_add_u32 s53, s53, {L.PML}")
    for sp in range(4):
        vm.issue("ML", f"buffer_load_dword {a_(128+sp)}, v4, s[20:23], s53 offen")
        vm.issue("ML", f"buffer_load_dword {a_(132+sp)}, v4, s[20:23], s53 offen offset:128")
        A("s_add_u32 s53, s53, 65536")
    A("s_lshl_b32 s55, s52, 15\ns_lshl_b32 s54, s3, 13\ns_add_u32 s55, s55, s54")
    for sp in range(4):
        A(f"s_add_u32 s{56+2*sp}, s55, {L.PO + sp*(8<<20)}\ns_add_u32 s{57+2*sp}, s{56+2*sp}, 4096")
    out = []
    for f in range(8):
        for sp in range(4):
            out.append(lambda f=f, sp=sp: vm.issue(("P", f), f"buffer_load_dwordx4 {a_(16*f+4*sp,4)}, v1, s[20:23], s{56+2*sp+(f>>2)} offen offset:{(f&3)*1024}"))
    return out

def phase_comb(A, vm, lk):
    vm.wait("ML")
    for i in range(8):
        A(f"v_accvgpr_read_b32 {v(16+i)}, {a_(128+i)}")
    A("v_max3_f32 v24, v16, v17, v18\nv_max_f32 v24, v24, v19")
    for sp in range(4):
        A(f"v_sub_f32 {v(16+sp)}, {v(16+sp)}, v24")
    for sp in range(4):
        A(f"v_exp_f32 {v(16+sp)}, {v(16+sp)}")
    A("v_mul_f32 v25, v16, v20\nv_fmac_f32 v25, v17, v21\nv_fmac_f32 v25, v18, v22\nv_fmac_f32 v25, v19, v23")
    A("v_rcp_f32 v25, v25")
    A("s_and_b32 s53, s52, 127\ns_cmp_lt_u32 s53, 125\ns_cselect_b32 s53, 1.0, 0")
    A("v_mul_f32 v25, s53, v25")
    wr = [26, 28, 30, 32]
    for sp in range(4):
        A(f"v_mul_f32 {v(wr[sp])}, {v(16+sp)}, v25")
    A(f"s_add_u32 s44, s55, {L.AT}\ns_add_u32 s45, s44, 4096")
    for f in range(8):
        vm.wait(("P", f))
        acc, t, raw, o = 40, 48, 56, 64 + 4 * f
        for sp in range(4):
            for e in range(4):
                A(f"v_accvgpr_read_b32 {v(raw+e)}, {a_(16*f+4*sp+e)}")
            for e in range(4):
                A(f"v_lshlrev_b32 {v(t+2*e)}, 16, {v(raw+e)}\nv_and_b32 {v(t+2*e+1)}, s49, {v(raw+e)}")
            for e in range(4):
                if sp == 0:
                    A(f"v_pk_mul_f32 {v(acc+2*e,2)}, {v(t+2*e,2)}, {v(wr[sp],2)} op_sel_hi:[1,0]")
                else:
                    A(f"v_pk_fma_f32 {v(acc+2*e,2)}, {v(t+2*e,2)}, {v(wr[sp],2)}, {v(acc+2*e,2)} op_sel_hi:[1,0,1]")
        for e in range(4):
            A(f"v_cvt_pk_bf16_f32 {v(o+e)}, {v(acc+2*e)}, {v(acc+2*e+1)}")
        vm.issue("S", f"buffer_store_dwordx4 {v(o,4)}, v1, s[20:23], s{44+(f>>2)} offen offset:{(f&3)*1024}")

def gen_k3n():
    A = Asm(); name = "k3_comb_kernel"
    head(A, name)
    vm, lk = Q(A, "vmcnt", 63), Q(A, "lgkmcnt", 15)
    lds = phase_z(A, vm, lk, pre=lambda: comb_loads(A, vm))
    A.stamp(4)
    A.prefetch_code("k4_gemm_kernel_S", "k4_gemm_kernel_END", 32768, 2, vm=vm)
    phase_comb(A, vm, lk)
    return tail(A, name, lds, 256, 136)

def p4_make(A, vm, lk, half, w0, st, vt):
    src = L.Z if half else L.AT
    A(f"s_lshl_b32 s32, s28, 17\ns_add_u32 s32, s32, {src - 16384}")
    sw = [60 + 2 * half, 61 + 2 * half]
    for par in range(2):
        A(f"s_lshl_b32 s{sw[par]}, s31, 15\ns_add_u32 s{sw[par]}, s{sw[par]}, {L.W2 + (half*32+par)*16384}")
    g = G4(A, vm, lk, NB=10, wn=2, KS=16, kps=2, NS=4, WD=8, s_act=32, blk_stride=16384, s_w=sw,
           acc0=16, fr0=96, w0=w0, vl16=1, vt=vt, st=st, swap=True)
    g.setup()
    return g

def p4_finish(A, vm, lk, g, half, TA, fill=None):
    B0, D0, VA_ = 96, 160, 240
    for b in range(10):
        for u in range(2):
            q = g.accs[(b, u)]
            for i in range(2):
                A(f"v_cvt_pk_bf16_f32 {v(q+i)}, {v(q+2*i)}, {v(q+2*i+1)}")
            c4_write(lk, VA_, q, b, u)
        if b % 4 == 3:
            lk.wait("wr")
    vm.wait("CW")
    c4_core(A, lk, TA, B0, D0, VA_, 16, True, fill)
    A(f"s_lshl_b32 s40, s28, 18\ns_lshl_b32 s41, s31, 10\ns_add_u32 s40, s40, s41\ns_add_u32 s40, s40, {L.MM + half*16384}")
    for b in range(8):
        lk.wait(("O", b))
        vm.issue("S", f"buffer_store_dwordx4 {v(16+4*b,4)}, v1, s[20:23], s40 offen")
        A("s_add_u32 s40, s40, 32768")

def gen_k4n():
    A = Asm(); name = "k4_gemm_kernel"
    head(A, name)
    vm, lk = Q(A, "vmcnt", 63), Q(A, "lgkmcnt", 15)
    img = 81920
    g1 = p4_make(A, vm, lk, 1, 256, 50, 2)
    g1.prefetch()
    c4_addr(A, img, 240)
    A.stamp(1)
    tl = c4_tload(A, vm, 256 + 128, 64)
    g1.run(lambda k: [tl[k - 4]] if 4 <= k < 14 else [])
    A("s_barrier")
    g0 = p4_make(A, vm, lk, 0, 256 + 64, 66, 8)
    p4_finish(A, vm, lk, g1, 1, 256 + 128, g0.prefetch_list())
    A.stamp(5)
    A.prefetch_code("k5_gemm_kernel_S", "k5_gemm_kernel_END", 32768, 12, vm=vm)
    tl = c4_tload(A, vm, 256 + 128, 32)
    g0.run(lambda k: [tl[k - 4]] if 4 <= k < 14 else [])
    p4_finish(A, vm, lk, g0, 0, 256 + 128)
    return tail(A, name, img + 4 * T4B, 256, 168)

def gen_k5n():
    A = Asm(); name = "k5_gemm_kernel"
    head(A, name, [(4, 0), (6, 64)])
    srd(A, 8, 4, 2 * L.T * 1024)
    srd(A, 12, 6, 2 * L.T * 1024)
    vm, lk = Q(A, "vmcnt", 63), Q(A, "lgkmcnt", 15)
    A(f"s_lshl_b32 s32, s28, 18\ns_add_u32 s32, s32, {L.MM}")
    for par in range(2):
        A(f"s_lshl_b32 s{34+par}, s31, 16\ns_add_u32 s{34+par}, s{34+par}, {L.W3 + par*32768}")
    g = G4(A, vm, lk, NB=8, wn=2, KS=32, kps=2, NS=8, WD=16, s_act=32, blk_stride=32768, s_w=[34, 35],
           acc0=16, fr0=80, w0=256, vl16=1, vt=2, st=50)
    g.setup()
    g.prefetch(nw=12)
    XR = 144
    A("v_and_b32 v7, 15, v0\nv_lshlrev_b32 v7, 10, v7\nv_lshrrev_b32 v8, 4, v0\nv_lshl_add_u32 v7, v8, 4, v7")
    A("s_lshr_b32 s60, s28, 5\ns_and_b32 s61, s28, 31\ns_lshl_b32 s61, s61, 7")
    A(f"s_mul_i32 s60, s60, {L.T}\ns_lshl_b32 s62, s31, 6")
    for b in range(8):
        A(f"s_add_u32 s63, s61, {16*b}\ns_add_u32 s64, s63, s60\ns_lshl_b32 s64, s64, 10\ns_add_u32 s64, s64, s62")
        A(f"s_cmp_lt_u32 s63, {L.T}\ns_cselect_b32 s{66+b}, s64, 0x40000000")
    def extra(k):
        if 20 <= k < 28:
            b = k - 20
            return [(("X", b), f"buffer_load_dwordx4 {v(XR+4*b,4)}, v7, s[8:11], s{66+b} offen")]
        return []
    A.stamp(1)
    g.run(extra)
    for b in range(8):
        vm.wait(("X", b))
        q = g.accs[(b, 0)]
        x = XR + 4 * b
        t = 80 + 8 * (b & 1)
        for i in range(4):
            A(f"v_lshlrev_b32 {v(t+2*i)}, 16, {v(x+i)}\nv_and_b32 {v(t+2*i+1)}, s49, {v(x+i)}")
        for i in range(4):
            A(f"v_pk_add_f32 {v(q+2*i,2)}, {v(q+2*i,2)}, {v(t+2*i,2)}")
        for i in range(4):
            A(f"v_cvt_pk_bf16_f32 {v(x+i)}, {v(q+2*i)}, {v(q+2*i+1)}")
        vm.issue("S", f"buffer_store_dwordx4 {v(x,4)}, v7, s[12:15], s{66+b} offen")
    return tail(A, name, 131072, 256, 128)
```

```python
from asmlib import *
import layout as L
import math
import os
GX = os.environ.get('GX', '').split(',')

MF = "v_mfma_f32_16x16x32_bf16"

def R(x, n=1):
    if x >= 256:
        return a_(x - 256, n)
    assert x + n <= 256
    return v(x, n)

class Q:
    def __init__(self, A, name, mx):
        self.A, self.name, self.mx, self.q = A, name, mx, []
    def issue(self, tag, text):
        self.A(text); self.q.append(tag)
    def count_for(self, tag):
        if tag not in self.q:
            return None
        last = max(i for i, f in enumerate(self.q) if f == tag)
        n = len(self.q) - 1 - last
        self.q = self.q[last + 1:]
        return min(n, self.mx)
    def wait(self, tag):
        n = self.count_for(tag)
        if n is not None:
            self.A(f"s_waitcnt {self.name}({n})")

def waits(A, vm, vtags, lk, ltags):
    parts = []
    n = None
    for t in vtags:
        c = vm.count_for(t)
        if c is not None:
            n = c
    if n is not None:
        parts.append(f"vmcnt({n})")
    n = None
    for t in ltags:
        c = lk.count_for(t)
        if c is not None:
            n = c
    if n is not None:
        parts.append(f"lgkmcnt({n})")
    if parts:
        A("s_waitcnt " + " ".join(parts))

class It(tuple):
    def __call__(self):
        return self.g.emit(tuple(self))

def Items(g, items):
    out = []
    for x in items:
        y = It(x); y.g = g
        out.append(y)
    return out

def iscall(x):
    return callable(x) and not isinstance(x, tuple)

class G4:
    def __init__(self, A, vm, lk, NB, wn, KS, kps, NS, WD, s_act, blk_stride, s_w, acc0, fr0, w0, vl16, vt, st, lds0=0, rng=None, swap=False, dfl='', stamps=(2, 3, 4), halo=False, wrap=None):
        self.__dict__.update(locals())
        self.rng = rng or [(0, NB)] * wn
        self.nst = KS // kps
        self.ppw = NB * kps // 4
        assert NB * kps % 4 == 0
        self.slot = NB * kps * 1024
        self.smap = [i * self.slot for i in range(NS)]
        self.accs = {}
        a = acc0
        for n in range(0, wn, 2):
            f, c = self.rng[n]
            for b in range(f, f + c):
                self.accs[(b, n)] = a; self.accs[(b, n + 1)] = a + 4; a += 8
        self.acc_end = a

    def setup(self):
        A, st, vt = self.A, self.st, self.vt
        for i in range(self.ppw):
            A(f"s_mul_i32 s{st}, s3, {self.ppw}\ns_add_u32 s{st}, s{st}, {i}")
            sh = int(math.log2(self.kps))
            A(f"s_lshr_b32 s{st+1}, s{st}, {sh}")
            if self.halo:
                A(f"s_lshl_b32 s29, s28, 3\ns_add_u32 s29, s29, s{st+1}\ns_sub_u32 s29, s29, 1")
            A(f"s_mul_i32 s{st+1}, s{st+1}, {self.blk_stride}")
            A(f"s_and_b32 s{st}, s{st}, {self.kps-1}\ns_lshl_b32 s{st}, s{st}, 10")
            A(f"s_add_u32 s{st+1}, s{st+1}, s{st}\ns_add_u32 s{st+2+i}, s{st+1}, s{self.s_act}")
            if self.halo:
                A(f"s_cmp_lt_u32 s29, 512\ns_cselect_b32 s{st+2+i}, s{st+2+i}, 0x7f000000")
        A(f"s_mul_i32 s{st}, s3, {self.ppw*1024}")
        if self.lds0:
            A(f"s_add_u32 s{st}, s{st}, {self.lds0}")
        A(f"v_mov_b32 {v(vt)}, {v(self.vl16)}")
        A(f"v_mov_b32 {v(vt+1)}, {v(self.vl16)}")
        A(f"v_add_u32 {v(vt+2)}, 0x10000, {v(self.vl16)}")
        A(f"v_add_u32 {v(vt+3)}, 0x20000, {v(self.vl16)}")

    def dma(self, stage):
        out = []
        sl = stage % self.NS
        for i in range(self.ppw):
            out.append((None, f"s_add_u32 m0, s{self.st}, {self.smap[sl] + i*1024}"))
            out.append((("D", id(self), stage), f"buffer_load_dwordx4 {v(self.vt)}, s[20:23], s{self.st+2+i} offen{self.dfl} lds"))
        out.append((None, f"v_add_u32 {v(self.vt)}, {self.kps*1024}, {v(self.vt)}"))
        if self.wrap:
            out.append((None, f"v_and_b32 {v(self.vt)}, {self.wrap-1}, {v(self.vt)}"))
        return out

    def wreg(self, n, k):
        return self.w0 + ((k % self.WD) * self.wn + n) * 4

    def wload(self, k):
        out = []
        for n in range(self.wn):
            out.append((("W", id(self), k), f"buffer_load_dwordx4 {R(self.wreg(n,k),4)}, {v(self.vt+1)}, s[20:23], s{self.s_w[n]} offen offset:{(k&3)*1024}"))
        if k & 3 == 3:
            out.append((None, f"v_add_u32 {v(self.vt+1)}, 4096, {v(self.vt+1)}"))
            if self.wrap:
                out.append((None, f"v_and_b32 {v(self.vt+1)}, {self.wrap-1}, {v(self.vt+1)}"))
        return out

    def freg(self, b, k):
        return self.fr0 + ((k & 1) * self.NB + b) * 4

    def reads(self, k):
        out = []
        stage, kk = k // self.kps, k % self.kps
        for b in range(self.NB):
            off = self.lds0 + self.smap[stage % self.NS] + (b * self.kps + kk) * 1024
            w = off >> 16
            base = self.vl16 if w == 0 else self.vt + 1 + w
            out.append((("F", k, b), f"ds_read_b128 {R(self.freg(b,k),4)}, {v(base)} offset:{off & 0xffff}"))
        return out

    def emit(self, item):
        if iscall(item):
            return item()
        tag, text = item
        if tag is None:
            self.A(text)
        elif tag[0] == "F":
            self.lk.issue(tag, text)
        else:
            self.vm.issue(tag, text)

    def prefetch_list(self, nw=None):
        nw = min(self.WD, self.KS) if nw is None else nw
        ns = min(self.NS, self.nst)
        wk = 0
        items = []
        for s_ in range(ns):
            items += self.dma(s_)
            while wk < nw and wk < (s_ + 1) * self.kps:
                items += self.wload(wk)
                wk += 1
        while wk < nw:
            items += self.wload(wk)
            wk += 1
        self.w_issued = nw
        self.d_issued = ns
        return Items(self, items)

    def wlist(self, nw):
        items = []
        for k in range(nw):
            items += self.wload(k)
        self.w_issued = nw
        return Items(self, items)

    def dlist(self):
        ns = min(self.NS, self.nst)
        items = []
        for s_ in range(ns):
            items += self.dma(s_)
        self.d_issued = ns
        return Items(self, items)

    def prefetch(self, nw=None):
        for f in self.prefetch_list(nw):
            f()

    border = None
    vgap = int(os.environ.get("VGAP", "4"))
    def after_mid(self, k):
        return []

    def run(self, extra=None, first_c="0", start=True, keep=False):
        A = self.A
        bo = self.border or list(range(self.NB))
        if start:
            self.vm.wait(("D", id(self), 0))
            A("s_barrier")
        if self.stamps: A.stamp(self.stamps[0])
        for x in self.reads(0):
            self.emit(x)
        carry = []
        since = 99
        def chk(tags):
            for y in carry:
                assert iscall(y) or y[0] not in tags, ("pending", y)
        for k in range(self.KS):
            stage, kk = k // self.kps, k % self.kps
            fill = []
            last_in_stage = kk == self.kps - 1 and k + 1 < self.KS
            if last_in_stage:
                tg = [("W", id(self), k), ("D", id(self), stage + 1)]
                chk(tg)
                if "novm" in GX and isinstance(self, GU):
                    for t_ in tg: self.vm.count_for(t_)
                waits(A, self.vm, tg, self.lk, [("F", k, bo[-1])])
                if not ("nobar" in GX and isinstance(self, GU)):
                    A("s_barrier")
            else:
                chk([("W", id(self), k)])
                waits(A, self.vm, [("W", id(self), k)], self.lk, [("F", k, bo[self.NB // 2 - 1])])
            dsl = self.reads(k + 1) if k + 1 < self.KS else []
            oth = carry
            if self.w_issued < self.KS and self.w_issued < k + self.WD:
                oth += self.wload(self.w_issued); self.w_issued += 1
            if last_in_stage and self.d_issued < self.nst:
                oth += self.dma(self.d_issued); self.d_issued += 1
            if extra:
                ex = extra(k)
                oth = [y for y in ex if iscall(y)] + oth + [y for y in ex if not iscall(y)]
            mm = []
            for bi, b in enumerate(bo):
                for n in range(self.wn):
                    if (b, n) in self.accs:
                        acc = self.accs[(b, n)]
                        c = first_c if k == 0 and first_c is not None else R(acc, 4)
                        x, y = R(self.wreg(n, k), 4), R(self.freg(b, k), 4)
                        if self.swap:
                            x, y = y, x
                        mm.append((bi, f"{MF} {R(acc,4)}, {x}, {y}, {c}"))
            n = len(mm)
            mid = next(i for i, (b, _) in enumerate(mm) if b >= self.NB // 2)
            nds = len(dsl)
            span = max(nds, min(n - 2, max(n * 3 // 4, 2 * nds - 1)))
            dsg = {i * span // nds for i in range(nds)} if nds else set()
            for i, (b, x) in enumerate(mm):
                A(x)
                since += 1
                slots = 2
                if i == mid - 1 or i >= n - 1:
                    slots -= 1
                if i == n - 1 and (k + 1) % self.kps == self.kps - 1:
                    slots -= 1
                mem = False
                if dsl and i in dsg:
                    self.emit(dsl.pop(0)); slots -= 1
                    mem = True
                while oth and slots > 0:
                    isvm = iscall(oth[0]) or oth[0][0] is not None
                    if isvm and (mem or since < self.vgap):
                        break
                    y = oth.pop(0)
                    self.emit(y); slots -= 1
                    mem = mem or isvm
                    if isvm:
                        since = 0
                    if not isvm and "m0" in y[1]:
                        break
                if i == mid - 1:
                    self.lk.wait(("F", k, bo[-1]))
                    oth = self.after_mid(k) + oth
            for x in dsl:
                self.emit(x)
            carry = oth
            if k == self.KS // 2 - 1:
                if self.stamps and self.stamps[1]: A.stamp(self.stamps[1])
            if self.stamps: A.stamp(self.stamps[0] + "k%d" % k)
        if self.stamps: A.stamp(self.stamps[2])
        if keep:
            return carry
        for x in carry:
            self.emit(x)


class GU(G4):
    SLOT = 53248
    def __init__(self, A, vm, lk):
        G4.__init__(self, A, vm, lk, NB=10, wn=4, KS=16, kps=2, NS=3, WD=2, s_act=None, blk_stride=0, s_w=None,
                    acc0=16, fr0=256, w0=256 + 80, vl16=1, vt=2, st=50, rng=[(0, 9), (0, 9), (0, 10), (0, 10)], stamps=('U0', 'U1', 'Ux'))
        self.border = list(range(1, 10)) + [0]
        self.w_issued = 99
        self.d_issued = 0
        self.F0 = 232
        self.RA, self.RW = 240, 244

    def setup(self):
        A = self.A
        A("v_and_b32 v4, 7, v0\nv_lshrrev_b32 v5, 3, v0\nv_xor_b32 v2, v4, v5\nv_lshlrev_b32 v2, 4, v2\nv_lshl_add_u32 v2, v5, 10, v2")
        A("v_lshrrev_b32 v12, 4, v0\nv_and_b32 v13, 15, v0\nv_lshlrev_b32 v3, 2, v12\nv_xor_b32 v3, v3, v13\nv_lshlrev_b32 v3, 4, v3\nv_lshl_add_u32 v3, v12, 11, v3")
        A(f"s_and_b32 s32, s28, 31\ns_lshl_b32 s32, s32, 7\ns_sub_u32 s32, s32, 16\ns_mul_i32 s33, s3, 40\ns_add_u32 s32, s32, s33")
        A(f"s_lshr_b32 s33, s28, 5\ns_mul_i32 s33, s33, {L.T}")
        for i in range(5):
            A(f"s_add_u32 s34, s32, {8*i}\ns_add_u32 s35, s34, s33\ns_lshl_b32 s35, s35, 10")
            A(f"s_cmp_lt_u32 s34, {L.T}\ns_cselect_b32 s{self.st+2+i}, s35, 0x7f000000")
        A("s_mul_i32 s50, s3, 5120")
        A("s_lshl_b32 s51, s3, 13\ns_add_u32 s51, s51, 20480")
        A("s_lshr_b32 s34, s3, 1\ns_lshl_b32 s34, s34, 10\ns_lshl_b32 s35, s30, 8\ns_add_u32 s34, s34, s35\ns_and_b32 s35, s3, 1\ns_lshl_b32 s35, s35, 16\ns_add_u32 s57, s34, s35")

    def skew(self):
        A = self.A
        A("s_lshl_b32 s33, s30, 1\ns_add_u32 s33, s33, s28\ns_and_b32 s33, s33, 7\ns_lshl_b32 s34, s33, 7\nv_add_u32 v2, s34, v2")
        A("s_lshl_b32 s34, s33, 17\ns_add_u32 s57, s57, s34\ns_movk_i32 s29, 0x380")

    def setup2(self):
        A = self.A
        RA, RW = self.RA, self.RW
        A(f"v_lshrrev_b32 v13, 4, v0\nv_and_b32 v14, 7, v0\nv_xor_b32 v14, v14, v13\nv_lshlrev_b32 v14, 4, v14\nv_and_b32 v12, 15, v0\nv_lshl_add_u32 {v(RA)}, v12, 7, v14")
        A(f"v_bfe_u32 v12, v0, 2, 2\nv_lshl_add_u32 v14, v13, 3, v12\nv_xor_b32 v12, s3, v12\nv_lshlrev_b32 v12, 6, v12\nv_lshl_add_u32 v12, v14, 8, v12")
        A(f"v_and_b32 v14, 3, v0\nv_lshl_add_u32 v12, v14, 4, v12\nv_add_u32 {v(RW)}, 20480, v12")
        for i in (1, 2):
            A(f"v_add_u32 {v(RA+i)}, {i*self.SLOT}, {v(RA)}\nv_add_u32 {v(RW+i)}, {i*self.SLOT}, {v(RW)}")
        for i in range(3):
            A(f"v_xor_b32 {v(253+i)}, 64, {v(RA+i)}")
        A("v_and_b32 v12, 15, v0\nv_cmp_eq_u32 s[58:59], 0, v12\nv_mov_b32 v243, 0x3f803f80")

    def dma(self, stage):
        out = []
        sl = (stage % 3) * self.SLOT
        tag = ("D", id(self), stage)
        for i in range(5):
            out.append((None, f"s_add_u32 m0, s50, {sl + i*1024}"))
            out.append((tag, f"buffer_load_dwordx4 v2, s[8:11], s{52+i} offen lds"))
        out.append((None, "v_add_u32 v247, 128, v2"))
        out.append((None, "v_bfi_b32 v2, s29, v247, v2"))
        for i in range(8):
            out.append((None, f"s_add_u32 m0, s51, {sl + i*1024}"))
            out.append((tag, "buffer_load_dwordx4 v3, s[40:43], s57 offen lds"))
            out.append((None, f"s_add_u32 s57, s57, {8192 if i < 7 else 131072 - 7*8192}"))
        out.append((None, "s_and_b32 s57, s57, 0xfffff"))
        return out

    def issue_stage(self):
        for x in self.dma(self.d_issued):
            self.emit(x)
        self.d_issued += 1

    def freg(self, b, k):
        if b == 0:
            return self.F0 + (k & 1) * 4
        return G4.freg(self, b, k)

    def reads(self, k):
        out = []
        stage, kk = k >> 1, k & 1
        sl = stage % 3
        for n in range(4):
            o = (n >> 1) * 16384 + kk * 8192 + (n & 1) * 8
            r = self.wreg(n, k)
            out.append((("F", k, -1), f"ds_read_b64_tr_b16 {R(r,2)}, {v(self.RW+sl)} offset:{o}"))
            out.append((("F", k, -1), f"ds_read_b64_tr_b16 {R(r+2,2)}, {v(self.RW+sl)} offset:{o+1024}"))
        for b in self.border:
            out.append((("F", k, b), f"ds_read_b128 {R(self.freg(b,k),4)}, {v((253 if kk else self.RA)+sl)} offset:{b*2048}"))
        return out

    def after_mid(self, k):
        r = self.freg(0, k)
        return [(None, f"v_cndmask_b32 {v(r+i)}, {v(r+i)}, v243, s[58:59]") for i in range(4)]
```

```python
from asmlib import *
import layout as L
from k0 import srd
from g4 import *
from gemm import gelu_consts
from p0 import *
from ph import c4_tload, c4_addr, c4_write, c4_core, RS, T4B
import attn as AT_
from attn import Sreg, ring, kread, vread, softmax_ops, check_ops, rowmax, Sched, spread, DIST, THRESH
from attn import L16, DV0, DV1, KA0, KA1, VA, LS0, LS1, BS0, BS1, T0, NEGM, PP, XT

import os
EXP = os.environ.get("EXP", "pl,nol2").split(",")
SC = " sc1"
LL = "" if "pl" in EXP else SC
SL = SC
SM = "" if "local" in EXP else SC
F_S, F_Q, F_Z, F_ML, F_AT, F_MG = 0, 1, 2, 4, 5, 6
F_P = 8
F_P1 = 12
FK = L.FK
OOB = 0x7f000000

def Qr(qa, j): return 256 + (qa * 16 + j) * 4
def Or(dt, qa):
    i = (dt * 2 + qa) * 4
    return 128 + i if i < 128 else 256 + i

class M:
    def __init__(self):
        self.A = Asm()
        self.vm = Q(self.A, "vmcnt", 63)
        self.lk = Q(self.A, "lgkmcnt", 15)

    def signal(self, kind, tag, vt, sub=None, w0=False):
        A = self.A
        A(f"v_mov_b32 {v(vt)}, {4 if w0 else 1}\ns_add_u32 s26, s24, {kind*FK}")
        if w0:
            assert tag not in self.vm.q
            A(f"s_cmp_eq_u32 s3, 0\ns_cselect_b32 s26, s26, {OOB}")
        if sub is not None:
            A(f"s_lshl_b32 s29, s{sub}, 13\ns_add_u32 s26, s26, s29")
        self.vm.wait(tag)
        A("s_mov_b64 exec, 1")
        self.vm.issue("SIG", f"buffer_atomic_add {v(vt)}, off, s[20:23], s26 sc1")
        A("s_mov_b64 exec, -1")
        A.stamp("sg%d" % kind)

    def _poll_text(self, nbr, vt, sreg):
        if nbr:
            return f"buffer_load_dword {v(vt)}, {v(vt+1)}, s[20:23], s{sreg} offen sc1"
        return f"buffer_load_dword {v(vt)}, off, s[20:23], s{sreg} sc1"

    def poll_issue(self, kind, nbr, vt, sreg=27, sub=None, w0=False):
        A = self.A
        if nbr:
            A(f"s_mov_b32 s{sreg}, {L.FLAGS + kind*FK}\ns_sub_u32 s26, s28, 1")
            A(f"v_min_u32 {v(vt+1)}, 2, v0\nv_add_u32 {v(vt+1)}, s26, {v(vt+1)}\nv_med3_i32 {v(vt+1)}, {v(vt+1)}, 0, 63\nv_lshlrev_b32 {v(vt+1)}, 7, {v(vt+1)}")
        else:
            A(f"s_add_u32 s{sreg}, s24, {kind*FK}")
            if sub is not None:
                A(f"s_lshl_b32 s29, s{sub}, 13\ns_add_u32 s{sreg}, s{sreg}, s29")
        if w0:
            A(f"s_cmp_eq_u32 s3, 0\ns_cselect_b32 s{sreg}, s{sreg}, {OOB}")
        self.vm.issue(("POLL", kind), self._poll_text(nbr, vt, sreg))

    def poll_check(self, kind, nbr, vt, sreg=27, target=16, w0=False):
        A = self.A
        ok, lp = A.label("POK"), A.label("PLP")
        A.stamp("pb%d" % kind)
        if w0:
            A(f"s_cmp_lg_u32 s3, 0\ns_cbranch_scc1 {ok}")
            sv = list(self.vm.q)
        self.vm.wait(("POLL", kind))
        if w0:
            self.vm.q = sv
        A(f"{lp}:")
        A(f"v_cmp_le_u32 vcc, {target}, {v(vt)}")
        A("s_cmp_eq_u64 vcc, -1")
        A(f"s_cbranch_scc1 {ok}")
        A("s_sleep 1")
        A(self._poll_text(nbr, vt, sreg))
        A("s_sub_u32 s25, s25, 1")
        A("s_waitcnt vmcnt(0)")
        A(f"s_cbranch_scc0 {lp}")
        A("s_endpgm")
        A(f"{ok}:")
        A.stamp("pc%d" % kind)

    def nonce_make(self, vt):
        A = self.A
        A("s_memrealtime s[4:5]")
        A(f"s_or_b32 s26, s2, s3\ns_cmp_eq_u32 s26, 0\ns_cselect_b32 s26, 0, {OOB}")
        A("s_waitcnt lgkmcnt(0)")
        A(f"s_or_b32 s4, s4, 1\nv_mov_b32 {v(vt)}, s4\ns_mov_b64 exec, 1")
        self.vm.issue("SIG", f"buffer_store_dword {v(vt)}, off, s[16:19], s26 sc1")
        A("s_mov_b64 exec, -1")

    def nonce_issue(self, vt):
        self.A(f"s_cmp_eq_u32 s3, 0\ns_cselect_b32 s5, 0, {OOB}")
        self.vm.issue("NON", f"buffer_load_dword {v(vt)}, off, s[16:19], s5 sc1")

    def nonce_get(self, vt):
        A = self.A
        ok, lp = A.label("NOK"), A.label("NLP")
        self.vm.wait("NON")
        A(f"s_cmp_lg_u32 s3, 0\ns_cbranch_scc1 {ok}")
        A(f"{lp}:")
        A(f"v_readfirstlane_b32 s4, {v(vt)}")
        A(f"s_cmp_lg_u32 s4, 0\ns_cbranch_scc1 {ok}")
        A("s_sleep 1")
        A(f"buffer_load_dword {v(vt)}, off, s[16:19], 0 sc1")
        A("s_sub_u32 s25, s25, 1")
        A("s_waitcnt vmcnt(0)")
        A(f"s_cbranch_scc0 {lp}")
        A("s_endpgm")
        A(f"{ok}:")

    def gsignal(self, ev, vt):
        A = self.A
        A(f"v_mov_b32 {v(vt)}, s4\ns_lshr_b32 s26, s2, 3\ns_lshl_b32 s26, s26, 7\ns_and_b32 s5, s2, 7\ns_lshl_b32 s5, s5, 2\ns_add_u32 s26, s26, s5")
        A(f"s_add_u32 s26, s26, {L.GF + ev*4096}\ns_cmp_eq_u32 s3, 0\ns_cselect_b32 s26, s26, {OOB}\ns_mov_b64 exec, 1")
        self.vm.issue("SIG", f"buffer_store_dword {v(vt)}, off, s[20:23], s26 sc1")
        A("s_mov_b64 exec, -1")

    def gpoll_issue(self, ev, vt):
        A = self.A
        A(f"v_lshrrev_b32 {v(vt+4)}, 1, v0\nv_lshlrev_b32 {v(vt+4)}, 7, {v(vt+4)}\nv_and_b32 {v(vt)}, 1, v0\nv_lshl_add_u32 {v(vt+4)}, {v(vt)}, 4, {v(vt+4)}")
        A(f"s_mov_b32 s5, {L.GF + ev*4096}\ns_cmp_eq_u32 s3, 0\ns_cselect_b32 s5, s5, {OOB}")
        self.vm.issue("GPOLL", f"buffer_load_dwordx4 {v(vt,4)}, {v(vt+4)}, s[20:23], s5 offen sc1")

    def gpoll_check(self, ev, vt):
        A = self.A
        ok, lp = A.label("GOK"), A.label("GLP")
        self.vm.wait("GPOLL")
        A(f"s_cmp_lg_u32 s3, 0\ns_cbranch_scc1 {ok}")
        A(f"{lp}:")
        for i in range(4):
            A(f"v_xor_b32 {v(vt+i)}, s4, {v(vt+i)}")
        A(f"v_or3_b32 {v(vt)}, {v(vt)}, {v(vt+1)}, {v(vt+2)}\nv_or_b32 {v(vt)}, {v(vt)}, {v(vt+3)}")
        A(f"v_cmp_ne_u32 vcc, 0, {v(vt)}")
        A(f"s_cbranch_vccz {ok}")
        A("s_sleep 1")
        A(f"buffer_load_dwordx4 {v(vt,4)}, {v(vt+4)}, s[20:23], s5 offen sc1")
        A("s_sub_u32 s25, s25, 1")
        A("s_waitcnt vmcnt(0)")
        A(f"s_cbranch_scc0 {lp}")
        A("s_endpgm")
        A(f"{ok}:")
        A.stamp("gp%d" % ev)

    def pf(self, start, end, vt, sr=96):
        A = self.A
        lb = A.label("PC" + start)
        A(f"s_getpc_b64 s[{sr}:{sr+1}]")
        A(f"{lb}:")
        A(f"s_add_u32 s{sr}, s{sr}, {start}-{lb}")
        A(f"s_addc_u32 s{sr+1}, s{sr+1}, ({start}-{lb})>>32")
        A(f"s_and_b32 s{sr+1}, s{sr+1}, 0xffff")
        A(f"s_mov_b32 s{sr+2}, {end}-{start}")
        A(f"s_mov_b32 s{sr+3}, 0x20000")
        A(f"s_lshr_b32 s{sr+4}, s2, 3\ns_lshl_b32 s{sr+4}, s{sr+4}, 2\ns_add_u32 s{sr+4}, s{sr+4}, s3\ns_lshl_b32 s{sr+4}, s{sr+4}, 10")
        A(f"v_and_b32 v{vt}, 7, v0\nv_lshlrev_b32 v{vt}, 7, v{vt}")
        self.vm.issue("PC", f"buffer_load_dword v{vt+1}, v{vt}, s[{sr}:{sr+3}], s{sr+4} offen")

def gelu_pk(A, regs, tmp, hook=lambda: None):
    for x, t in zip(regs, tmp):
        A(f"v_pk_mul_f32 {v(t,2)}, {v(x,2)}, {v(x,2)}")
    for x, t in zip(regs, tmp):
        A(f"v_pk_fma_f32 {v(t,2)}, {v(t,2)}, v[8:9], v[6:7]")
    for x, t in zip(regs, tmp):
        A(f"v_pk_mul_f32 {v(t,2)}, {v(t,2)}, {v(x,2)}")
    hook()
    for x, t in zip(regs, tmp):
        A(f"v_exp_f32 {v(t)}, {v(t)}\nv_exp_f32 {v(t+1)}, {v(t+1)}")
    hook()
    for x, t in zip(regs, tmp):
        A(f"v_pk_add_f32 {v(t,2)}, {v(t,2)}, v[10:11]")
    for x, t in zip(regs, tmp):
        A(f"v_rcp_f32 {v(t)}, {v(t)}\nv_rcp_f32 {v(t+1)}, {v(t+1)}")
    hook()
    for x, t in zip(regs, tmp):
        A(f"v_pk_mul_f32 {v(x,2)}, {v(x,2)}, {v(t,2)}")

def kv_dma_ops():
    out = ["s_mov_b32 m0, s47"]
    for i in range(4):
        out.append(f"buffer_load_dwordx4 {v(DV0)}, s[20:23], s46 offen offset:{i*1024} lds")
    out.append("s_add_u32 m0, s47, 16384")
    for i in range(4):
        out.append(f"buffer_load_dwordx4 {v(DV1)}, s[20:23], s46 offen offset:{i*1024} lds")
    out += ["s_add_u32 s46, s46, 32768", "s_add_u32 s47, s47, 32768", "s_and_b32 s47, s47, 0x1ffff"]
    return out

IT, FW, FR, FV = 124, 125, 126, 127
FLG = 163840 - 1024

def cost(x):
    if callable(x):
        return 1
    return 2 if x.startswith("v_exp") else 1

def place(free, ops, g0, g1, table):
    g = g0
    prev_trans = None
    for x in ops:
        c = cost(x)
        while g <= g1 and free[g] < c:
            g += 1
        assert g <= g1, ("no room", x)
        table[g].append(x)
        free[g] -= c
    return g

def softmax_sched(p):
    grp = []
    t = 0
    for qa in range(2):
        bs = BS0 + qa
        for ka in range(2):
            sr = Sreg(p, ka, qa)
            tt = T0 + 4 * (t & 1); t += 1
            ex = [f"v_exp_f32 {v(tt+r)}, {v(sr+r)}" for r in range(4)]
            if ka == 0:
                a = [f"v_add_f32 {v(bs)}, {v(tt)}, {v(tt+1)}"]
            else:
                a = [f"v_add_f32 {v(bs)}, {v(bs)}, {v(tt)}", f"v_add_f32 {v(bs)}, {v(bs)}, {v(tt+1)}"]
            a += [f"v_cvt_pk_bf16_f32 {v(PP+qa*4+ka*2)}, {v(tt)}, {v(tt+1)}",
                  f"v_add_f32 {v(bs)}, {v(bs)}, {v(tt+2)}", f"v_add_f32 {v(bs)}, {v(bs)}, {v(tt+3)}",
                  f"v_cvt_pk_bf16_f32 {v(PP+qa*4+ka*2+1)}, {v(tt+2)}, {v(tt+3)}"]
            grp.append((ex, a))
    return grp

def half(A, sc, p, tail, tag, loopctl=None, tailfill=None, first=False, pre=None):
    ds = {}
    for f in range(8, 72):
        g = 2 * f - 15
        if f < 32:
            ds[g] = (("K", f), kread(f, p ^ 1)[0])
        elif f < 64:
            r = vread(f - 32, p)
            ds[g] = (("V", f - 32), r[0]); ds[g + 1] = (("V", f - 32), r[1])
        elif pre:
            r = vread(f - 64, p ^ 1)
            ds[g] = (("V2", f - 64), r[0])
            if g + 1 < 128:
                ds[g + 1] = (("V2", f - 64), r[1])
        elif not tail:
            ds[g] = (("K", f - 64), kread(f - 64, p)[0])
    wt = {}
    for f in range(2, 66, 2):
        g = 2 * f - 1
        t = ("K", f + 1) if f < 32 else (("V", f + 1 - 32) if f < 64 else ("K", 1))
        if f == 64:
            if tail or pre:
                continue
            g = 126
        wt[g] = t
    free = [2 - (g in ds) - (g in wt) for g in range(128)]
    tb = [[] for _ in range(128)]
    ladd = [f"v_add_f32 {v(LS0)}, {v(LS0)}, {v(BS0)}", f"v_add_f32 {v(LS1)}, {v(LS1)}, {v(BS1)}"]
    if not tail:
        dm = kv_dma_ops()
        place(free, [dm[9]], 0, 0, tb)
        place(free, [dm[10]], 0, 1, tb)
        grp = softmax_sched(p)
        ge = 2
        gc = 3
        for k in range(4):
            ge = place(free, grp[k][0], max(ge, gc if k >= 2 else 0), 60, tb)
            if k >= 1:
                gc = place(free, grp[k - 1][1], gprev + 1, 60, tb)
            gprev = ge
        gc = place(free, grp[3][1] + check_ops(), gprev + 1, 60, tb)
        if not first:
            place(free, [f"s_cbranch_vccnz RARE{p}\nRET{tag}:"], gc + 1, 62, tb)
        if p == 0:
            place(free, [f"v_xor_b32 {v(VA)}, 0x10000, {v(VA)}"], 1, 48, tb)
    def paced(groups, g0, step):
        for j_, gr in enumerate(groups):
            g = g0 + j_ * step
            assert g < 128
            tb[g - 1] += gr[:-1]
            tb[g].insert(0, gr[-1])
    if pre:
        tb[1] += dm[11:13] + ["s_barrier"]
        place(free, ladd, 64, 100, tb)
        if p == 1:
            tb[112].append(f"v_xor_b32 {v(VA)}, 0x10000, {v(VA)}")
        paced(pre[0], 3, 4)
        paced(pre[1], 66, 4)
        tb[127].append("s_sub_u32 s44, s44, 1")
    elif not tail:
        g = place(free, ladd + dm[11:13], 64, 100, tb)
        if p == 0:
            place(free, [f"v_xor_b32 {v(KA0)}, 0x10000, {v(KA0)}", f"v_xor_b32 {v(KA1)}, 0x10000, {v(KA1)}"], g, 110, tb)
        place(free, [f"v_add_u32 {v(IT)}, 1, {v(IT)}"], 66, 74, tb)
        place(free, [lambda: sc.issue("fw", [f"ds_write_b32 {v(FW)}, {v(IT)}"])], 76, 76, tb)
        place(free, [lambda: sc.issue("fr", [f"ds_read_b32 {v(FV)}, {v(FR)}"])], 94, 94, tb)
        def chk():
            assert "fr" not in sc.q
            A(f"v_cmp_gt_u32 vcc, {v(IT)}, {v(FV)}")
        place(free, [chk], 110, 110, tb)
        if first:
            place(free, [first], 77, 92, tb)
        if not first:
            place(free, ["s_cmp_le_u32 s44, 13", f"s_cbranch_scc1 HOOK{tag}\nHRET{tag}:"], 77, 92, tb)
        if "l2pf" in EXP:
            place(free, ["s_sub_u32 s33, s44, 3", "s_lshl_b32 s33, s33, 20", "buffer_load_dword v123, v122, s[4:7], s33 offen"], 77, 93, tb)
        place(free, [f"s_cbranch_vccnz SPIN{tag}\nSRET{tag}:"], 112, 112, tb)
        SPINS.append(tag)
        place(free, [dm[0]], 113, 113, tb)
        for i, g in enumerate((114, 116, 118, 120)):
            place(free, [dm[1 + i]], g, g, tb)
        place(free, [dm[5]], 121, 121, tb)
        for i, g in enumerate((122, 124, 126)):
            place(free, [dm[6 + i]], g, g, tb)
        place(free, loopctl[:2], 122, 125, tb)
        place(free, loopctl[2:], 127, 127, tb)
    else:
        sc.q = [("V", x[1]) for x in sc.q]
        A("s_barrier")
        tf = list(tailfill)
        for i_, x in enumerate(softmax_ops(p) + check_ops()):
            A(x)
            if i_ % 6 == 0:
                for y in tf.pop(0):
                    y() if callable(y) else A(y)
        A(f"s_cbranch_vccnz RARE{p}")
        A(f"RET{tag}:")
        sc.wait(("V", 1))
        place(free, ladd, 64, 127, tb)
        paced(tf, 65, 3)
    for g in range(64 if tail else 0, 128):
        if g < 64:
            n, qa = g >> 1, g & 1
            j, ka = n >> 1, n & 1
            sr = Sreg(p ^ 1, ka, qa)
            c = v(NEGM + 4 * qa, 4) if j == 0 else v(sr, 4)
            A(f"{MF} {v(sr,4)}, {v(ring(n),4)}, {R(Qr(qa,j),4)}, {c}")
        else:
            dt, qa = (g - 64) >> 1, g & 1
            o = R(Or(dt, qa), 4)
            A(f"{MF} {o}, {v(ring(dt),4)}, {v(PP+4*qa,4)}, {'0' if first else o}")
        if g in ds:
            sc.issue(ds[g][0], [ds[g][1]])
        last = [x for x in tb[g] if not callable(x) and "branch" in x]
        for x in tb[g]:
            if x in last:
                continue
            if callable(x):
                x()
            else:
                A(x)
        if g in wt and "nolg" in EXP and not tail and g != 111:
            A.auto = True
            sv = A.lines; A.lines = []
            sc.wait(wt[g]); A.lines = sv
        elif g in wt:
            sc.wait(wt[g], "vmcnt(0) " if (g == 75 and not tail and not pre) else "")
        for x in last:
            A(x)

SPINS = []
def spin(A, tag):
    A(f"SPIN{tag}:")
    A(f"ds_read_b32 {v(FV)}, {v(FR)}")
    A("s_waitcnt lgkmcnt(0)")
    A(f"v_cmp_gt_u32 vcc, {v(IT)}, {v(FV)}")
    A(f"s_cbranch_vccz SRET{tag}")
    A("s_sub_u32 s25, s25, 1")
    A(f"s_cbranch_scc0 SPIN{tag}")
    A("s_endpgm")

def rare(A, p):
    A(f"RARE{p}:")
    A("s_nop 15")
    D0, AL = XT, XT + 2
    for qa in range(2):
        rowmax(A, p, qa, D0 + qa, XT + 4)
        A(f"v_max_f32 {v(D0+qa)}, 0, {v(D0+qa)}")
        A(f"v_sub_f32 {v(AL+qa)}, 0, {v(D0+qa)}")
        A(f"v_exp_f32 {v(AL+qa)}, {v(AL+qa)}")
        for pp in range(2):
            for ka in range(2):
                for r in range(4):
                    x = Sreg(pp, ka, qa) + r
                    A(f"v_sub_f32 {v(x)}, {v(x)}, {v(D0+qa)}")
        for r in range(4):
            A(f"v_sub_f32 {v(NEGM+4*qa+r)}, {v(NEGM+4*qa+r)}, {v(D0+qa)}")
        A(f"v_mul_f32 {v(LS0+qa)}, {v(LS0+qa)}, {v(AL+qa)}")
    for dt in range(32):
        for qa in range(2):
            o = Or(dt, qa)
            if o < 256:
                for r in range(4):
                    A(f"v_mul_f32 {v(o+r)}, {v(o+r)}, {v(AL+qa)}")
            else:
                t = XT + 8
                for r in range(4):
                    A(f"v_accvgpr_read_b32 {v(t+r)}, {R(o+r)}")
                for r in range(4):
                    A(f"v_mul_f32 {v(t+r)}, {v(t+r)}, {v(AL+qa)}")
                for r in range(4):
                    A(f"v_accvgpr_write_b32 {R(o+r)}, {v(t+r)}")
    for x in softmax_ops(p):
        A(x)
    A("s_nop 3")
    A("s_cmp_eq_u32 s44, 1")
    A(f"s_cbranch_scc1 RETT{p}")
    A("s_cmp_eq_u32 s44, 2")
    A(f"s_cbranch_scc1 RETP{p}")
    A(f"s_branch RETL{p}")

def gen_mega():
    m = M()
    A, vm, lk = m.A, m.vm, m.lk
    name = os.environ.get("KNAME", "standalone__conformer_family_e_branchformer__speech_kernel")
    A(f".globl {name}\n.p2align 8\n.type {name},@function\n{name}:")
    A("s_cmp_ge_u32 s2, 256")
    A("s_cbranch_scc0 MEGA_GO")
    A("s_endpgm")
    A("MEGA_GO:")
    A("s_getpc_b64 s[96:97]")
    A("PCS:")
    A("s_and_b32 s97, s97, 0xffff\ns_mov_b32 s98, PF_ATT_END-PCS\ns_mov_b32 s99, 0x20000")
    A("s_lshr_b32 s100, s2, 3\ns_lshl_b32 s100, s100, 12")
    A("v_lshrrev_b32 v140, 3, v0\nv_lshlrev_b32 v140, 7, v140")
    vm.issue("PC", "buffer_load_dword v141, v140, s[96:99], s100 offen")
    A.stamp_init()
    ldptr(A, 8, 0); ldptr(A, 40, 3); ldptr(A, 44, 1); ldptr(A, 20, 10)
    ldptr(A, 60, 4); ldptr(A, 62, 6); ldptr(A, 12, 8); ldptr(A, 16, 9)
    A("v_lshrrev_b32 v1, 6, v0")
    A("v_and_b32 v0, 63, v0")
    A("v_readfirstlane_b32 s3, v1")
    A("v_lshlrev_b32 v1, 4, v0")
    A("s_and_b32 s28, s2, 7\ns_lshr_b32 s29, s2, 3\ns_and_b32 s30, s29, 3\ns_lshr_b32 s29, s29, 2")
    A("s_lshl_b32 s28, s28, 3\ns_add_u32 s28, s28, s29")
    A("s_lshl_b32 s31, s30, 2\ns_add_u32 s31, s31, s3")
    A("s_mov_b32 s49, 0xffff0000")
    A(f"s_lshl_b32 s24, s28, 7\ns_add_u32 s24, s24, {L.FLAGS}")
    A("s_mov_b32 s25, 0x60000")
    A("s_waitcnt lgkmcnt(0)")
    fix_srd(A, 8, 2 * L.T * 1024); fix_srd(A, 40, 0x100000); fix_srd(A, 44, 512 * 3072); fix_srd(A, 20, L.WS_BYTES)
    fix_srd(A, 12, 2 * L.T * 1024); fix_srd(A, 16, 256)
    A("PF_P0:")
    m.nonce_make(142)
    gu = GU(A, vm, lk)
    phase_p0(m, gu)
    c0, c1 = gelu_consts()
    A(f"v_mov_b32 v6, {hex(f2u(c0))}\nv_mov_b32 v7, v6\nv_mov_b32 v8, {hex(f2u(c1))}\nv_mov_b32 v9, v8\nv_mov_b32 v10, 1.0\nv_mov_b32 v11, 1.0")
    A(f"s_lshl_b32 s32, s28, 17\ns_add_u32 s32, s32, {L.XA}")
    for par in range(2):
        A(f"s_lshl_b32 s{66+par}, s31, 15\ns_add_u32 s{66+par}, s{66+par}, {L.W1 + par*16384}")
    gq_ = G4(A, vm, lk, NB=8, wn=2, KS=16, kps=2, NS=5, WD=16, s_act=32, blk_stride=16384, s_w=[66, 67],
             acc0=168, fr0=256, w0=256 + 112, vl16=1, vt=248, st=60, lds0=0, stamps=('A0', 'A1', 'A2'))
    gq_.smap = [106496, 122880, 139264, 73728, 90112]
    gq_.setup()
    RSR = 168
    A(f"v_and_b32 v252, 15, v0\nv_lshlrev_b32 v252, 3, v252")
    A(f"s_lshl_b32 s48, s28, 10\ns_add_u32 s48, s48, {L.RS - 128}")
    A(f"s_cmp_eq_u32 s28, 0\ns_cselect_b32 s38, {OOB}, s48\ns_cmp_eq_u32 s28, 63\ns_cselect_b32 s39, {OOB}, s48")
    def rsl():
        return [("RS", f"buffer_load_dwordx2 {v(RSR+2*b,2)}, v252, s[20:23], s{38 if b == 0 else (39 if b == 9 else 48)} offen offset:{b*128}{LL}") for b in range(10)]
    def extraU(k):
        out = []
        if k == 3:
            out.append(lambda: m.gsignal(0, 14))
        if k == 10:
            out.append(lambda: m.gpoll_issue(0, 224))
        if k == 11 and "nowarm" not in EXP:
            out.append(lambda: late_warm(m, 229))
        if k == 12:
            out.append(lambda: m.gpoll_check(0, 224))
        if k == 13:
            assert any("GOK" in x.text for x in A.lines)
            pl = gq_.prefetch_list()
            cut = next(i for i, y in enumerate(pl) if y[0] == ("D", id(gq_), 3)) - 1
            out += rsl() + pl[:cut]
            rest.extend(pl[cut:])
        return out
    rest = []
    dq = gu.run(extraU, start=False, keep=True)
    assert not any(y[0] == "RS" for y in dq)
    dq += rest
    def dripq(n=1):
        while dq and n > 0:
            y = dq.pop(0)
            gq_.emit(tuple(y))
            if y[0] is not None:
                n -= 1
    A("PF_U_END:")
    A("s_barrier")
    lat = late_issue(m, 232)
    TAz = 256 + 176
    tl = c4_tload(A, vm, TAz, 0, sr=68)
    SU, SG = gu.accs[(0, 0)], 188
    for i in range(8):
        A(f"v_mov_b32_dpp {v(SU+i)}, {v(SU+i)} row_newbcast:0 row_mask:0xf bank_mask:0xf")
        A(f"v_mov_b32_dpp {v(SG+i)}, {v(gu.accs[(0,2)]+i)} row_newbcast:0 row_mask:0xf bank_mask:0xf")
    def fold(x, sn, b):
        rs = v(RSR + 2 * b, 2)
        for e in range(4):
            A(f"v_pk_fma_f32 {v(x+2*e,2)}, {v(sn+2*e,2)}, {rs}, {v(x+2*e,2)} op_sel:[0,1,0] op_sel_hi:[1,1,1]")
        for e in range(4):
            A(f"v_pk_mul_f32 {v(x+2*e,2)}, {v(x+2*e,2)}, {rs} op_sel_hi:[1,0]")
    tmp = list(range(196, 204, 2))
    st = 204
    for i in (18, 19, 22, 23):
        A(f"v_mov_b32 {v(st+i)}, 0")
    vm.wait("RS")
    for b in range(10):
        gq = gu.accs[(b, 2)]
        fold(gq, SG, b)
        dripq(1)
        gelu_pk(A, list(range(gq, gq + 8, 2)), tmp, lambda: dripq(1))
        s1, s2 = st + (b >> 2) * 8 + (b & 3), st + (b >> 2) * 8 + 4 + (b & 3)
        A(f"v_pk_add_f32 v[12:13], {v(gq,2)}, {v(gq+2,2)}\nv_pk_mul_f32 v[14:15], {v(gq,2)}, {v(gq,2)}")
        A(f"v_pk_add_f32 v[12:13], v[12:13], {v(gq+4,2)}\nv_pk_fma_f32 v[14:15], {v(gq+2,2)}, {v(gq+2,2)}, v[14:15]")
        A(f"v_pk_add_f32 v[12:13], v[12:13], {v(gq+6,2)}\nv_pk_fma_f32 v[14:15], {v(gq+4,2)}, {v(gq+4,2)}, v[14:15]")
        A(f"v_add_f32 {v(s1)}, v12, v13\nv_pk_fma_f32 v[14:15], {v(gq+6,2)}, {v(gq+6,2)}, v[14:15]")
        A(f"v_add_f32 {v(s2)}, v14, v15")
    A(f"s_lshl_b32 s33, s28, 4\ns_add_u32 s33, s33, s31\ns_mul_i32 s33, s33, 1536\ns_add_u32 s33, s33, {L.GST}")
    A("v_lshlrev_b32 v12, 3, v0")
    for h in range(3):
        for o in (0, 4):
            x = st + h * 8 + o
            A(f"v_permlane32_swap_b32 {v(x)}, {v(x+2)}")
            A(f"v_permlane32_swap_b32 {v(x+1)}, {v(x+3)}")
            A(f"v_add_f32 {v(x)}, {v(x)}, {v(x+2)}")
            A(f"v_add_f32 {v(x+1)}, {v(x+1)}, {v(x+3)}")
            A(f"v_permlane16_swap_b32 {v(x)}, {v(x+1)}")
            A(f"v_add_f32 {v(x)}, {v(x)}, {v(x+1)}")
        x = st + h * 8
        A(f"v_mov_b32 {v(x+1)}, {v(x+4)}")
        vm.issue("sS", f"buffer_store_dwordx2 {v(x,2)}, v12, s[20:23], s33 offen offset:{h*512}{SL}")
    for b in range(1, 9):
        fold(gu.accs[(b, 0)], SU, b)
        dripq(1)
    dripq(100)
    A.stamp('g')
    def extraA(k):
        out = []
        if k == 3:
            out.append(lambda: m.signal(F_S, "sS", 12))
        if k == 5:
            out += lat
        if k == 13:
            out.append(lambda: m.poll_issue(F_S, False, 13))
        return out
    gq_.run(extraA)
    A("s_lshl_b32 s33, s3, 6\nv_add_u32 v14, s33, v0\nv_lshlrev_b32 v15, 3, v14")
    A("s_lshl_b32 s33, s28, 7\ns_sub_u32 s33, s33, 16\nv_add_u32 v14, s33, v14")
    A(f"s_mul_i32 s33, s28, {16*1536}\ns_add_u32 s33, s33, {L.GST}")
    m.poll_check(F_S, False, 13)
    for i in range(16):
        vm.issue("ST", f"buffer_load_dwordx2 {a_(64+2*i,2)}, v15, s[20:23], s33 offen offset:{(i&1)*1536}{LL}")
        if i & 1:
            A("s_add_u32 s33, s33, 3072")
    A("s_lshl_b32 s48, s28, 17\ns_lshl_b32 s33, s31, 10\ns_add_u32 s48, s48, s33")
    A(f"s_add_u32 s33, s48, {L.QP}")
    for b in range(8):
        q = gq_.accs[(b, 0)]
        for i in range(4):
            A(f"v_cvt_pk_bf16_f32 {v(q+i)}, {v(q+2*i)}, {v(q+2*i+1)}")
        vm.issue("sQ", f"buffer_store_dwordx4 {v(q,4)}, v1, s[20:23], s33 offen{SL}")
        A("s_add_u32 s33, s33, 16384")
    A.stamp('qs')
    dq += tl
    UR = 16
    tmp = list(range(240, 248, 2))
    for b in range(1, 9):
        u = gu.accs[(b, 0)]
        gelu_pk(A, list(range(u, u + 8, 2)), tmp, lambda: dripq(1))
        for i in range(4):
            A(f"v_cvt_pk_bf16_f32 {v(UR+4*(b-1)+i)}, {v(u+2*i)}, {v(u+2*i+1)}")
    A.stamp('u')
    def kv(tile):
        for x in kv_dma_ops():
            if "buffer" in x:
                vm.issue(("KV", tile), x)
            else:
                A(x)
    LB = 65536
    FST = LB + 4 * T4B
    STT = 155648
    B0, D0, OUT, VA_ = 168, 88, 48, 80
    S0 = 48
    A("v_and_b32 v12, 4095, v14")
    A(f"s_movk_i32 s32, {L.T}\ns_movk_i32 s33, 8192")
    A("v_cmp_gt_u32 vcc, s32, v12")
    A("v_cmp_gt_u32 s[34:35], s33, v14")
    A("s_and_b64 vcc, vcc, s[34:35]")
    A(f"v_add_u32 v15, {STT}, v15")
    vm.wait("ST")
    for i in range(32):
        A(f"v_accvgpr_read_b32 {v(S0+i)}, {a_(64+i)}")
    for i in range(1, 16):
        A(f"v_pk_add_f32 {v(S0,2)}, {v(S0,2)}, {v(S0+2*i,2)}")
    A(f"v_mul_f32 {v(S0)}, {hex(f2u(1/512))}, {v(S0)}")
    A(f"v_mul_f32 {v(S0+1)}, {hex(f2u(1/512))}, {v(S0+1)}")
    A(f"v_fma_f32 {v(S0+1)}, -{v(S0)}, {v(S0)}, {v(S0+1)}")
    A(f"v_max_f32 {v(S0+1)}, 0, {v(S0+1)}")
    A(f"v_add_f32 {v(S0+1)}, {hex(f2u(1e-5))}, {v(S0+1)}")
    A(f"v_rsq_f32 {v(S0+2)}, {v(S0+1)}")
    A(f"v_mul_f32 {v(S0+3)}, {v(S0)}, {v(S0+2)}")
    A(f"v_sub_f32 {v(S0+3)}, 0, {v(S0+3)}")
    A(f"v_cndmask_b32 {v(S0+2)}, 0, {v(S0+2)}, vcc")
    A(f"v_cndmask_b32 {v(S0+3)}, 0, {v(S0+3)}, vcc")
    A(f"ds_write_b64 v15, {v(S0+2,2)}")
    m.signal(F_Q, "sQ", 12)
    late_compute(m, 168, 200, 240, 232)
    A("s_barrier")
    m.poll_issue(F_Q, False, 13)
    c4_addr(A, LB, VA_)
    A(f"s_mul_i32 s45, s3, 10240\ns_add_u32 s45, s45, {FST}\nv_add_u32 v84, s45, v1")
    A("v_lshrrev_b32 v85, 2, v0\nv_lshlrev_b32 v85, 4, v85\nv_and_b32 v12, 3, v0\nv_lshl_add_u32 v85, v12, 8, v85\nv_add_u32 v85, s45, v85")
    A("s_lshr_b32 s32, s28, 5")
    A("s_mul_i32 s33, s30, 31\ns_cmp_lg_u32 s30, 0\ns_addc_u32 s33, s33, 0")
    A("s_lshl_b32 s34, s32, 7\ns_add_u32 s33, s33, s34\ns_lshl_b32 s46, s33, 15")
    A(f"s_add_u32 s46, s46, {L.XA}")
    A("s_lshl_b32 s47, s3, 12")
    A("s_and_b32 s35, s3, 1\ns_lshl_b32 s35, s35, 7")
    A(f"v_xor_b32 {v(DV0)}, s35, v1\nv_add_u32 {v(DV0)}, s47, {v(DV0)}\nv_add_u32 {v(DV1)}, 16384, {v(DV0)}")
    A(f"v_and_b32 v12, 15, v0\nv_lshlrev_b32 v12, 3, v12\nv_add_u32 v12, {STT}, v12")
    A.stamp('stb')
    TB = 232
    for b in range(10):
        lk.issue(("T", b), f"ds_read_b64 {v(TB+2*b,2)}, v12 offset:{b*128}")
    A(f"s_lshl_b32 s36, s28, 2\ns_add_u32 s36, s36, s3\ns_lshl_b32 s36, s36, 15\ns_add_u32 s36, s36, {L.QP}\ns_add_u32 s37, s36, 16384")
    def kvl(tile):
        out, cur = [], []
        for x in kv_dma_ops():
            cur.append(x)
            if "buffer" in x:
                out.append(cur); cur = []
        out[-1] += cur
        return [(lambda gr=gr: [vm.issue(("KV", tile), x) if "buffer" in x else A(x) for x in gr]) for gr in out]
    ql = kvl(0)
    def qload(j, qa):
        if j == 0 and qa == 0:
            m.poll_check(F_Q, False, 13)
        vm.issue(("Q", j), f"buffer_load_dwordx4 {R(Qr(qa,j),4)}, v1, s[20:23], s{36+qa} offen offset:{(j&3)*1024}{LL}")
        if j % 4 == 3 and qa == 1:
            A("s_add_u32 s36, s36, 4096\ns_add_u32 s37, s37, 4096")
    for j in range(16):
        for qa in range(2):
            ql.append(lambda j=j, qa=qa: qload(j, qa))
    ql += kvl(1)
    for b in range(10):
        lk.wait(("T", b))
        gq = gu.accs[(b, 2)]
        for e in range(4):
            A(f"v_pk_fma_f32 {v(gq+2*e,2)}, {v(gq+2*e,2)}, {v(TB+2*b,2)}, {v(TB+2*b,2)} op_sel:[0,0,1] op_sel_hi:[1,0,1]")
        ql.pop(0)()
        for e in range(4):
            A(f"v_cvt_pk_bf16_f32 {v(gq+e)}, {v(gq+2*e)}, {v(gq+2*e+1)}")
        lk.issue("wr", f"ds_write_b128 v84, {v(gq,4)} offset:{b*1024}")
        for u in range(2):
            lk.issue(("X", b), f"ds_read_b64_tr_b16 {v(B0+4*b+2*u,2)}, v85 offset:{b*1024+u*8}")
        ql.pop(0)()
        if b >= 1:
            lk.wait(("X", b - 1))
            for u in range(2):
                c4_write(lk, VA_, B0 + 4 * (b - 1) + 2 * u, b - 1, u)
    lk.wait(("X", 9))
    for u in range(2):
        c4_write(lk, VA_, B0 + 36 + 2 * u, 9, u)
    vm.wait("CW")
    A.stamp('zc0')
    c4_core(A, lk, TAz, B0, D0, VA_, OUT, False, ql)
    A.stamp('zc1')
    A(f"s_add_u32 s41, s48, {L.Z}")
    for b in range(8):
        lk.wait(("O", b))
        t = 88 + 16 * (b & 1)
        for _ in range(2):
            if ql: ql.pop(0)()
        for e in range(4):
            A(f"v_lshlrev_b32 {v(t+2*e)}, 16, {v(OUT+4*b+e)}\nv_and_b32 {v(t+2*e+1)}, s49, {v(OUT+4*b+e)}")
            A(f"v_lshlrev_b32 {v(t+8+2*e)}, 16, {v(UR+4*b+e)}\nv_and_b32 {v(t+8+2*e+1)}, s49, {v(UR+4*b+e)}")
        for e in range(4):
            A(f"v_pk_mul_f32 {v(t+2*e,2)}, {v(t+2*e,2)}, {v(t+8+2*e,2)}")
        for e in range(4):
            A(f"v_cvt_pk_bf16_f32 {v(128+4*b+e)}, {v(t+2*e)}, {v(t+2*e+1)}")
    assert not ql
    A.stamp('z')
    A(f"v_mov_b32 {v(IT)}, 0\ns_lshl_b32 s33, s3, 8\ns_add_u32 s33, s33, {FLG}\nv_lshlrev_b32 {v(FW)}, 2, v0\nv_add_u32 {v(FW)}, s33, {v(FW)}")
    A(f"v_and_b32 {v(FR)}, 3, v0\nv_lshlrev_b32 {v(FR)}, 8, {v(FR)}\nv_add_u32 {v(FR)}, {FLG}, {v(FR)}")
    A(f"ds_write_b32 {v(FW)}, {v(IT)}")
    vm.wait(("KV", 0))
    A("s_waitcnt lgkmcnt(0)")
    A("s_barrier")
    def zst(b):
        vm.issue("sZ", f"buffer_store_dwordx4 {v(128+4*b,4)}, v1, s[20:23], s41 offen{SC}")
        A("s_add_u32 s41, s41, 16384")
    pro = kvl(2)[:7] + [(lambda b=b: zst(b)) for b in range(8)]
    A("s_cmp_eq_u32 s30, 0\ns_addc_u32 s44, 31, 0")
    A(f"s_mov_b32 s45, {hex(f2u(THRESH))}")
    A(f"v_mov_b32 {v(KA0)}, {v(L16)}")
    A(f"v_xor_b32 {v(KA1)}, 128, {v(L16)}")
    A.stamp('cb')
    m.gsignal(1, 120)
    sc = Sched(A)
    for mm_ in range(8):
        sc.issue(("K", mm_), kread(mm_, 0))
    A(f"v_lshrrev_b32 {v(T0)}, 2, v0")
    A(f"v_bfe_u32 {v(T0+1)}, v0, 1, 1")
    A(f"v_lshlrev_b32 {v(T0+2)}, 3, {v(T0+1)}")
    A(f"v_xor_b32 {v(T0)}, {v(T0)}, {v(T0+2)}")
    A(f"v_lshlrev_b32 {v(T0)}, 4, {v(T0)}")
    A(f"v_lshl_add_u32 {v(T0)}, {v(T0+1)}, 12, {v(T0)}")
    A(f"v_and_b32 {v(T0+1)}, 1, v0")
    A(f"v_lshl_add_u32 {v(VA)}, {v(T0+1)}, 3, {v(T0)}")
    A(f"v_xor_b32 {v(VA)}, 0x10000, {v(VA)}")
    A(f"v_mov_b32 {v(LS0)}, 0\nv_mov_b32 {v(LS1)}, 0")
    A(f"s_lshl_b32 s32, s28, 17\ns_add_u32 s32, s32, {L.Z - 16384}")
    for par in range(2):
        A(f"s_lshl_b32 s{60+par}, s31, 15\ns_add_u32 s{60+par}, s{60+par}, {L.W2 + (32+par)*16384}")
    e1 = G4(A, vm, lk, NB=10, wn=2, KS=16, kps=2, NS=8, WD=16, s_act=32, blk_stride=16384, s_w=[60, 61],
            acc0=16, fr0=256 + 128, w0=256, vl16=1, vt=116, st=50, lds0=0, swap=True, dfl=LL, stamps=('E0', 'E1', 'Ex'), halo=True)
    e1.setup()
    for n in range(32):
        j, ka = n >> 1, n & 1
        if ka == 0:
            c_ = vm.count_for(("Q", j))
            sc.wait(("K", n + 1), f"vmcnt({c_}) " if c_ is not None else "")
        for qa in range(2):
            sr = Sreg(0, ka, qa)
            c = "0" if j == 0 else v(sr, 4)
            A(f"{MF} {v(sr,4)}, {v(ring(n),4)}, {R(Qr(qa,j),4)}, {c}")
        if n % 2 == 1 and pro:
            pro.pop(0)()
        if n == 24:
            vm.wait(("KV", 1))
            A("s_barrier")
        if n + 8 < 32:
            sc.issue(("K", n + 8), kread(n + 8, 0))
        else:
            sc.issue(("K", n + 8 - 32), kread(n + 8 - 32, 1))
    A.stamp('qk')
    assert not pro
    for qa in range(2):
        rowmax(A, 0, qa, T0 + qa, T0 + 2)
        for ka in range(2):
            for r in range(4):
                x = Sreg(0, ka, qa) + r
                A(f"v_sub_f32 {v(x)}, {v(x)}, {v(T0+qa)}")
        for r in range(4):
            A(f"v_sub_f32 {v(NEGM+4*qa+r)}, 0, {v(T0+qa)}")
    sc.wait(("K", 1))
    q0 = list(sc.q)
    if "delay" in EXP:
        for _ in range(2):
            A("s_sleep 100")
    def zsig():
        vm.q = []
        m.signal(F_Z, "sZ", 120)
    A.stamp('loop')
    half(A, sc, 0, False, "F0", ["s_sub_u32 s44, s44, 1", "s_nop 0", "s_branch LOOP1"], first=zsig)
    assert sc.q == q0, (sc.q, q0)
    A(".p2align 6")
    A("LOOP:")
    half(A, sc, 0, False, "L0", ["s_sub_u32 s44, s44, 1", "s_cmp_eq_u32 s44, 2", "s_cbranch_scc1 PRE1"])
    assert sc.q == q0
    A("LOOP1:")
    half(A, sc, 1, False, "L1", ["s_sub_u32 s44, s44, 1", "s_cmp_lg_u32 s44, 2", "s_cbranch_scc1 LOOP"])
    assert sc.q == q0
    def groups(items):
        out, cur = [], []
        for x in items:
            isv = (x[0] is not None) if isinstance(x, tuple) else ("buffer" in x)
            if isv:
                cur.append(x if isinstance(x, tuple) else (lambda x=x: vm.issue("ZT", x)))
                out.append(cur); cur = []
            else:
                cur.append(x[1] if isinstance(x, tuple) else x)
        return out, cur
    def endgame(p):
        vm.q = ["KVX"] * 8
        sc.q = list(q0)
        d1 = kv_dma_ops()
        d2 = kv_dma_ops()[:10]
        d2 = [x.replace("s46", "s32") for x in d2]
        d2[0] = "s_add_u32 m0, s33, 131072"
        d2[5] = f"s_add_u32 m0, s33, {131072+16384}"
        ga, _ = groups(d1 + ["s_lshl_b32 s33, s3, 12", "s_add_u32 s32, s46, 32768"] + d2)
        gw, _ = groups(e1.wlist(16))
        half(A, sc, p, False, f"P{p}", pre=(ga, gw[:15]))
        gt, _ = groups(kv_dma_ops()[:10])
        half(A, sc, p ^ 1, True, f"T{p^1}", tailfill=gt + gw[15:])
    endgame(0)
    A("s_branch EPI")
    for t in SPINS:
        spin(A, t)
    for t in ("L0", "L1"):
        sv = list(vm.q)
        A(f"HOOK{t}:")
        A(f"s_cmp_lg_u32 s44, 13\ns_cbranch_scc1 HK11{t}")
        m.poll_issue(F_Z, True, 120)
        m.gpoll_issue(1, 112)
        A(f"s_branch HRET{t}")
        A(f"HK11{t}:")
        A(f"s_cmp_lg_u32 s44, 12\ns_cbranch_scc1 HK10{t}")
        vm.q = []
        m.poll_check(F_Z, True, 120)
        m.gpoll_check(1, 112)
        A(f"s_lshr_b32 s58, s2, 3\ns_lshl_b32 s58, s58, 2\ns_add_u32 s58, s58, s3\ns_mul_i32 s58, s58, 20480\ns_add_u32 s58, s58, {L.W2}")
        A("v_lshlrev_b32 v122, 6, v0")
        A(f"s_branch HRET{t}")
        A(f"HK10{t}:")
        A(f"s_cmp_eq_u32 s44, 11\ns_cbranch_scc1 HRET{t}")
        A(f"s_cmp_lt_u32 s44, 6\ns_cbranch_scc1 HK5{t}")
        if "nol2" not in EXP:
            A("buffer_load_dword v123, v122, s[20:23], s58 offen\ns_add_u32 s58, s58, 4096")
        A(f"s_branch HRET{t}")
        A(f"HK5{t}:")
        A(f"s_cmp_lg_u32 s44, 5\ns_cbranch_scc1 HK4{t}")
        A.stamp('r6')
        m.pf("LOOP", "PF_END", 120)
        A(f"s_branch HRET{t}")
        A(f"HK4{t}:")
        A(f"s_cmp_lg_u32 s44, 4\ns_cbranch_scc1 HK3{t}")
        if "nol2" not in EXP and "nox" not in EXP:
            A(f"s_lshr_b32 s33, s28, 5\ns_mul_i32 s33, s33, {L.T}\ns_and_b32 s58, s28, 31\ns_lshl_b32 s58, s58, 7\ns_add_u32 s33, s33, s58\ns_lshl_b32 s58, s3, 5\ns_add_u32 s33, s33, s58")
            A("s_lshl_b32 s33, s33, 10\ns_lshl_b32 s58, s30, 8\ns_add_u32 s33, s33, s58\ns_add_u32 s58, s33, 16384")
            A("v_lshrrev_b32 v122, 2, v0\nv_lshlrev_b32 v122, 10, v122\nv_and_b32 v123, 3, v0\nv_lshl_add_u32 v122, v123, 6, v122")
            A("buffer_load_dword v123, v122, s[8:11], s33 offen\nbuffer_load_dword v123, v122, s[8:11], s58 offen")
        A(f"s_branch HRET{t}")
        A(f"HK3{t}:")
        A(f"s_lshl_b32 s46, s28, 17\ns_add_u32 s46, s46, {L.Z}\ns_and_b32 s59, s47, 0x18000")
        A(f"s_branch HRET{t}")
        vm.q = sv
    A("PRE1:")
    endgame(1)
    A("EPI:")
    A.stamp('epi')
    vm.wait("ZT")
    A("s_barrier")
    A(f"s_lshl_b32 s32, s28, 17\ns_add_u32 s32, s32, {L.Z - 16384}\ns_cmp_eq_u32 s28, 0\ns_cselect_b32 s34, {OOB}, s32")
    A(f"s_add_u32 s32, s32, {8*16384}\ns_cmp_eq_u32 s28, 63\ns_cselect_b32 s35, {OOB}, s32")
    A("s_add_u32 s47, s47, 32768\ns_and_b32 s47, s47, 0x1ffff\ns_mov_b32 m0, s47")
    for i in range(4):
        vm.issue("ZH", f"buffer_load_dwordx4 {v(DV0)}, s[20:23], s34 offen offset:{i*1024} lds")
    A("s_add_u32 m0, s47, 16384")
    for i in range(4):
        vm.issue("ZH", f"buffer_load_dwordx4 {v(DV1)}, s[20:23], s35 offen offset:{i*1024} lds")
    for qa in range(2):
        x = LS0 + qa
        for lv in (16, 32):
            A(f"v_mov_b32 {v(T0)}, {v(x)}")
            A(f"v_permlane{lv}_swap_b32 {v(x)}, {v(T0)}")
            A(f"v_add_f32 {v(x)}, {v(x)}, {v(T0)}")
    A(f"v_and_b32 {v(T0)}, 16, v0")
    A(f"v_cmp_eq_u32 vcc, 0, {v(T0)}")
    A(f"v_cndmask_b32 {v(T0+1)}, {v(NEGM+4)}, {v(NEGM)}, vcc")
    A(f"v_cndmask_b32 {v(T0+2)}, {v(LS1)}, {v(LS0)}, vcc")
    A(f"v_sub_f32 {v(T0+1)}, 0, {v(T0+1)}")
    A(f"v_cmp_gt_u32 vcc, 32, v0")
    A(f"v_cndmask_b32 v124, {v(T0+2)}, {v(T0+1)}, vcc")
    A(f"v_lshlrev_b32 v125, 2, v0")
    for p_ in range(5):
        if p_ == 3:
            A("s_mov_b32 s32, 131072")
        else:
            A(f"s_add_u32 s32, s59, {32768*min(p_,3)}\ns_and_b32 s32, s32, 0x1ffff")
        A(f"v_add_u32 {v(2+2*p_)}, s32, v1\nv_xor_b32 {v(3+2*p_)}, 128, {v(2+2*p_)}")
    def zaddr(b, k):
        p_, h_ = {0: (4, 0), 9: (4, 1)}.get(b, ((b - 1) >> 1, (b - 1) & 1))
        return f"{v(2+2*p_+((k>>2)&1))} offset:{h_*16384+k*1024}"
    seq = [(b, k) for k in range(16) for b in range(1, 9)] + [(b, k) for k in range(16) for b in (0, 9)]
    NRG = 7
    def rg(i): return 96 + 4 * (i % NRG)
    def zread(i):
        lk.issue(("Z", i), f"ds_read_b128 {v(rg(i),4)}, {zaddr(*seq[i])}")
    for i in range(NRG):
        zread(i)
    A("s_lshl_b32 s33, s28, 2\ns_add_u32 s33, s33, s3")
    A(f"s_lshl_b32 s35, s30, 8\ns_add_u32 s35, s35, s33\ns_lshl_b32 s35, s35, 8\ns_add_u32 s35, s35, {L.PML}")
    A(f"s_lshl_b32 s36, s30, 23\ns_lshl_b32 s37, s33, 15\ns_add_u32 s36, s36, s37\ns_add_u32 s36, s36, {L.PO}")
    A(f"s_cmp_eq_u32 s3, s30\ns_cselect_b32 s36, {OOB}, s36\ns_add_u32 s37, s36, 16384")
    vm.issue("sP1", f"buffer_store_dword v124, v125, s[20:23], s35 offen{SL}")
    pk = []
    tmpr = [12, 14, 126]
    tcount = 0
    for f in range(16):
        for qa in range(2):
            d = 128 + 8 * f + 4 * qa
            for i in range(4):
                o = Or(2 * f + (i >> 1), qa) + 2 * (i & 1)
                if o >= 256:
                    t = tmpr[tcount % 3]; tcount += 1
                    pk.append((None, f"v_accvgpr_read_b32 {v(t)}, {R(o)}"))
                    pk.append((None, f"v_accvgpr_read_b32 {v(t+1)}, {R(o+1)}"))
                    o = t
                pk.append((None, f"v_cvt_pk_bf16_f32 {v(d+i)}, {v(o)}, {v(o+1)}"))
            pk.append(("sP1" if f < 8 else "sP", f"buffer_store_dwordx4 {v(d,4)}, v1, s[20:23], s{36+qa} offen offset:{(f&3)*1024}{SM}"))
        if f % 4 == 3:
            pk.append((None, "s_add_u32 s36, s36, 4096"))
            pk.append((None, "s_add_u32 s37, s37, 4096"))
    TA = 256 + 208
    XSP = int(os.environ.get("XSP", "2"))
    pk += c4_tload(A, vm, TA, 64)
    A("s_lshr_b32 s40, s28, 5\ns_and_b32 s41, s28, 31\ns_lshl_b32 s41, s41, 7")
    A(f"s_mul_i32 s40, s40, {L.T}\ns_add_u32 s40, s40, s41\ns_lshl_b32 s40, s40, 10\ns_lshl_b32 s32, s31, 6\ns_add_u32 s40, s40, s32")
    for y in "v_and_b32 v12, 15, v0\nv_lshlrev_b32 v12, 10, v12\nv_lshrrev_b32 v13, 4, v0\nv_lshl_add_u32 v12, v13, 4, v12".split("\n"):
        pk.append((None, y))
    for b in range(8):
        A(f"s_add_u32 s32, s41, {16*b}\ns_add_u32 s38, s40, {16384*b}\ns_cmp_lt_u32 s32, {L.T}\ns_cselect_b32 s{50+b}, s38, 0x40000000")
        pk.append(("X", f"buffer_load_dwordx4 {a_(128+4*b,4)}, v12, s[8:11], s{50+b} offen"))
        pk += [(None, "s_nop 0")] * XSP
    A("PF_ATT_END:")
    A.stamp('D')
    SG1 = int(os.environ.get("SG1", "100"))
    vm.wait(("W", id(e1), 15))
    for i, (b, k) in enumerate(seq):
        if i % 2 == 0:
            lk.wait(("Z", i + 1))
        for u in range(2):
            acc = e1.accs[(b, u)]
            A(f"{MF} {v(acc,4)}, {v(rg(i),4)}, {R(e1.wreg(u,k),4)}, {'0' if k == 0 else v(acc,4)}")
            slots = 2
            mem = False
            if u == 1:
                if i + NRG == 128:
                    vm.wait("ZH")
                    A("s_barrier")
                if i == SG1:
                    m.signal(F_P1, "sP1", 124, sub=3)
                if i == 150:
                    m.poll_issue(F_P1, False, 125, sub=30)
                if i + NRG < len(seq):
                    zread(i + NRG); slots -= 1; mem = True
                if i % 2 == 1:
                    slots -= 1
            while pk and slots > 0:
                if pk[0][0] is not None and mem:
                    break
                t_, x = pk.pop(0)
                if t_ is None:
                    A(x)
                else:
                    vm.issue(t_, x); mem = True
                slots -= 1
    assert not pk
    A.stamp('Ex')
    A("s_barrier")
    CV = 8
    c4_addr(A, 0, CV)
    A("v_add_u32 v118, 0x10000, v1")
    OWN = 65536
    A("s_cmp_lg_u32 s3, s30\ns_cbranch_scc1 NOT_OWN")
    for f in range(16):
        for qa in range(2):
            A(f"ds_write_b128 v118, {v(128+8*f+4*qa,4)} offset:{qa*16384+f*1024}")
        if f % 4 == 3:
            A("s_waitcnt lgkmcnt(4)")
    A("NOT_OWN:")

    def conv_store(gg, half_, TA_, pre, tag, early=lambda: None):
        for b in range(10):
            early()
            for u in range(2):
                q = gg.accs[(b, u)]
                for i in range(2):
                    A(f"v_cvt_pk_bf16_f32 {v(q+i)}, {v(q+2*i)}, {v(q+2*i+1)}")
                c4_write(lk, CV, q, b, u)
            if b % 4 == 3:
                lk.wait("wr")
        vm.wait("CW")
        fl = pre() if pre else None
        c4_core(A, lk, TA_, 128, 16, CV, 80, True, fl)
        assert not fl
        A(f"s_lshl_b32 s40, s28, 18\ns_lshl_b32 s41, s31, 10\ns_add_u32 s40, s40, s41\ns_add_u32 s40, s40, {L.MM + half_*16384}")
        for b in range(8):
            lk.wait(("O", b))
            vm.issue(tag, f"buffer_store_dwordx4 {v(80+4*b,4)}, v1, s[20:23], s40 offen{SM}")
            A("s_add_u32 s40, s40, 32768")

    A(f"s_lshl_b32 s32, s28, 18\ns_add_u32 s32, s32, {L.MM + 16384}")
    for par in range(2):
        A(f"s_lshl_b32 s{60+par}, s31, 16\ns_add_u32 s{60+par}, s{60+par}, {L.W3 + par*32768 + 16384}")
    gG = G4(A, vm, lk, NB=8, wn=2, KS=16, kps=2, NS=8, WD=8, s_act=32, blk_stride=32768, s_w=[60, 61],
            acc0=256 + 192, fr0=128, w0=256, vl16=1, vt=116, st=50, lds0=0, dfl=LL, stamps=('G0', 'G1', 'Gx'))
    gG.setup()
    A(f"s_lshl_b32 s32, s28, 17\ns_add_u32 s32, s32, {L.AT - 16384}")
    for par in range(2):
        A(f"s_lshl_b32 s{70+par}, s31, 15\ns_add_u32 s{70+par}, s{70+par}, {L.W2 + par*16384}")
    gH = G4(A, vm, lk, NB=10, wn=2, KS=16, kps=2, NS=8, WD=16, s_act=32, blk_stride=16384, s_w=[70, 71],
            acc0=16, fr0=128, w0=256 + 64, vl16=1, vt=120, st=62, lds0=0, swap=True, dfl=LL, stamps=('H0', 'H1', 'Hx'), halo=True)
    gH.setup()
    A("s_lshl_b32 s33, s28, 2\ns_add_u32 s33, s33, s30")
    A("v_and_b32 v4, 15, v0\nv_lshlrev_b32 v4, 2, v4")
    A(f"s_lshl_b32 s34, s33, 8\ns_lshr_b32 s35, s3, 1\ns_lshl_b32 s35, s35, 6\ns_add_u32 s34, s34, s35\ns_add_u32 s34, s34, {L.PML}")
    A("s_lshr_b32 s35, s3, 1\ns_lshl_b32 s35, s35, 14\ns_and_b32 s48, s3, 1\ns_lshl_b32 s48, s48, 12\ns_add_u32 s35, s35, s48")
    A("s_lshl_b32 s48, s33, 15\ns_add_u32 s48, s48, s35")
    A(f"s_add_u32 s35, s35, {OWN}\nv_add_u32 v5, s35, v1")
    PS = {1: 4, 2: 6, 3: 46}
    for sp in range(4):
        A(f"s_add_u32 s35, s30, {sp}\ns_and_b32 s35, s35, 3\ns_lshl_b32 s{36+sp}, s35, 16\ns_add_u32 s{36+sp}, s{36+sp}, s34")
        if sp:
            A(f"s_lshl_b32 s35, s35, 23\ns_add_u32 s35, s35, s48\ns_add_u32 s{PS[sp]}, s35, {L.PO}\ns_add_u32 s{PS[sp]+1}, s{PS[sp]}, 8192")
    def preg(f, sp):
        return (192 if f < 4 else 128) + 16 * (f & 3) + 4 * sp
    def pload(f):
        for sp in range(1, 4):
            vm.issue(("P", f), f"buffer_load_dwordx4 {v(preg(f,sp),4)}, v1, s[20:23], s{PS[sp]+(f>>2)} offen offset:{(f&3)*1024}{LL}")
    def preE2():
        m.signal(F_P, "sP", 12, sub=3)
        m.poll_check(F_P1, False, 125, target=4)
        for sp in range(4):
            vm.issue("ML", f"buffer_load_dword {v(112+sp)}, v4, s[20:23], s{36+sp} offen{LL}")
            vm.issue("ML", f"buffer_load_dword {v(124+sp)}, v4, s[20:23], s{36+sp} offen offset:128{LL}")
        for f in range(4):
            pload(f)
        return [lambda: None] * 12 + [lambda: m.poll_issue(F_P, False, 13, sub=30)]
    wq_ = gG.wlist(8) + gH.wlist(16)
    def dripw(n):
        while wq_ and n > 0:
            y = wq_.pop(0); y()
            n -= y[0] is not None
    NE = int(os.environ.get("NE", "0"))
    conv_store(e1, 1, TA, preE2, "sML", lambda: dripw(NE))
    A.stamp('E2')
    vm.wait("X")
    for b in range(8):
        q = gG.accs[(b, 0)]
        t = 16 + 12 * (b & 1)
        for i in range(4):
            A(f"v_accvgpr_read_b32 {v(t+8+i)}, {a_(128+4*b+i)}")
        for i in range(4):
            A(f"v_lshlrev_b32 {v(t+2*i)}, 16, {v(t+8+i)}\nv_and_b32 {v(t+2*i+1)}, s49, {v(t+8+i)}")
        for i in range(8):
            A(f"v_accvgpr_write_b32 {R(q+i)}, {v(t+i)}")
    m.poll_check(F_P, False, 13, target=4)
    for f in range(4, 8):
        pload(f)
    vm.wait("sML")
    A("s_barrier")
    m.signal(F_ML, "sML", 12, w0=True)
    for f in range(8):
        lk.issue(("OWN", f), f"ds_read_b128 {v(preg(f,0),4)}, v5 offset:{(f>>2)*8192+(f&3)*1024}")
    lk.wait(("OWN", 7))
    vm.wait("ML")
    A("v_max3_f32 v24, v112, v113, v114\nv_max_f32 v24, v24, v115")
    for sp in range(4):
        A(f"v_sub_f32 {v(16+sp)}, {v(112+sp)}, v24")
    for sp in range(4):
        A(f"v_exp_f32 {v(16+sp)}, {v(16+sp)}")
    A("v_mul_f32 v25, v16, v124\nv_fmac_f32 v25, v17, v125\nv_fmac_f32 v25, v18, v126\nv_fmac_f32 v25, v19, v127")
    A("v_rcp_f32 v25, v25")
    A("s_and_b32 s34, s33, 127\ns_cmp_lt_u32 s34, 125\ns_cselect_b32 s34, 1.0, 0")
    A("v_mul_f32 v25, s34, v25")
    wr = [26, 28, 30, 32]
    for sp in range(4):
        A(f"v_mul_f32 {v(wr[sp])}, {v(16+sp)}, v25")
    A(f"s_add_u32 s34, s48, {L.AT}\ns_add_u32 s35, s34, 8192")
    NW = int(os.environ.get("NWF", "5"))
    for f in range(8):
        vm.wait(("P", f))
        acc, t, o = 40, 48, 80 + 4 * f
        for sp in range(4):
            raw = preg(f, sp)
            for e in range(4):
                A(f"v_lshlrev_b32 {v(t+2*e)}, 16, {v(raw+e)}\nv_and_b32 {v(t+2*e+1)}, s49, {v(raw+e)}")
            for e in range(4):
                if sp == 0:
                    A(f"v_pk_mul_f32 {v(acc+2*e,2)}, {v(t+2*e,2)}, {v(wr[sp],2)} op_sel_hi:[1,0]")
                else:
                    A(f"v_pk_fma_f32 {v(acc+2*e,2)}, {v(t+2*e,2)}, {v(wr[sp],2)}, {v(acc+2*e,2)} op_sel_hi:[1,0,1]")
        for e in range(4):
            A(f"v_cvt_pk_bf16_f32 {v(o+e)}, {v(acc+2*e)}, {v(acc+2*e+1)}")
        vm.issue("sAT", f"buffer_store_dwordx4 {v(o,4)}, v1, s[20:23], s{34+(f>>2)} offen offset:{(f&3)*1024}{SC}")
        A.stamp("f%d" % f)
        if f == 4:
            m.poll_issue(F_ML, False, 13, w0=True)
        if f < 6:
            dripw(NW)
    m.poll_check(F_ML, False, 13, w0=True)
    A("s_barrier")
    gdl = gG.dlist()
    for x in gdl[:27]:
        x()
    A("PF_F_END:")
    A.stamp('F')
    TA = 208
    def extraG(k):
        out = []
        if k == 0:
            out = [lambda: m.signal(F_AT, "sAT", 12, w0=True)] + gdl[27:]
        if k == 10:
            out = [lambda: m.poll_issue(F_AT, True, 13, w0=True)]
        if k == 12:
            out = [lambda: m.poll_check(F_AT, True, 13, w0=True), lambda: seen.append(1)]
        if k == 13:
            assert seen
            hdl.extend(gH.dlist())
            out = hdl[:44]
        return out
    seen = []
    hdl = []
    gG.run(extraG, first_c=None)
    A.stamp('G')
    A(f"s_lshl_b32 s32, s28, 18\ns_add_u32 s32, s32, {L.MM}")
    for par in range(2):
        A(f"s_lshl_b32 s{60+par}, s31, 16\ns_add_u32 s{60+par}, s{60+par}, {L.W3 + par*32768}")
    gI = G4(A, vm, lk, NB=8, wn=2, KS=12, kps=2, NS=6, WD=12, s_act=32, blk_stride=32768, s_w=[60, 61],
            acc0=256 + 192, fr0=128, w0=256 + 32, vl16=1, vt=116, st=50, lds0=0, dfl=LL, stamps=('I0', 'I1', 'Ix'), wrap=16384)
    gI.setup()
    gJ = G4(A, vm, lk, NB=8, wn=2, KS=4, kps=2, NS=2, WD=4, s_act=32, blk_stride=32768, s_w=[60, 61],
            acc0=256 + 192, fr0=128, w0=256, vl16=1, vt=116, st=50, lds0=98304, stamps=None, wrap=16384)
    gJ.d_issued = 99
    A("s_lshl_b32 s32, s30, 12\nv_add_u32 v117, s32, v1\ns_add_u32 s32, s32, 4096\ns_and_b32 s32, s32, 16383\nv_add_u32 v116, s32, v1")
    iw = gJ.wlist(4) + gI.wlist(12)
    tl = c4_tload(A, vm, TA, 32)
    gH.run(lambda k: (wq_ + hdl[44:]) if k == 0 else ((tl + iw[:20]) if k == 8 else []))
    A("s_barrier")
    A(f"s_lshr_b32 s32, s3, 1\ns_lshl_b32 s32, s32, 14\ns_and_b32 s33, s3, 1\ns_lshl_b32 s33, s33, 10\ns_add_u32 s32, s32, s33\ns_add_u32 s32, s32, 98304\nv_add_u32 v5, s32, v1")
    conv_store(gH, 0, TA, lambda: list(iw[20:]), "sMG")
    for b in range(8):
        A(f"ds_write_b128 v5, {v(80+4*b,4)} offset:{b*2048}")
    A.stamp('H2')
    A("v_lshrrev_b32 v6, 4, v0")
    A("s_lshr_b32 s33, s28, 5\ns_and_b32 s34, s28, 31\ns_lshl_b32 s34, s34, 7")
    A(f"s_mul_i32 s33, s33, {L.T}")
    vm.wait("sMG")
    A("s_waitcnt lgkmcnt(0)\ns_barrier")
    m.signal(F_MG, "sMG", 12, w0=True)
    m.poll_issue(F_MG, False, 13, w0=True)
    gJ.run(None, first_c=None, start=False)
    OB = 98304
    A(f"v_and_b32 v8, 15, v0\nv_mul_u32_u24 v9, 272, v8\nv_lshl_add_u32 v9, v6, 4, v9\ns_lshl_b32 s36, s3, 6\ns_add_u32 s36, s36, {OB}\nv_add_u32 v9, s36, v9")
    A(f"v_mul_u32_u24 v10, 272, v6\nv_lshl_add_u32 v10, v8, 4, v10\ns_mul_i32 s36, s3, {32*272}\ns_add_u32 s36, s36, {OB}\nv_add_u32 v10, s36, v10")
    A("v_lshlrev_b32 v11, 10, v6\nv_lshl_add_u32 v11, v8, 4, v11")
    A(f"s_lshl_b32 s36, s3, 5\ns_add_u32 s36, s36, s34\ns_add_u32 s37, s36, s33\ns_lshl_b32 s37, s37, 10\ns_lshl_b32 s35, s30, 8\ns_add_u32 s37, s37, s35")
    A(f"s_cmp_lt_u32 s36, {L.T}\ns_cselect_b32 s38, s37, 0x40000000")
    m.poll_check(F_MG, False, 13, w0=True)
    A("s_barrier")
    idl = gI.dlist()
    for f in idl[:30]:
        f()
    gI.run(lambda k: idl[30:] if k == 0 else [], first_c=None)
    for b in range(8):
        q = gI.accs[(b, 0)]
        t = 16 + 12 * b
        for i in range(8):
            A(f"v_accvgpr_read_b32 {v(t+4+i)}, {R(q+i)}")
        for i in range(4):
            A(f"v_cvt_pk_bf16_f32 {v(t+i)}, {v(t+4+2*i)}, {v(t+5+2*i)}")
        A(f"ds_write_b128 v9, {v(t,4)} offset:{b*16*272}")
    A("s_waitcnt lgkmcnt(0)\ns_barrier")
    for i in range(8):
        lk.issue(("OS", i), f"ds_read_b128 {v(128+4*i,4)}, v10 offset:{i*4*272}")
    for i in range(8):
        lk.wait(("OS", i))
        vm.issue("S", f"buffer_store_dwordx4 {v(128+4*i,4)}, v11, s[12:15], s38 offen")
        A("s_add_u32 s38, s38, 4096")
    A.endpgm()
    A("PF_END:")
    rare(A, 0)
    rare(A, 1)
    assert A.check_branches() == 0
    return name, A.text() + "\n" + kdesc(name, 256, 256, 102), f"; @launch {'kernel=' + name + ' ' if 'mega' in name else ''}grid=(256,1,1) block=(256,1,1) lds=163840"
```
